```python
import torch

def _softmax(x, axis=-1):
    return torch.softmax(x, dim=axis)
def _gelu(x):
    return torch.nn.functional.gelu(x, approximate="tanh")
def _silu(x):
    return torch.nn.functional.silu(x)
def _sigmoid(x):
    return torch.sigmoid(x)
def _layernorm(x, axis=-1, eps=1e-5):
    m = x.mean(dim=axis, keepdim=True)
    v = x.var(dim=axis, keepdim=True, unbiased=False)
    return (x - m) / torch.sqrt(v + eps)
def _scatter_add(tgt, idx, src, axis=0):
    return tgt.clone().index_add_(axis, idx, src)
def _segment_sum(src, seg, n):
    out = torch.zeros((n,) + src.shape[1:], dtype=src.dtype)
    return out.index_add_(0, seg, src)
def _pad(x, pw):
    flat = tuple(v for pair in reversed(pw) for v in pair)
    return torch.nn.functional.pad(x, flat)

kernel_name = 'gated_mix__ssm_conv_s5__moe_arch_mod__prompt'

def setup_inputs():

    _w = (lambda a: (lambda t: t.to(torch.bfloat16) if t.is_floating_point() else t)(torch.as_tensor(a)))
    def _A_setup():
        B, S, D = 1, 2048, 1024
        P = D
        Lambda_re = -0.5 * (lambda _x: torch.exp(torch.as_tensor(_x)))((lambda *s: torch.randn(*s, dtype=torch.bfloat16) * 0.8)(P))
        Lambda_im = (lambda *s: torch.randn(*s, dtype=torch.bfloat16) * 0.8)(P) * 1.0
        B_re = (lambda *s: torch.randn(*s, dtype=torch.bfloat16) * 0.8)(P, D) * (D ** -0.5)
        B_im = (lambda *s: torch.randn(*s, dtype=torch.bfloat16) * 0.8)(P, D) * (D ** -0.5)
        C_re = (lambda *s: torch.randn(*s, dtype=torch.bfloat16) * 0.8)(D, P) * (P ** -0.5)
        C_im = (lambda *s: torch.randn(*s, dtype=torch.bfloat16) * 0.8)(D, P) * (P ** -0.5)
        log_dt = (lambda *s: torch.randn(*s, dtype=torch.bfloat16) * 0.8)(P) * 0.3 - 2.0
        Dskip = (lambda *s: torch.randn(*s, dtype=torch.bfloat16) * 0.8)(D)
        return {
            "x": _w((lambda *s: torch.randn(*s, dtype=torch.bfloat16) * 0.05)(B, S, D)),
            "Lambda_re": _w(Lambda_re),
            "Lambda_im": _w(Lambda_im),
            "B_re": _w(B_re),
            "B_im": _w(B_im),
            "C_re": _w(C_re),
            "C_im": _w(C_im),
            "log_dt": _w(log_dt),
            "Dskip": _w(Dskip),
        }
    _A_in = _A_setup()

    def _B_setup():
        B, S, D, F, C = 1, 2048, 1024, 3584, 8
        return {
            "x": _w((lambda *s: torch.randn(*s, dtype=torch.bfloat16) * 0.05)(B, S, D)),
            "w_r": _w((lambda *s: torch.randn(*s, dtype=torch.bfloat16) * 1.6)(D)),
            "w_gate": _w((lambda *s: torch.randn(*s, dtype=torch.bfloat16) * 0.1)(D, F)),
            "w_up": _w((lambda *s: torch.randn(*s, dtype=torch.bfloat16) * 0.1)(D, F)),
            "w_down": _w((lambda *s: torch.randn(*s, dtype=torch.bfloat16) * 0.1)(F, D)),
        }
    _B_in = _B_setup()

    return {
        "A_x": _A_in["x"],
        "A_Lambda_re": _A_in["Lambda_re"],
        "A_Lambda_im": _A_in["Lambda_im"],
        "A_B_re": _A_in["B_re"],
        "A_B_im": _A_in["B_im"],
        "A_C_re": _A_in["C_re"],
        "A_C_im": _A_in["C_im"],
        "A_log_dt": _A_in["log_dt"],
        "A_Dskip": _A_in["Dskip"],
        "B_x": _B_in["x"],
        "B_w_r": _B_in["w_r"],
        "B_w_gate": _B_in["w_gate"],
        "B_w_up": _B_in["w_up"],
        "B_w_down": _B_in["w_down"],
        "gate_w": _w((lambda *s: torch.randn(*s, dtype=torch.bfloat16) * 0.05)(1024) * 16.0),
    }

def reference(A_x, A_Lambda_re, A_Lambda_im, A_B_re, A_B_im, A_C_re, A_C_im, A_log_dt, A_Dskip, B_x, B_w_r, B_w_gate, B_w_up, B_w_down, gate_w):
    def _A_ref(x, Lambda_re, Lambda_im, B_re, B_im, C_re, C_im, log_dt, Dskip):
        Bsz, L, H = x.shape
        Lam = Lambda_re + 1j * Lambda_im
        Bmat = B_re + 1j * B_im
        Cmat = C_re + 1j * C_im
        dt = torch.exp(log_dt)
        Lam_bar = torch.exp(dt * Lam)
        B_bar = ((Lam_bar - 1.0) / Lam)[:, None] * Bmat
        Bu = torch.einsum("bld,pd->blp", x + 0j, B_bar)
        h = torch.zeros_like(Bu[:, 0, :])
        hs = []
        for t in range(L):
            h = Lam_bar[None, :] * h + Bu[:, t, :]
            hs.append(h)
        hseq = torch.stack(hs, 1)
        y = 2.0 * torch.einsum("blp,dp->bld", hseq, Cmat).real + x * Dskip[None, None, :]
        return y

    def _B_ref(x, w_r, w_gate, w_up, w_down):
        B, S, D = x.shape
        C = 8
        r = x @ w_r
        idx = torch.argsort(-r, axis=-1)[:, :C]
        idx_e = (lambda x, n, axis: torch.repeat_interleave(x, n, dim=axis))(idx.reshape(B, C, 1), D, axis=2)
        x_sel = (lambda x, i, axis: torch.take_along_dim(x, i, dim=axis))(x, idx_e, axis=1)
        g = _silu(x_sel @ w_gate)
        u = x_sel @ w_up
        y = (g * u) @ w_down
        r_sel = _sigmoid((lambda x, i, axis: torch.take_along_dim(x, i, dim=axis))(r, idx, axis=1))
        y = y * r_sel.reshape(B, C, 1)
        b_off = (torch.arange(B) * S).reshape(B, 1)
        flat_idx = (idx + b_off).reshape(B * C)
        zero = (x * 0.0).reshape(B * S, D)
        upd = _scatter_add(zero, flat_idx, y.reshape(B * C, D), axis=0)
        return x + upd.reshape(B, S, D)

    x = A_x
    g = _sigmoid((x * gate_w).sum(-1, keepdims=True))
    a = _A_ref(x, A_Lambda_re, A_Lambda_im, A_B_re, A_B_im, A_C_re, A_C_im, A_log_dt, A_Dskip)
    b = _B_ref(x, B_w_r, B_w_gate, B_w_up, B_w_down)
    return g * a + (1 - g) * b
```

```python
from asmgen import *
from layout import *

LOG2E = 0x3fb8aa3b
INV2PI = 0x3e22f983
XB = 131072
L_FLAG, L_CNT, L_NONCE, L_CAND, L_EX, L_GU = XB, XB + 16, XB + 20, XB + 256, XB + 1024, XB + 8192
L_TR = 65536
L_WG, L_WU = 0, 32768
SPIN = 1 << 20

def pk(op, d, a, b, c=None, sa=None, sb=None, sc=None, na=0, nb=0, nc=0):
    srcs = [(a, sa, na), (b, sb, nb)] + ([(c, sc, nc)] if c is not None else [])
    if sa not in (1, 'x') and sb in (1, 'x'): srcs[0], srcs[1] = srcs[1], srcs[0]
    lo = [{None: 0, 0: 0, 1: 1, 'x': 1}[s] for _, s, _ in srcs]
    hi = [{None: 1, 0: 0, 1: 1, 'x': 0}[s] for _, s, _ in srcs]
    nl = [n & 1 for _, _, n in srcs]; nh = [n >> 1 for _, _, n in srcs]
    t = f"v_pk_{op}_f32 v[{d}:{d+1}], " + ", ".join(f"v[{r}:{r+1}]" for r, _, _ in srcs)
    f = lambda x: "[" + ",".join(map(str, x)) + "]"
    if any(lo): t += f" op_sel:{f(lo)}"
    if not all(hi): t += f" op_sel_hi:{f(hi)}"
    if any(nl): t += f" neg_lo:{f(nl)}"
    if any(nh): t += f" neg_hi:{f(nh)}"
    return t

def csq(k, dr, di, ar, ai, t):
    k(pk("mul", t, ar, ai)); k(pk("mul", dr, ar, ar)); k(pk("fma", dr, ai, ai, dr, na=3)); k(pk("add", di, t, t))
def cmul_cb(k, dr, di, ar, ai, br, bi):
    k(pk("mul", dr, ar, br)); k(pk("mul", di, ar, bi)); k(pk("fma", dr, ai, bi, dr, na=3)); k(pk("fma", di, ai, br, di))
def cfma_ri(k, d, cr, ci, cb, h, g, t):
    k(pk("fma", t, cr, h, g, sa=cb)); k(pk("fma", d, ci, h, t, sa=cb, sb='x', nb=1))

def wg_coords(k):
    k("""
    s_and_b32 s24, s2, 7
    s_lshr_b32 s25, s2, 3
    s_lshr_b32 s26, s25, 3
    s_lshl_b32 s26, s26, 2
    s_lshr_b32 s27, s24, 1
    s_add_u32 s26, s26, s27
    s_and_b32 s27, s24, 1
    s_lshl_b32 s27, s27, 3
    s_and_b32 s28, s25, 7
    s_add_u32 s27, s27, s28
    """)

def add_base(k, s, off):
    k(f"s_add_u32 s{s}, s{s}, {off}\ns_addc_u32 s{s+1}, s{s+1}, 0")

def wave_max(k, v, t, sdst):
    k(f"v_mov_b32 v{t}, v{v}")
    for m in ("row_shr:1", "row_shr:2", "row_shr:4", "row_shr:8"):
        k(f"v_max_u32_dpp v{t}, v{t}, v{t} {m} row_mask:0xf bank_mask:0xf")
    k(f"v_max_u32_dpp v{t}, v{t}, v{t} row_bcast:15 row_mask:0xa bank_mask:0xf")
    k(f"v_max_u32_dpp v{t}, v{t}, v{t} row_bcast:31 row_mask:0xc bank_mask:0xf")
    k(f"v_readlane_b32 s{sdst}, v{t}, 63")

def wave_sum(k, regs):
    for m, rm in (("row_shr:1", 0xf), ("row_shr:2", 0xf), ("row_shr:4", 0xf), ("row_shr:8", 0xf), ("row_bcast:15", 0xa), ("row_bcast:31", 0xc)):
        for v in regs:
            k(f"v_add_f32_dpp v{v}, v{v}, v{v} {m} row_mask:{rm:#x} bank_mask:0xf")

def sigmoid_bf16(k, d, x, t):
    k(f"""
    v_mul_f32 v{t}, {LOG2E ^ 0x80000000:#x}, v{x}
    v_exp_f32 v{t}, v{t}
    v_add_f32 v{t}, 1.0, v{t}
    v_rcp_f32 v{t}, v{t}
    v_cvt_pk_bf16_f32 v{d}, v{t}, v{t}
    v_lshlrev_b32 v{d}, 16, v{d}
    """)

def gen_k1(cfg):
    k = Kern("k1_kernel", 256, 512, 163840, 200)
    st = cfg.get("stamps")
    if st: k("s_memrealtime s[90:91]\nv_mov_b32 v199, 0")
    k("s_cmp_ge_u32 s2, 256\ns_cbranch_scc1 L1_end")
    k("v_lshrrev_b32 v2, 6, v0\nv_and_b32 v1, 63, v0\ns_nop 0\nv_readfirstlane_b32 s29, v2")
    wg_coords(k)
    k("s_cmp_lt_u32 s29, 4\ns_cbranch_scc1 L1_compute")
    loader(k, cfg)
    k("L1_compute:")
    compute(k, cfg)
    k("L1_end:\ns_endpgm")
    k.lines = fix_hazards(k.lines)
    return k

def stamp(k, cfg, i, cond="s_waitcnt lgkmcnt(0)"):
    if not cfg.get("stamps"): return
    k(f"s_memrealtime s[92:93]\ns_waitcnt lgkmcnt(0)\nv_writelane_b32 v199, s92, {i}")
def stamp_flush(k, cfg, which):
    if not cfg.get("stamps"): return
    k(f"""
    s_load_dwordx2 s[92:93], s[0:1], {KA['ws']}
    s_mov_b32 s94, {SZ['ws']}
    s_mov_b32 s95, 0x20000
    v_writelane_b32 v199, s90, 63
    s_lshl_b32 s96, s2, 11
    s_lshl_b32 s97, s29, 8
    s_add_u32 s96, s96, s97
    s_add_u32 s96, s96, {WS_STAMP + which * 0x80000}
    s_mov_b64 exec, -1
    v_mbcnt_lo_u32_b32 v198, -1, 0
    v_mbcnt_hi_u32_b32 v198, -1, v198
    v_lshlrev_b32 v198, 2, v198
    s_waitcnt lgkmcnt(0)
    buffer_store_dword v199, v198, s[92:95], s96 offen
    """)

def loader(k, cfg):
    vm = VM(k)
    XS, BS, WS, RS, GS, DS, WGS, WUS, XF = 8, 12, 16, 36, 40, 44, 48, 52, 56
    k(f"""
    s_load_dwordx2 s[{XF}:{XF+1}], s[0:1], {KA['x']}
    s_load_dwordx4 s[{BS}:{BS+3}], s[0:1], {KA['b_re']}
    s_load_dwordx2 s[{RS}:{RS+1}], s[0:1], {KA['w_r']}
    s_load_dwordx2 s[{GS}:{GS+1}], s[0:1], {KA['gate_w']}
    s_load_dwordx2 s[{WS}:{WS+1}], s[0:1], {KA['ws']}
    s_load_dwordx2 s[{DS}:{DS+1}], s[0:1], {KA['dbg']}
    s_load_dwordx2 s[{WGS}:{WGS+1}], s[0:1], {KA['w_gate']}
    s_load_dwordx2 s[{WUS}:{WUS+1}], s[0:1], {KA['w_up']}
    s_and_b32 s30, s29, 3
    v_lshrrev_b32 v3, 3, v1      ; r3
    v_and_b32 v4, 7, v1
    v_lshrrev_b32 v5, 1, v3
    v_xor_b32 v4, v4, v5
    v_lshlrev_b32 v4, 4, v4
    v_lshl_add_u32 v14, v3, 11, v4   ; B piece 0
    v_xor_b32 v15, 64, v14
    v_add_u32 v16, {2*15360}, v14
    v_add_u32 v17, {3*15360}, v15
    v_add_u32 v15, {15360}, v15
    v_lshrrev_b32 v6, 2, v3
    v_lshlrev_b32 v6, 4, v6
    v_and_b32 v7, 1, v3
    v_lshl_add_u32 v6, v7, 3, v6
    v_and_b32 v7, 1, v5
    v_add_u32 v6, v6, v7         ; tl
    v_lshl_add_u32 v10, v6, 11, v4   ; A piece 0
    v_xor_b32 v11, 64, v10
    v_add_u32 v12, {2*2048-2048}, v10
    v_add_u32 v13, {34*2048-3072}, v11
    v_add_u32 v11, {32*2048-1024}, v11
    s_lshr_b32 s31, s30, 1       ; w>>1
    s_and_b32 s32, s30, 1        ; w&1
    s_lshl_b32 s33, s26, 7
    s_lshl_b32 s34, s31, 6
    s_add_u32 s33, s33, s34
    s_lshl_b32 s34, s32, 2
    s_add_u32 s33, s33, s34
    s_lshl_b32 s33, s33, 11
    s_lshl_b32 s34, s27, 6
    s_lshl_b32 s35, s31, 5
    s_add_u32 s34, s34, s35
    s_lshl_b32 s34, s34, 11
    s_lshl_b32 s60, s30, 12
    """)
    rot = cfg.get("rot1", "cn")
    if rot == "cn": k("s_add_u32 s61, s26, s27")
    elif rot == "none": k("s_mov_b32 s61, 0")
    else: k(rot)
    k(f"""
    s_and_b32 s61, s61, 15
    s_lshl_b32 s61, s61, 7
    s_cmp_eq_u32 s32, 1
    s_waitcnt lgkmcnt(0)
    s_cselect_b32 s{BS}, s{BS+2}, s{BS}
    s_cselect_b32 s{BS+1}, s{BS+3}, s{BS+1}
    s_add_u32 s{BS}, s{BS}, s34
    s_addc_u32 s{BS+1}, s{BS+1}, 0
    s_sub_u32 s{BS+2}, {SZ['b_re']}, s34
    s_mov_b32 s{BS+3}, 0x20000
    s_add_u32 s{XS}, s{XF}, s33
    s_addc_u32 s{XS+1}, s{XF+1}, 0
    s_sub_u32 s{XS+2}, {SZ['x']}, s33
    s_mov_b32 s{XS+3}, 0x20000
    """)
    def stage(i):
        slot = (i % 4) * 32768
        k(f"s_add_u32 m0, s60, {slot}")
        for j in range(4): vm.issue(f"st{i}", f"buffer_load_dwordx4 v{10+j}, s[{XS}:{XS+3}], s61 offen offset:{j*1024} lds")
        k(f"s_add_u32 m0, s60, {slot + 16384}")
        for j in range(4): vm.issue(f"st{i}", f"buffer_load_dwordx4 v{14+j}, s[{BS}:{BS+3}], s61 offen offset:{j*1024} lds")
        if i < 15: k("s_add_u32 s61, s61, 128\ns_and_b32 s61, s61, 2047")
    stage(0)
    for s, nm in ((XF, 'x'), (RS, 'w_r'), (GS, 'gate_w'), (WS, 'ws'), (DS, 'dbg'), (WGS, 'w_gate'), (WUS, 'w_up')):
        k(f"s_mov_b32 s{s+2}, {SZ[nm]}\ns_mov_b32 s{s+3}, 0x20000")
    X0, WR, GW = 20, 36, 44
    k(f"""
    s_lshl_b32 s62, s26, 7
    s_lshl_b32 s63, s27, 3
    s_add_u32 s62, s62, s63
    s_lshl_b32 s63, s30, 1
    s_add_u32 s62, s62, s63      ; s62 = t0
    s_lshl_b32 s63, s62, 11
    v_lshlrev_b32 v18, 4, v1
    """)
    for r in range(2):
        for h in range(2):
            vm.issue("rt", f"buffer_load_dwordx4 v[{X0+8*r+4*h}:{X0+8*r+4*h+3}], v18, s[{XF}:{XF+3}], s63 offen offset:{r*2048+h*1024}")
    for h in range(2):
        vm.issue("rt", f"buffer_load_dwordx4 v[{WR+4*h}:{WR+4*h+3}], v18, s[{RS}:{RS+3}], 0 offen offset:{h*1024}")
        vm.issue("rt", f"buffer_load_dwordx4 v[{GW+4*h}:{GW+4*h+3}], v18, s[{GS}:{GS+3}], 0 offen offset:{h*1024}")
    stage(1)
    stage(2)
    k(f"""
    s_or_b32 s64, s2, s30
    s_cmp_lg_u32 s64, 0
    s_cbranch_scc1 L1_notag
    s_load_dword s64, s[{WS}:{WS+1}], {WS_G}
    s_waitcnt lgkmcnt(0)
    s_mul_i32 s64, s64, 1664525
    s_add_u32 s64, s64, 1013904223
    s_cmp_eq_u32 s64, 0
    s_cselect_b32 s64, 1013904223, s64
    v_mov_b32 v19, s64
    v_mov_b32 v9, 0
    s_mov_b64 exec, 1
    buffer_store_dword v19, v9, s[{WS}:{WS+3}], 0 offen offset:{WS_G} sc1
    s_waitcnt vmcnt(0)
    buffer_store_dword v19, v9, s[{DS}:{DS+3}], 0 offen sc1
    s_mov_b64 exec, -1
    L1_notag:
    """)
    k(f"""
    v_mov_b32 v9, 0
    v_mov_b32 v8, 0
    v_mov_b32 v7, {L_FLAG}
    ds_write_b64 v7, v[8:9]
    ds_write_b64 v7, v[8:9] offset:8
    ds_write_b32 v7, v9 offset:16
    """)
    vm.wait("st0", "lgkmcnt(0)")
    stamp(k, cfg, 0)
    k("s_barrier")
    GL, GH, AR, AZ, T0 = 52, 60, 68, 70, 72
    def router_row(r):
        k(f"v_mov_b32 v{AR+r}, 0\nv_mov_b32 v{AZ+r}, 0")
        for i in range(8):
            x = X0 + 8*r + i; a, b = T0 + 2*(i & 1), T0 + 2*(i & 1) + 1
            k(f"""
            v_dot2_f32_bf16 v{a}, v{x}, v{GL+i}, 0
            v_dot2_f32_bf16 v{b}, v{x}, v{GH+i}, 0
            v_dot2c_f32_bf16 v{AR+r}, v{x}, v{WR+i}
            v_cvt_pk_bf16_f32 v{a}, v{a}, v{b}
            v_lshlrev_b32 v{b}, 16, v{a}
            v_and_b32 v{a}, 0xffff0000, v{a}
            v_add_f32 v{AZ+r}, v{AZ+r}, v{b}
            v_add_f32 v{AZ+r}, v{AZ+r}, v{a}
            """)
    KEY = 80
    for i in range(13):
        stage(i + 3)
        if i == 0:
            vm.issue("tag", f"buffer_load_dword v19, v9, s[{DS}:{DS+3}], 0 offen sc1")
        if i == 1:
            for q in range(8): k(f"v_and_b32 v{GL+q}, 0xffff, v{GW+q}\nv_and_b32 v{GH+q}, 0xffff0000, v{GW+q}")
            router_row(0)
        if i == 2:
            router_row(1)
        if i == 3:
            k("s_nop 2")
            wave_sum(k, [AR, AR+1, AZ, AZ+1])
            k(f"""
            v_readlane_b32 s66, v{AR+1}, 63
            v_readlane_b32 s67, v{AZ+1}, 63
            v_writelane_b32 v{AR}, s66, 62
            v_writelane_b32 v{AZ}, s67, 62
            v_cvt_pk_bf16_f32 v{AR}, v{AR}, v{AZ}
            v_and_b32 v{AZ}, 0xffff0000, v{AR}
            v_lshlrev_b32 v{AR}, 16, v{AR}
            v_ashrrev_i32 v{T0}, 31, v{AR}
            v_or_b32 v{T0}, 0x80000000, v{T0}
            v_xor_b32 v{T0}, v{T0}, v{AR}
            v_and_b32 v{T0}, 0xffff0000, v{T0}
            v_sub_u32 v{T0+2}, 63, v1
            v_add_u32 v{T0+2}, s62, v{T0+2}
            v_sub_u32 v{T0+1}, 2047, v{T0+2}
            v_or_b32 v{T0}, v{T0}, v{T0+1}           ; key
            v_lshlrev_b32 v{T0+2}, 3, v{T0+2}
            """)
            sigmoid_bf16(k, T0+4, AZ, T0+3)
            k(f"""
            v_sub_f32 v{T0+5}, 1.0, v{T0+4}
            v_cvt_pk_bf16_f32 v{T0+5}, v{T0+5}, v{T0+5}
            v_lshlrev_b32 v{T0+5}, 16, v{T0+5}
            """)
        if i == 4:
            vm.wait("tag")
            k(f"""
            s_mov_b32 s68, {SPIN}
            L1_tagpoll:
            v_readfirstlane_b32 s65, v19
            s_sub_u32 s68, s68, 1
            s_cbranch_scc1 L1_tagok
            s_cmp_lg_u32 s65, 0
            s_cbranch_scc1 L1_tagok
            buffer_load_dword v19, v9, s[{DS}:{DS+3}], 0 offen sc1
            s_waitcnt vmcnt(0)
            s_branch L1_tagpoll
            L1_tagok:
            v_mov_b32 v{T0+1}, s65
            ds_write_b32 v7, v{T0+1} offset:20
            s_mov_b32 exec_lo, 0
            s_mov_b32 exec_hi, 0xc0000000
            s_mov_b32 s66, {WS_RKEY}
            s_mov_b32 s67, {WS_GATE}
            """)
            vm.issue("pub", f"buffer_store_dwordx2 v[{T0}:{T0+1}], v{T0+2}, s[{WS}:{WS+3}], s66 offen sc1")
            vm.issue("pub", f"buffer_store_dwordx2 v[{T0+4}:{T0+5}], v{T0+2}, s[{WS}:{WS+3}], s67 offen")
            k("s_mov_b64 exec, -1")
        if i == 12:
            k(f"s_lshl_b32 s66, s30, 12\ns_add_u32 s66, s66, {WS_RKEY}")
            for q in range(4):
                vm.issue("keys", f"buffer_load_dwordx4 v[{KEY+4*q}:{KEY+4*q+3}], v18, s[{WS}:{WS+3}], s66 offen offset:{q*1024} sc1")
        vm.wait(f"st{i+1}", "lgkmcnt(0)" if i == 4 else "")
        k("s_barrier")
    k(f"""
    s_mul_hi_u32 s70, s2, {(2**32 + 55) // 56}     ; kq
    s_mul_i32 s71, s70, 56
    s_sub_u32 s71, s2, s71                        ; cg
    s_lshl_b32 s72, s70, 8
    s_lshl_b32 s73, s30, 6
    s_add_u32 s72, s72, s73                       ; k0 = 256 kq + 64 w
    s_mul_i32 s73, s72, 7168
    s_lshl_b32 s74, s71, 7
    s_add_u32 s73, s73, s74
    s_cmp_ge_u32 s2, 224
    s_cselect_b32 s{WGS+2}, 0, s{WGS+2}
    s_cselect_b32 s{WUS+2}, 0, s{WUS+2}
    v_mul_u32_u24 v10, 7168, v3
    v_and_b32 v11, 7, v1
    v_lshl_add_u32 v10, v11, 4, v10
    s_lshl_b32 s75, s30, 13
    """)
    def wdma(tag, srd, base):
        for j in range(8):
            k(f"s_add_u32 m0, s75, {base + j*1024}\ns_add_u32 s74, s73, {j*8*7168}")
            vm.issue(tag, f"buffer_load_dwordx4 v10, s[{srd}:{srd+3}], s74 offen lds")
    wdma("wg", WGS, L_WG)
    vm.wait("keys")
    k(f"s_mov_b32 s68, {SPIN}\nL1_keypoll:")
    k(f"v_xor_b32 v20, s65, v{KEY+1}")
    for q in range(1, 8): k(f"v_xor_b32 v21, s65, v{KEY+2*q+1}\nv_or_b32 v20, v20, v21")
    k(f"""
    v_cmp_ne_u32 vcc, 0, v20
    s_sub_u32 s68, s68, 1
    s_cbranch_scc1 L1_keyok
    s_cbranch_vccz L1_keyok
    """)
    for q in range(4):
        k(f"buffer_load_dwordx4 v[{KEY+4*q}:{KEY+4*q+3}], v18, s[{WS}:{WS+3}], s66 offen offset:{q*1024} sc1")
    k("s_waitcnt vmcnt(0)\ns_branch L1_keypoll\nL1_keyok:")
    def top8(nk, src, dst):
        k("s_mov_b32 s76, 0\ns_mov_b32 s78, 0x01010101\ns_mov_b32 s79, 0x01010101\ns_mov_b32 s80, 8")
        L = k.label("top")
        k(f"{L}:")
        for i in range(nk): k(f"v_subrev_u32 v{22+i}, s76, v{src(i)}")
        if nk == 8:
            k("v_max3_u32 v22, v22, v23, v24\nv_max3_u32 v25, v25, v26, v27\nv_max3_u32 v22, v22, v28, v29\nv_max_u32 v22, v22, v25")
        wave_max(k, 22, 23, 77)
        k(f"""
        s_add_u32 s76, s76, s77
        s_mov_b64 exec, s[78:79]
        v_mov_b32 v{dst}, s76
        s_mov_b64 exec, -1
        s_lshl_b64 s[78:79], s[78:79], 1
        s_sub_u32 s80, s80, 1
        s_cmp_lg_u32 s80, 0
        s_cbranch_scc1 {L}
        """)
    top8(8, lambda i: KEY + 2*i, 30)
    k(f"""
    v_and_b32 v31, 7, v1
    s_lshl_b32 s76, s30, 5
    v_lshl_add_u32 v32, v31, 2, s76
    ds_write_b32 v32, v30 offset:{L_CAND - XB}
    """.replace("ds_write_b32 v32, v30 offset:%d" % (L_CAND - XB), "v_add_u32 v32, %d, v32\nds_write_b32 v32, v30" % L_CAND))
    vm.wait("st14", "lgkmcnt(0)")
    k("s_barrier")
    wdma("wu", WUS, L_WU)
    k(f"""
    v_and_b32 v32, 31, v1
    v_lshlrev_b32 v32, 2, v32
    v_add_u32 v32, {L_CAND}, v32
    ds_read_b32 v33, v32
    s_waitcnt lgkmcnt(0)
    """)
    vm.wait("st15")
    k("s_barrier")
    top8(1, lambda i: 33, 30)
    stamp(k, cfg, 1)
    k(f"""
    v_and_b32 v31, 0x7ff, v30
    v_sub_u32 v31, 2047, v31
    v_lshrrev_b32 v32, 4, v1
    v_lshlrev_b32 v32, 4, v32
    v_lshl_add_u32 v32, v31, 11, v32
    s_lshl_b32 s76, s72, 1
    """)
    XA = 36
    for s in range(2):
        vm.issue("xs", f"buffer_load_dwordx4 v[{XA+4*s}:{XA+4*s+3}], v32, s[{XF}:{XF+3}], s76 offen offset:{s*64}")
    k(f"""
    s_cmp_lg_u32 s2, 255
    s_cbranch_scc1 L1_nosel
    s_cmp_lg_u32 s30, 0
    s_cbranch_scc1 L1_nosel
    v_ashrrev_i32 v33, 31, v30
    v_not_b32 v33, v33
    v_or_b32 v33, 0x80000000, v33
    v_xor_b32 v33, v33, v30
    v_and_b32 v33, 0xffff0000, v33
    """)
    sigmoid_bf16(k, 34, 33, 35)
    k(f"""
    v_lshlrev_b32 v35, 2, v1
    s_mov_b64 exec, 0xff
    buffer_store_dword v31, v35, s[{WS}:{WS+3}], 0 offen offset:{WS_SEL}
    buffer_store_dword v34, v35, s[{WS}:{WS+3}], 0 offen offset:{WS_SEL+32}
    s_endpgm
    L1_nosel:
    s_cmp_ge_u32 s2, 224
    s_cbranch_scc1 L1_lend
    """)
    k(f"""
    v_lshrrev_b32 v33, 4, v1
    v_bfe_u32 v34, v1, 2, 2
    v_lshl_add_u32 v33, v33, 3, v34
    v_lshlrev_b32 v33, 7, v33
    v_and_b32 v34, 3, v1
    v_lshl_add_u32 v33, v34, 3, v33
    v_add_u32 v33, s75, v33
    """)
    D = 96; FB = 128
    for r in range(32): k(f"v_mov_b32 v{D+r}, 0")
    for mat, tag, base in ((0, "wg", L_WG), (1, "wu", L_WU)):
        vm.wait(tag if mat else "wg")
        for s in range(2):
            for cb in range(4):
                for hh in range(2):
                    b = FB + (s*4+cb)*4 + 2*hh
                    k(f"ds_read_b64_tr_b16 v[{b}:{b+1}], v33 offset:{base + (32*s+4*hh)*128 + cb*32}")
        vm.wait("xs")
        for s in range(2):
            k(f"s_waitcnt lgkmcnt({8*(1-s)})")
            for cb in range(4):
                b = FB + (s*4+cb)*4; d = D + (mat*4+cb)*4
                k(f"v_mfma_f32_16x16x32_bf16 v[{d}:{d+3}], v[{XA+4*s}:{XA+4*s+3}], v[{b}:{b+3}], v[{d}:{d+3}]")
    k(f"""
    s_lshl_b32 s76, s30, 12
    v_lshl_add_u32 v34, v1, 4, s76
    v_add_u32 v34, {L_GU}, v34
    s_mov_b64 exec, 0xffffffff
    """)
    for b in range(8): k(f"ds_write_b128 v34, v[{D+4*b}:{D+4*b+3}] offset:{b*512}")
    k(f"""
    s_mov_b64 exec, 1
    v_mov_b32 v35, 1
    ds_add_rtn_u32 v35, v7, v35 offset:16
    s_mov_b64 exec, -1
    s_waitcnt lgkmcnt(0)
    v_readfirstlane_b32 s76, v35
    s_cmp_lg_u32 s76, 3
    s_cbranch_scc1 L1_lend
    v_lshlrev_b32 v34, 4, v1
    v_add_u32 v34, {L_GU}, v34
    """)
    for w in range(4):
        for i in range(4): k(f"ds_read_b128 v[{D+16*w+4*i}:{D+16*w+4*i+3}], v34 offset:{w*4096+i*1024}")
    k(f"""
    v_lshrrev_b32 v35, 5, v1
    v_and_b32 v36, 15, v1
    v_lshl_add_u32 v35, v35, 4, v36
    v_lshlrev_b32 v35, 8, v35
    v_bfe_u32 v36, v1, 4, 1
    v_lshl_add_u32 v35, v36, 4, v35
    s_lshl_b32 s76, s71, 14
    s_lshl_b32 s77, s70, 6
    s_add_u32 s76, s76, s77
    s_add_u32 s76, s76, {WS_GU}
    s_add_u32 s77, s76, 8192
    s_waitcnt lgkmcnt(0)
    """)
    for i in range(4):
        for h in range(2):
            a = D + 4*i + 2*h
            k(pk("add", a, a, a+16)); k(pk("add", a+32, a+32, a+48)); k(pk("add", a, a, a+32))
        k(f"buffer_store_dwordx4 v[{D+4*i}:{D+4*i+3}], v35, s[{WS}:{WS+3}], s{76 + (i&1)} offen offset:{(i>>1)*32}")
    k("L1_lend:")
    stamp(k, cfg, 2)
    stamp_flush(k, cfg, 0)
    k("s_endpgm")

def compute(k, cfg):
    LRS, LIS, DTS, WS, ES, HS = 8, 12, 16, 20, 36, 40
    LR, LI, L8R, L8I, L16R, L16I, RAWR, RAWI, T1, T2 = 10, 12, 14, 16, 18, 20, 22, 24, 26, 28
    FR, ACC, GR = 32, 96, 160
    k(f"""
    s_load_dwordx2 s[{LRS}:{LRS+1}], s[0:1], {KA['lam_re']}
    s_load_dwordx2 s[{LIS}:{LIS+1}], s[0:1], {KA['lam_im']}
    s_load_dwordx2 s[{DTS}:{DTS+1}], s[0:1], {KA['log_dt']}
    s_load_dwordx2 s[{WS}:{WS+1}], s[0:1], {KA['ws']}
    s_lshr_b32 s30, s29, 1       ; wm
    s_and_b32 s31, s29, 1        ; wn
    v_and_b32 v6, 15, v1         ; j
    v_lshrrev_b32 v7, 4, v1      ; q
    s_lshl_b32 s32, s27, 6
    s_lshl_b32 s33, s31, 5
    s_add_u32 s32, s32, s33
    s_lshl_b32 s32, s32, 1
    v_lshlrev_b32 v8, 1, v6
    """)
    for s in (LRS, LIS, DTS): k(f"s_mov_b32 s{s+2}, 2048\ns_mov_b32 s{s+3}, 0x20000")
    k("s_waitcnt lgkmcnt(0)")
    for cb in range(2):
        k(f"buffer_load_ushort v{T1+cb}, v8, s[{DTS}:{DTS+3}], s32 offen offset:{cb*32}")
        k(f"buffer_load_ushort v{RAWR+cb}, v8, s[{LRS}:{LRS+3}], s32 offen offset:{cb*32}")
        k(f"buffer_load_ushort v{RAWI+cb}, v8, s[{LIS}:{LIS+3}], s32 offen offset:{cb*32}")
    k(f"""
    v_lshrrev_b32 v8, 1, v6
    v_xor_b32 v8, v8, v7
    v_lshlrev_b32 v8, 4, v8
    v_lshl_add_u32 v8, v6, 7, v8
    s_lshl_b32 s33, s30, 13
    s_lshl_b32 s34, s31, 13
    s_add_u32 s34, s34, 16384
    v_add_u32 v2, s33, v8
    v_add_u32 v4, s34, v8
    v_xor_b32 v3, 64, v2
    v_xor_b32 v5, 64, v4
    s_lshl_b32 s33, s27, 14
    s_add_u32 s33, s33, {WS_E}
    s_add_u32 s{ES}, s{WS}, s33
    s_addc_u32 s{ES+1}, s{WS+1}, 0
    s_mov_b32 s{ES+2}, 16384
    s_mov_b32 s{ES+3}, 0x20000
    s_lshl_b32 s33, s27, 2
    s_add_u32 s33, s33, s31
    s_lshl_b32 s33, s33, 7
    s_lshl_b32 s34, s26, 3
    s_add_u32 s33, s33, s34
    s_lshl_b32 s34, s30, 2
    s_add_u32 s33, s33, s34
    s_lshl_b32 s33, s33, 10
    s_add_u32 s33, s33, {WS_H}
    s_add_u32 s{HS}, s{WS}, s33
    s_addc_u32 s{HS+1}, s{WS+1}, 0
    s_mov_b32 s{HS+2}, {2*131072 + 4096}
    s_mov_b32 s{HS+3}, 0x20000
    """)
    for r in range(64): k(f"v_mov_b32 v{ACC+r}, 0")
    k("s_waitcnt vmcnt(0)")
    for cb in range(2):
        k(f"""
        v_lshlrev_b32 v{T1+cb}, 16, v{T1+cb}
        v_lshlrev_b32 v{RAWR+cb}, 16, v{RAWR+cb}
        v_lshlrev_b32 v{RAWI+cb}, 16, v{RAWI+cb}
        v_mul_f32 v{T1+cb}, {LOG2E:#x}, v{T1+cb}
        v_exp_f32 v{T1+cb}, v{T1+cb}
        """)
    k(f"v_cvt_pk_bf16_f32 v{T1}, v{T1}, v{T1+1}\nv_and_b32 v{T1+1}, 0xffff0000, v{T1}\nv_lshlrev_b32 v{T1}, 16, v{T1}")
    k(pk("mul", T2, T1, RAWI)); k(pk("mul", T1, T1, RAWR))
    for cb in range(2):
        k(f"""
        v_mul_f32 v{T1+cb}, {LOG2E:#x}, v{T1+cb}
        v_mul_f32 v{T2+cb}, {INV2PI:#x}, v{T2+cb}
        v_exp_f32 v{T1+cb}, v{T1+cb}
        v_rndne_f32 v{LR+cb}, v{T2+cb}
        v_sub_f32 v{T2+cb}, v{T2+cb}, v{LR+cb}
        v_cos_f32 v{LR+cb}, v{T2+cb}
        v_sin_f32 v{LI+cb}, v{T2+cb}
        """)
    k(pk("mul", LR, LR, T1)); k(pk("mul", LI, LI, T1))
    csq(k, L8R, L8I, LR, LI, T1); csq(k, L16R, L16I, L8R, L8I, T1); csq(k, L8R, L8I, L16R, L16I, T1); csq(k, L16R, L16I, L8R, L8I, T1)
    if cfg.get("prio"): k(f"s_setprio {cfg['prio']}")
    k("s_barrier")
    stamp(k, cfg, 0)
    def rd(sub, fs, slot):
        b = FR + 32*fs; o = slot*32768
        A = [f"ds_read_b128 v[{b+4*m}:{b+4*m+3}], v{2+sub} offset:{o+m*2048}" for m in range(4)]
        B = [f"ds_read_b128 v[{b+16+4*m}:{b+16+4*m+3}], v{4+sub} offset:{o+m*2048}" for m in range(4)]
        return [A[0], B[0], B[1], B[2], B[3], A[1], A[2], A[3]]
    def mm(fs):
        b = FR + 32*fs; out = []
        for mb in range(4):
            for x in (range(4) if mb % 2 == 0 else range(3, -1, -1)):
                ri, cb = x >> 1, x & 1
                a = ACC + (cb*2+ri)*16 + mb*4
                out.append(f"v_mfma_f32_16x16x32_bf16 v[{a}:{a+3}], v[{b+4*mb}:{b+4*mb+3}], v[{b+16+4*x}:{b+16+4*x+3}], v[{a}:{a+3}]")
        return out
    for l in rd(0, 0, 0): k(l)
    k("s_mov_b32 s35, 0\nL1_loop:")
    BAR = cfg.get("bar1", 1)
    for half in range(2):
        m = mm(0); r = rd(1, 1, half)
        k("s_waitcnt lgkmcnt(0)")
        for i in range(16):
            k(m[i])
            if i < 8: k(r[i])
        m = mm(1)
        if half == 0: r = rd(0, 0, 1)
        else: r = rd(0, 0, 0)
        k("s_waitcnt lgkmcnt(0)")
        for i in range(16):
            k(m[i])
            if half == 1 and i == 0:
                for a in range(2, 6): k(f"v_xor_b32 v{a}, 0x10000, v{a}")
            if i == BAR - 1:
                if half == 0: k("s_barrier")
                else: k("s_cmp_eq_u32 s35, 7\ns_cbranch_scc1 L1_nobar\ns_barrier\nL1_nobar:")
            if BAR <= i < BAR + 8: k(r[i - BAR])
    k("s_add_u32 s35, s35, 1\ns_cmp_lt_u32 s35, 8\ns_cbranch_scc1 L1_loop")
    stamp(k, cfg, 1)
    U = lambda cb, ri, tp: ACC + (cb*2+ri)*16 + 2*tp
    k(f"""
    s_sub_u32 s33, s26, 1
    v_sub_u32 v8, s33, v7
    v_lshlrev_b32 v8, 10, v8
    v_lshl_add_u32 v8, v6, 4, v8
    s_lshl_b32 s33, s31, 9
    v_add_u32 v192, s33, v8
    v_add_u32 v193, -4096, v192
    v_add_u32 v194, -8192, v192
    v_add_u32 v195, -12288, v192
    v_mov_b32 v9, {L_FLAG}
    ds_read_b32 v30, v9 offset:20
    """)
    def lb_loads():
        for i in range(4):
            for cb in range(2):
                g = GR + (i*2+cb)*4
                k(f"buffer_load_dwordx4 v[{g}:{g+3}], v{192+i}, s[{ES}:{ES+3}], 0 offen offset:{cb*256} sc1")
    lb_loads()
    k("s_waitcnt lgkmcnt(0)\nv_readfirstlane_b32 s44, v30")
    for tp in range(1, 8):
        for ri_first in (0,):
            for cb in range(2): k(pk("fma", U(cb,0,tp), LR, U(cb,0,tp-1), U(cb,0,tp), sa=cb))
            for cb in range(2): k(pk("fma", U(cb,1,tp), LR, U(cb,1,tp-1), U(cb,1,tp), sa=cb))
            for cb in range(2): k(pk("fma", U(cb,0,tp), LI, U(cb,1,tp-1), U(cb,0,tp), sa=cb, na=3))
            for cb in range(2): k(pk("fma", U(cb,1,tp), LI, U(cb,0,tp-1), U(cb,1,tp), sa=cb))
    for cb in range(2):
        e = T1 + 2*cb; r0, i0 = U(cb,0,7), U(cb,1,7)
        k(f"""
        v_fma_f32 v{e}, v{L8R+cb}, v{r0}, v{r0+1}
        v_fma_f32 v{e+1}, v{L8R+cb}, v{i0}, v{i0+1}
        v_fma_f32 v{e}, -v{L8I+cb}, v{i0}, v{e}
        v_fma_f32 v{e+1}, v{L8I+cb}, v{r0}, v{e+1}
        """)
    k(f"""
    s_lshl_b32 s33, s31, 8
    s_add_u32 s33, s33, {L_EX}
    v_lshl_add_u32 v30, v6, 3, s33          ; e[0][ch]
    s_lshl_b32 s33, s30, 11
    v_lshl_add_u32 v31, v7, 9, s33
    v_add_u32 v31, v31, v30                 ; e[seg][ch]
    ds_write_b64 v31, v[{T1}:{T1+1}]
    ds_write_b64 v31, v[{T1+2}:{T1+3}] offset:128
    s_lshl_b32 s33, s29, 2
    v_add_u32 v31, s33, v9
    s_xor_b32 s33, s33, 8
    v_add_u32 v9, s33, v9
    v_mov_b32 v8, 1
    ds_write_b32 v31, v8
    s_mov_b32 s45, {SPIN}
    L1_expoll:
    ds_read_b32 v8, v9
    """)
    EV = lambda s, cb: FR + (s*2+cb)*2
    for s in range(8):
        for cb in range(2): k(f"ds_read_b64 v[{EV(s,cb)}:{EV(s,cb)+1}], v30 offset:{s*512+cb*128}")
    k(f"""
    s_waitcnt lgkmcnt(0)
    v_readfirstlane_b32 s33, v8
    s_sub_u32 s45, s45, 1
    s_cbranch_scc1 L1_exok
    s_cmp_eq_u32 s33, 0
    s_cbranch_scc1 L1_expoll
    L1_exok:
    """)
    for s in range(1, 8):
        for cb in range(2): cfma_ri(k, EV(s,cb), L16R, L16I, cb, EV(s-1,cb), EV(s,cb), EV(s,cb))
    k(f"""
    s_cmp_eq_u32 s30, 0
    s_cbranch_scc1 L1_nopub
    s_cmp_eq_u32 s26, 15
    s_cbranch_scc1 L1_nopub
    v_mov_b32 v{T1}, v{EV(7,0)}
    v_mov_b32 v{T1+1}, v{EV(7,0)+1}
    v_mov_b32 v{T1+2}, s44
    v_mov_b32 v{T1+3}, s44
    s_lshl_b32 s33, s26, 10
    s_lshl_b32 s34, s31, 9
    s_add_u32 s33, s33, s34
    v_lshlrev_b32 v8, 4, v1
    s_mov_b64 exec, 0xffff0000
    v_mov_b32 v{T1}, v{EV(7,1)}
    v_mov_b32 v{T1+1}, v{EV(7,1)+1}
    s_mov_b64 exec, 0xffffffff
    buffer_store_dwordx4 v[{T1}:{T1+3}], v8, s[{ES}:{ES+3}], s33 offen sc1
    s_mov_b64 exec, -1
    L1_nopub:
    """)
    stamp(k, cfg, 2)
    PL = FR + 28
    k(f"v_mov_b32 v{PL}, 0\nv_mov_b32 v{PL+1}, 0\nv_mov_b32 v{PL+2}, 0\nv_mov_b32 v{PL+3}, 0")
    k("s_lshl_b32 s33, s30, 2\nv_add_u32 v8, s33, v7")
    for s in range(1, 8):
        k(f"v_cmp_eq_u32 vcc, {s}, v8")
        for x in range(4): k(f"v_cndmask_b32 v{PL+x}, v{PL+x}, v{EV(s-1,0)+x}, vcc")
    A_R, A_I, B_R, B_I, WR_, WI_, VR_, VI_, L5R, L5I, TT = FR, FR+2, FR+4, FR+6, FR+8, FR+10, FR+12, FR+14, FR+16, FR+18, FR+20
    def sel_one(dr, di, sr, si, bit, v):
        k(f"v_and_b32 v9, {bit}, v{v}\nv_cmp_ne_u32 vcc, 0, v9")
        for cb in range(2): k(f"v_cndmask_b32 v{dr+cb}, 1.0, v{sr+cb}, vcc\nv_cndmask_b32 v{di+cb}, 0, v{si+cb}, vcc")
    SR_, SI_, S2R, S2I = FR+22, FR+24, T1, T2
    sel_one(WR_, WI_, L16R, L16I, 1, 8)
    csq(k, A_R, A_I, L16R, L16I, TT)
    sel_one(SR_, SI_, A_R, A_I, 2, 8)
    cmul_cb(k, VR_, VI_, WR_, WI_, SR_, SI_)
    csq(k, B_R, B_I, A_R, A_I, TT)
    sel_one(SR_, SI_, B_R, B_I, 4, 8)
    cmul_cb(k, WR_, WI_, VR_, VI_, SR_, SI_)
    csq(k, A_R, A_I, B_R, B_I, TT)
    sel_one(S2R, S2I, A_R, A_I, 1, 7)
    csq(k, B_R, B_I, A_R, A_I, TT)
    sel_one(SR_, SI_, B_R, B_I, 2, 7)
    cmul_cb(k, VR_, VI_, S2R, S2I, SR_, SI_)
    csq(k, L5R, L5I, B_R, B_I, TT)
    cmul_cb(k, A_R, A_I, WR_, WI_, L8R, L8I)
    WRs = lambda cb: L16R + 0 if cb == 0 else L16I
    WIs = lambda cb: (B_R, B_I)[cb]
    for cb in range(2):
        k(f"v_mov_b32 v{WRs(cb)}, v{WR_+cb}\nv_mov_b32 v{WRs(cb)+1}, v{A_R+cb}\nv_mov_b32 v{WIs(cb)}, v{WI_+cb}\nv_mov_b32 v{WIs(cb)+1}, v{A_I+cb}")
    PRs = lambda cb: (A_R, WR_)[cb]
    PIs = lambda cb: (A_I, WI_)[cb]
    for cb in range(2):
        p = PL + 2*cb; r0, i0 = U(cb,0,7), U(cb,1,7)
        k(f"""
        v_fma_f32 v{PRs(cb)+1}, v{L8R+cb}, v{p}, v{r0}
        v_fma_f32 v{PIs(cb)+1}, v{L8R+cb}, v{p+1}, v{i0}
        v_mov_b32 v{PRs(cb)}, v{p}
        v_mov_b32 v{PIs(cb)}, v{p+1}
        v_fma_f32 v{PRs(cb)+1}, -v{L8I+cb}, v{p+1}, v{PRs(cb)+1}
        v_fma_f32 v{PIs(cb)+1}, v{L8I+cb}, v{p}, v{PIs(cb)+1}
        """)
    for cb in range(2):
        k(f"v_max_f32 v{T1+cb}, |v{RAWR+cb}|, |v{RAWI+cb}|\nv_rcp_f32 v{T2+cb}, v{T1+cb}")
    k(pk("mul", RAWR, RAWR, T2)); k(pk("mul", RAWI, RAWI, T2))
    k(pk("mul", T2, RAWR, RAWR)); k(pk("fma", T2, RAWI, RAWI, T2)); k(pk("mul", T2, T2, T1))
    for cb in range(2): k(f"v_rcp_f32 v{T2+cb}, v{T2+cb}\nv_add_f32 v{T1+cb}, -1.0, v{LR+cb}")
    k(pk("add", T2, T2, T2))
    k(pk("mul", SR_, T1, RAWR)); k(pk("mul", SI_, LI, RAWR)); k(pk("fma", SR_, LI, RAWI, SR_)); k(pk("fma", SI_, T1, RAWI, SI_, na=3))
    k(pk("mul", SR_, SR_, T2)); k(pk("mul", SI_, SI_, T2))
    TB = lambda tp, cb: FR + 32 + (tp*2+cb)*2
    for cb in range(2):
        k(f"v_mov_b32 v{T1+2*cb}, v{SR_+cb}\nv_mov_b32 v{T1+2*cb+1}, v{SI_+cb}")
    for tp in range(8):
        for cb in range(2):
            src = T1 + 2*cb if tp == 0 else TB(tp-1, cb)
            k(pk("mul", TB(tp,cb), LR, src, sa=cb))
        for cb in range(2):
            src = T1 + 2*cb if tp == 0 else TB(tp-1, cb)
            k(pk("fma", TB(tp,cb), LI, src, TB(tp,cb), sa=cb, sb='x', nb=1))
    for tp in range(8):
        for cb in range(2):
            t = T1 + 2*cb; R, I = U(cb,0,tp), U(cb,1,tp)
            k(pk("mul", t, SI_, R, sa=cb, na=3)); k(pk("mul", R, SR_, R, sa=cb))
            k(pk("fma", R, SI_, I, R, sa=cb, na=3)); k(pk("fma", I, SR_, I, t, sa=cb, na=3))
    EX = RAWR
    EXP = [RAWR, RAWI, L8R, L8I]
    k(f"v_mov_b32 v9, s44")
    for i in range(4):
        k(f"v_cmp_le_i32 vcc, 0, v{192+i}\nv_cndmask_b32 v{EXP[i]}, 0, v9, vcc\nv_cndmask_b32 v{EXP[i]+1}, 0, v9, vcc")
    k(f"""
    s_lshl_b32 s33, s29, 13
    s_add_u32 s33, s33, {L_TR}
    v_lshrrev_b32 v8, 1, v6
    v_and_b32 v8, 4, v8
    v_and_b32 v9, 7, v6
    v_xor_b32 v8, v8, v9                    ; g(j)
    v_lshlrev_b32 v9, 1, v7
    v_xor_b32 v8, v8, v9
    v_lshlrev_b32 v8, 4, v8
    v_lshl_add_u32 v8, v6, 7, v8
    v_add_u32 v2, s33, v8
    v_xor_b32 v3, 16, v2
    v_bfe_u32 v8, v1, 2, 2                  ; r
    v_bfe_u32 v9, v1, 1, 1
    v_xor_b32 v9, v9, v8
    v_and_b32 v4, 1, v7
    v_lshlrev_b32 v4, 2, v4
    v_xor_b32 v9, v9, v4
    v_lshlrev_b32 v9, 4, v9
    v_lshl_add_u32 v8, v7, 3, v8
    v_lshl_add_u32 v9, v8, 7, v9
    v_and_b32 v8, 1, v1
    v_lshl_add_u32 v9, v8, 3, v9
    v_add_u32 v4, s33, v9
    v_xor_b32 v5, 32, v4
    v_xor_b32 v30, 64, v4
    v_xor_b32 v31, 96, v4
    v_lshlrev_b32 v196, 4, v1
    s_mov_b32 s45, {SPIN}
    """)
    if cfg.get("dbgregs"):
        k(f"s_mov_b32 s{WS+2}, {SZ['ws']}\ns_mov_b32 s{WS+3}, 0x20000\ns_lshl_b32 s34, s2, 2\ns_add_u32 s34, s34, s29\ns_lshl_b32 s34, s34, 14\ns_add_u32 s34, s34, {WS_STAMP}\nv_lshlrev_b32 v197, 2, v1")
        for i, r in enumerate(cfg["dbgregs"]):
            if i and i % 16 == 0: k("s_add_u32 s34, s34, 4096")
            k(f"buffer_store_dword v{r}, v197, s[{WS}:{WS+3}], s34 offen offset:{(i%16)*256}")
    stamp(k, cfg, 3)
    k("L1_lbpoll:\ns_waitcnt vmcnt(0)")
    for i in range(4):
        for cb in range(2):
            g = GR + (i*2+cb)*4
            k(f"v_cmp_ne_u64 s[{46+2*(i*2+cb)}:{47+2*(i*2+cb)}], v[{g+2}:{g+3}], v[{EXP[i]}:{EXP[i]+1}]")
    k("""
    s_or_b64 s[46:47], s[46:47], s[48:49]
    s_or_b64 s[50:51], s[50:51], s[52:53]
    s_or_b64 s[54:55], s[54:55], s[56:57]
    s_or_b64 s[58:59], s[58:59], s[60:61]
    s_or_b64 s[46:47], s[46:47], s[50:51]
    s_or_b64 s[54:55], s[54:55], s[58:59]
    s_or_b64 s[46:47], s[46:47], s[54:55]
    s_cbranch_scc0 L1_lbok
    s_sub_u32 s45, s45, 1
    s_cbranch_scc1 L1_lbok
    """)
    lb_loads()
    k("s_branch L1_lbpoll\nL1_lbok:")
    stamp(k, cfg, 4)
    G = lambda i, cb: GR + (i*2+cb)*4
    for i in (2, 1, 0):
        for cb in range(2): cfma_ri(k, G(i,cb), L5R, L5I, cb, G(i+1,cb), G(i,cb), G(i,cb))
    H = lambda cb: G(1, cb)
    for cb in range(2): k(pk("mul", H(cb), VR_, G(0,cb), sa=cb))
    for cb in range(2): k(pk("fma", H(cb), VI_, G(0,cb), H(cb), sa=cb, sb='x', nb=1))
    for op in ("v_permlane16_swap_b32", "v_permlane32_swap_b32"):
        for cb in range(2): k(f"v_mov_b32 v{H(cb)+2}, v{H(cb)}\nv_mov_b32 v{H(cb)+3}, v{H(cb)+1}")
        for cb in range(2): k(f"{op} v{H(cb)}, v{H(cb)+2}\n{op} v{H(cb)+1}, v{H(cb)+3}")
        for cb in range(2): k(pk("add", H(cb), H(cb), H(cb)+2))
    for cb in range(2):
        k(pk("fma", PRs(cb), WRs(cb), H(cb), PRs(cb), sb=0)); k(pk("fma", PIs(cb), WRs(cb), H(cb), PIs(cb), sb=1))
    for cb in range(2):
        k(pk("fma", PRs(cb), WIs(cb), H(cb), PRs(cb), sb=1, nb=3)); k(pk("fma", PIs(cb), WIs(cb), H(cb), PIs(cb), sb=0))
    PK = GR
    for cb in range(2):
        for tp in range(8):
            R, I, T = U(cb,0,tp), U(cb,1,tp), TB(tp,cb)
            k(pk("fma", R, T, PRs(cb), R, sa=0)); k(pk("fma", I, T, PIs(cb), I, sa=0, na=3))
            k(pk("fma", R, T, PIs(cb), R, sa=1, na=3)); k(pk("fma", I, T, PRs(cb), I, sa=1, na=3))
        for ri in range(2):
            for sub in range(2):
                b = PK + ((ri*2+cb)*2+sub)*4
                for x in range(4): k(f"v_cvt_pk_bf16_f32 v{b+x}, v{U(cb,ri,2*x)+sub}, v{U(cb,ri,2*x+1)+sub}")
                k(f"ds_write_b128 v{2+sub}, v[{b}:{b+3}] offset:{(ri*32+cb*16)*128}")
    RA = {0: 4, 2: 5, 4: 30, 6: 31}
    k(f"s_mov_b32 s33, {2*131072}")
    OUT = ACC
    for ri in range(2):
        for qq in range(4):
            b = OUT + (ri*4+qq)*4
            for hh in range(2): k(f"ds_read_b64_tr_b16 v[{b+2*hh}:{b+2*hh+1}], v{RA[(2*qq) ^ (4*hh)]} offset:{(ri*32+4*hh)*128}")
    for ri in range(2):
        for qq in range(4):
            b = OUT + (ri*4+qq)*4
            k(f"s_waitcnt lgkmcnt({min(15, 2*(7-(ri*4+qq)))})")
            k(f"buffer_store_dwordx4 v[{b}:{b+3}], v196, s[{HS}:{HS+3}], {'s33' if ri else '0'} offen offset:{qq*1024}")
    stamp(k, cfg, 5)
    stamp_flush(k, cfg, 0)
```

```python
from asmgen import *
from layout import *
from k1 import pk, wg_coords, stamp, stamp_flush, sigmoid_bf16, LOG2E, SPIN

L_WD, L_ACT = 65536, 65536 + 28672
ACT_ROW = 464
LDS2 = 98304

def gen_k2(cfg):
    k = Kern("k2_kernel", 256, 512, LDS2, 200)
    if cfg.get("stamps"): k("s_memrealtime s[90:91]\nv_mov_b32 v199, 0")
    k("s_cmp_ge_u32 s2, 256\ns_cbranch_scc1 L2_end")
    k("v_lshrrev_b32 v2, 6, v0\nv_and_b32 v1, 63, v0\ns_nop 0\nv_readfirstlane_b32 s29, v2")
    wg_coords(k)
    rot = cfg.get("rot2", "cn")
    if rot == "cn": k("s_add_u32 s61, s26, s27")
    elif rot == "none": k("s_mov_b32 s61, 0")
    else: k(rot)
    k("s_and_b32 s61, s61, 15")
    k("s_cmp_lt_u32 s29, 4\ns_cbranch_scc1 L2_compute")
    aux(k, cfg)
    k("L2_compute:")
    compute(k, cfg)
    k("L2_end:\ns_endpgm")
    k.lines = fix_hazards(k.lines)
    return k

def compute(k, cfg):
    HS = 8
    CF, HR, ACC = 8, 40, 104
    k(f"""
    s_load_dwordx2 s[{HS}:{HS+1}], s[0:1], {KA['ws']}
    s_lshl_b32 s32, s26, 3
    s_lshl_b32 s33, s29, 1
    s_add_u32 s32, s32, s33
    s_lshl_b32 s32, s32, 10
    s_add_u32 s33, s32, {WS_H}
    s_sub_u32 s{HS+2}, {64*131072}, s32
    s_mov_b32 s{HS+3}, 0x20000
    s_lshl_b32 s62, s61, 19
    v_lshlrev_b32 v4, 4, v1
    v_and_b32 v6, 15, v1
    v_lshrrev_b32 v7, 4, v1
    v_lshrrev_b32 v2, 1, v6
    v_xor_b32 v2, v2, v7
    v_lshlrev_b32 v2, 4, v2
    v_lshl_add_u32 v2, v6, 7, v2
    v_xor_b32 v3, 64, v2
    s_waitcnt lgkmcnt(0)
    s_add_u32 s{HS}, s{HS}, s33
    s_addc_u32 s{HS+1}, s{HS+1}, 0
    """)
    def hload(u, tb):
        r = HR + 8*(u % 8) + 4*tb
        k(f"buffer_load_dwordx4 v[{r}:{r+3}], v4, s[{HS}:{HS+3}], s62 offen offset:{tb*1024}")
    def hadv(): k(f"s_add_u32 s62, s62, 131072\ns_and_b32 s62, s62, {64*131072-1}")
    for u in range(8):
        hload(u, 0); hload(u, 1); hadv()
    for r in range(32): k(f"v_mov_b32 v{ACC+r}, 0")
    k(f"""
    v_and_b32 v5, 7, v6
    v_xor_b32 v5, v5, v7
    v_lshlrev_b32 v5, 4, v5
    v_lshl_add_u32 v5, v6, 8, v5
    s_lshl_b32 s33, s29, 13
    v_add_u32 v136, s33, v5
    v_xor_b32 v137, 64, v136
    v_xor_b32 v138, 128, v136
    v_xor_b32 v139, 192, v136
    """)
    if cfg.get("prio"): k(f"s_setprio {cfg['prio']}")
    k("s_barrier")
    stamp(k, cfg, 0)
    def rd(sub, fs, slot):
        b = CF + 16*fs; ri, s = sub >> 1, sub & 1
        return [f"ds_read_b128 v[{b+4*d}:{b+4*d+3}], v{2+s} offset:{slot*16384 + ri*8192 + d*2048}" for d in range(4)]
    def mm(u, fs):
        b = CF + 16*fs; out = []
        for tb in range(2):
            h = HR + 8*(u % 8) + 4*tb
            for d in (range(4) if tb == 0 else range(3, -1, -1)):
                a = ACC + (tb*4+d)*4
                out.append(f"v_mfma_f32_16x16x32_bf16 v[{a}:{a+3}], v[{b+4*d}:{b+4*d+3}], v[{h}:{h+3}], v[{a}:{a+3}]")
        return out
    for l in rd(0, 0, 0): k(l)
    k("s_mov_b32 s35, 0\nL2_loop:")
    k(f"s_cmp_eq_u32 s35, 7\ns_cselect_b32 s{HS+2}, 0, s{HS+2}")
    for u in range(8):
        half, sub = u >> 2, u & 3
        m = mm(u, u & 1)
        r = rd(sub+1, (u+1) & 1, half) if sub < 3 else rd(0, 0, 1 - half)
        k("s_waitcnt vmcnt(15) lgkmcnt(0)")
        for i in range(8):
            if i == 4: k("s_waitcnt vmcnt(15)")
            k(m[i])
            if sub == 3 and i == 0:
                if half == 1: k("v_xor_b32 v2, 0x8000, v2\nv_xor_b32 v3, 0x8000, v3\ns_cbranch_scc1 L2_nobar\ns_barrier\nL2_nobar:")
                else: k("s_barrier")
            o = 1 if sub == 3 else 0
            if o <= i < o + 4: k(r[i - o])
            if i == 3: hload(u, 0)
            if i == 7:
                hload(u, 1)
                if u == 6: k(f"s_add_u32 s62, s62, 131072\ns_and_b32 s62, s62, {64*131072-1}\ns_cmp_eq_u32 s35, 7")
                else: hadv()
    k("s_add_u32 s35, s35, 1\ns_cmp_lt_u32 s35, 8\ns_cbranch_scc1 L2_loop")
    stamp(k, cfg, 1)
    for tb in range(2):
        for d in range(4):
            a = ACC + (tb*4+d)*4
            k(f"ds_write_b128 v{136+d}, v[{a}:{a+3}] offset:{tb*4096}")
    k("s_waitcnt lgkmcnt(0)\ns_barrier")
    stamp(k, cfg, 2)
    stamp_flush(k, cfg, 1)

def aux(k, cfg):
    vm = VM(k)
    CS, WS, XS, WD, DK, OS = 8, 12, 16, 36, 40, 44
    k(f"""
    s_load_dwordx4 s[{CS}:{CS+3}], s[0:1], {KA['c_re']}
    s_load_dwordx2 s[{WS}:{WS+1}], s[0:1], {KA['ws']}
    s_load_dwordx2 s[{XS}:{XS+1}], s[0:1], {KA['x']}
    s_load_dwordx2 s[{WD}:{WD+1}], s[0:1], {KA['w_down']}
    s_load_dwordx2 s[{DK}:{DK+1}], s[0:1], {KA['dskip']}
    s_load_dwordx2 s[{OS}:{OS+1}], s[0:1], {KA['out']}
    s_and_b32 s30, s29, 3        ; w
    v_lshrrev_b32 v3, 3, v1      ; r3
    v_and_b32 v4, 7, v1
    v_lshrrev_b32 v5, 1, v3
    v_xor_b32 v5, v4, v5
    v_lshlrev_b32 v5, 4, v5
    v_lshl_add_u32 v10, v3, 11, v5
    v_xor_b32 v11, 64, v10
    v_add_u32 v12, {2*15360}, v10
    v_add_u32 v13, {3*15360}, v11
    v_add_u32 v11, {15360}, v11
    s_lshr_b32 s31, s30, 1
    s_and_b32 s32, s30, 1
    s_lshl_b32 s34, s27, 6
    s_lshl_b32 s35, s31, 5
    s_add_u32 s34, s34, s35
    s_lshl_b32 s34, s34, 11
    s_lshl_b32 s60, s32, 13
    s_lshl_b32 s35, s31, 12
    s_add_u32 s60, s60, s35
    s_lshl_b32 s61, s61, 7
    s_cmp_eq_u32 s32, 1
    s_waitcnt lgkmcnt(0)
    s_cselect_b32 s{CS}, s{CS+2}, s{CS}
    s_cselect_b32 s{CS+1}, s{CS+3}, s{CS+1}
    s_add_u32 s{CS}, s{CS}, s34
    s_addc_u32 s{CS+1}, s{CS+1}, 0
    s_sub_u32 s{CS+2}, {SZ['c_re']}, s34
    s_mov_b32 s{CS+3}, 0x20000
    """)
    def stage(i):
        k(f"s_add_u32 m0, s60, {(i % 4) * 16384}")
        for j in range(4): vm.issue(f"st{i}", f"buffer_load_dwordx4 v{10+j}, s[{CS}:{CS+3}], s61 offen offset:{j*1024} lds")
        if i < 15: k("s_add_u32 s61, s61, 128\ns_and_b32 s61, s61, 2047")
    stage(0)
    SEL = 64
    k(f"s_load_dwordx16 s[{SEL}:{SEL+15}], s[{WS}:{WS+1}], {WS_SEL}\ns_load_dword s80, s[{WS}:{WS+1}], {WS_G}")
    for s, nm in ((WS, 'ws'), (XS, 'x'), (WD, 'w_down'), (DK, 'dskip'), (OS, 'out')):
        k(f"s_mov_b32 s{s+2}, {SZ[nm]}\ns_mov_b32 s{s+3}, 0x20000")
    GP = 20
    k(f"""
    v_and_b32 v6, 255, v0
    v_lshrrev_b32 v7, 1, v6
    v_and_b32 v8, 1, v6
    v_lshlrev_b32 v14, 8, v7
    v_lshl_add_u32 v14, v8, 4, v14
    v_add_u32 v15, 32768, v14
    v_bfrev_b32 v2, 1
    v_cmp_gt_u32 vcc, 192, v6
    v_cndmask_b32 v15, v2, v15, vcc
    s_mul_i32 s33, s26, {224*256}
    s_add_u32 s33, s33, {WS_GU}
    v_lshlrev_b32 v16, 1, v7
    v_mul_u32_u24 v8, {4*ACT_ROW}, v8
    v_add_u32 v16, v16, v8
    v_add_u32 v16, {L_ACT}, v16
    """)
    for rd_ in range(2):
        for q in range(8):
            r = GP + 32*rd_ + 4*q
            vm.issue("gu", f"buffer_load_dwordx4 v[{r}:{r+3}], v{14+rd_}, s[{WS}:{WS+3}], s33 offen offset:{q*32}")
    stage(1)
    stage(2)
    k(f"""
    v_lshlrev_b32 v17, 4, v4
    v_lshl_add_u32 v17, v3, 11, v17
    s_mul_i32 s33, s26, 28
    s_mul_i32 s34, s30, 7
    s_add_u32 s33, s33, s34
    s_lshl_b32 s33, s33, 14
    s_lshl_b32 s35, s27, 7
    s_add_u32 s33, s33, s35
    s_lshl_b32 s34, s34, 10
    """)
    for j in range(7):
        k(f"s_add_u32 m0, s34, {L_WD + j*1024}")
        if j: k("s_add_u32 s33, s33, 16384")
        vm.issue("wd", f"buffer_load_dwordx4 v17, s[{WD}:{WD+3}], s33 offen lds")
    XR, GR, DR, E1 = 84, 100, 116, 120
    k(f"""
    v_lshrrev_b32 v6, 4, v1      ; rg
    v_and_b32 v7, 15, v1         ; cl
    s_lshl_b32 s48, s26, 7
    s_lshl_b32 s49, s30, 5
    s_add_u32 s49, s48, s49      ; R0
    v_lshlrev_b32 v18, 3, v7
    v_lshl_add_u32 v19, v6, 11, v18
    s_lshl_b32 s33, s49, 11
    s_add_u32 s33, s33, s35
    v_lshlrev_b32 v9, 3, v6
    s_lshl_b32 s34, s49, 3
    s_add_u32 s34, s34, {WS_GATE}
    """)
    for i in range(8):
        vm.issue("ep", f"buffer_load_dwordx2 v[{XR+2*i}:{XR+2*i+1}], v19, s[{XS}:{XS+3}], s33 offen")
        if i < 7: k("s_add_u32 s33, s33, 8192")
        vm.issue("ep", f"buffer_load_dwordx2 v[{GR+2*i}:{GR+2*i+1}], v9, s[{WS}:{WS+3}], s34 offen offset:{i*32}")
    vm.issue("ep", f"buffer_load_dwordx2 v[{DR}:{DR+1}], v18, s[{DK}:{DK+3}], s35 offen")
    vm.wait("st0", "lgkmcnt(0)")
    stamp(k, cfg, 0)
    k("s_barrier")
    T = 152
    def act_round(rd_):
        b = GP + 32*rd_
        for mat in range(2):
            for h in range(2):
                a = b + 4*mat + 2*h
                k(pk("add", a, a, a+8)); k(pk("add", a+16, a+16, a+24)); k(pk("add", a, a, a+16))
        for h in range(2):
            g, u = b + 2*h, b + 4 + 2*h
            k(f"""
            v_cvt_pk_bf16_f32 v{T}, v{g}, v{g+1}
            v_cvt_pk_bf16_f32 v{T+1}, v{u}, v{u+1}
            v_lshlrev_b32 v{g}, 16, v{T}
            v_and_b32 v{g+1}, 0xffff0000, v{T}
            v_lshlrev_b32 v{u}, 16, v{T+1}
            v_and_b32 v{u+1}, 0xffff0000, v{T+1}
            v_mul_f32 v{T}, {LOG2E ^ 0x80000000:#x}, v{g}
            v_mul_f32 v{T+1}, {LOG2E ^ 0x80000000:#x}, v{g+1}
            v_exp_f32 v{T}, v{T}
            v_exp_f32 v{T+1}, v{T+1}
            v_add_f32 v{T}, 1.0, v{T}
            v_add_f32 v{T+1}, 1.0, v{T+1}
            v_rcp_f32 v{T}, v{T}
            v_rcp_f32 v{T+1}, v{T+1}
            """)
            k(pk("mul", g, g, T))
            k(f"v_cvt_pk_bf16_f32 v{T}, v{g}, v{g+1}\nv_lshlrev_b32 v{g}, 16, v{T}\nv_and_b32 v{g+1}, 0xffff0000, v{T}")
            k(pk("mul", g, g, u))
            k(f"v_cvt_pk_bf16_f32 v{g}, v{g}, v{g+1}")
        if rd_: k("v_cmp_le_i32 vcc, 0, v15\ns_and_saveexec_b64 s[50:51], vcc")
        for h in range(2):
            k(f"ds_write_b16 v16, v{b+2*h} offset:{rd_*256 + 2*h*ACT_ROW}\nds_write_b16_d16_hi v16, v{b+2*h} offset:{rd_*256 + (2*h+1)*ACT_ROW}")
        if rd_: k("s_mov_b64 exec, s[50:51]")
    def e1_group(x, gp, e, b=None):
        for h in range(2):
            k(f"v_lshlrev_b32 v{T}, 16, v{x+h}\nv_and_b32 v{T+1}, 0xffff0000, v{x+h}")
            k(pk("mul", T+2, T, DR+2*h))
            k(pk("mul", T, gp, T if b is None else b+2*h, sa=1))
            k(f"""
            v_cvt_pk_bf16_f32 v{T+2}, v{T+2}, v{T+3}
            v_cvt_pk_bf16_f32 v{T}, v{T}, v{T+1}
            v_and_b32 v{T+3}, 0xffff0000, v{T+2}
            v_lshlrev_b32 v{T+2}, 16, v{T+2}
            v_and_b32 v{T+1}, 0xffff0000, v{T}
            v_lshlrev_b32 v{T}, 16, v{T}
            """)
            k(pk("fma", e+2*h, gp, T+2, T, sa=0))
    YP = 20
    TX, TG, TE, TR_ = 160, 162, 164, 168
    for i in range(13):
        stage(i + 3)
        lg = ""
        if i == 1: act_round(0)
        if i == 2: act_round(1); lg = "lgkmcnt(0)"
        if i == 3:
            AF, BF, D = 20, 48, 76
            k(f"""
            v_mul_u32_u24 v8, {ACT_ROW}, v4
            v_lshl_add_u32 v8, v6, 4, v8
            v_add_u32 v8, {L_ACT}, v8
            v_bfe_u32 v5, v1, 2, 2
            v_lshl_add_u32 v5, v6, 3, v5
            v_lshlrev_b32 v5, 7, v5
            v_and_b32 v14, 3, v1
            v_lshl_add_u32 v5, v14, 3, v5
            s_lshl_b32 s33, s30, 5
            s_add_u32 s33, s33, {L_WD}
            v_add_u32 v5, s33, v5
            """)
            for s in range(7):
                k(f"ds_read_b128 v[{BF+4*s}:{BF+4*s+3}], v8 offset:{64*s}")
                for hh in range(2): k(f"ds_read_b64_tr_b16 v[{AF+4*s+2*hh}:{AF+4*s+2*hh+1}], v5 offset:{(32*s+4*hh)*128}")
            for s in range(7):
                k(f"s_waitcnt lgkmcnt({min(15, 3*(6-s))})")
                k(f"v_mfma_f32_16x16x32_bf16 v[{D}:{D+3}], v[{AF+4*s}:{AF+4*s+3}], v[{BF+4*s}:{BF+4*s+3}], {'0' if s == 0 else f'v[{D}:{D+3}]'}")
            k(f"""
            v_lshlrev_b32 v8, 17, v7
            v_lshl_add_u32 v8, v6, 5, v8
            s_lshl_b32 s33, s27, 13
            s_lshl_b32 s34, s26, 9
            s_add_u32 s33, s33, s34
            s_lshl_b32 s34, s30, 7
            s_add_u32 s33, s33, s34
            s_add_u32 s33, s33, {WS_YP}
            v_mov_b32 v21, s80
            v_mov_b32 v23, s80
            v_mov_b32 v25, s80
            v_mov_b32 v27, s80
            v_mov_b32 v20, v{D}
            v_mov_b32 v22, v{D+1}
            v_mov_b32 v24, v{D+2}
            v_mov_b32 v26, v{D+3}
            s_mov_b32 exec_lo, 0x00ff00ff
            s_mov_b32 exec_hi, 0x00ff00ff
            """)
            vm.issue("yp", f"buffer_store_dwordx4 v[20:23], v8, s[{WS}:{WS+3}], s33 offen sc1")
            vm.issue("yp", f"buffer_store_dwordx4 v[24:27], v8, s[{WS}:{WS+3}], s33 offen offset:16 sc1")
            k("s_mov_b64 exec, -1")
        if i == 4:
            k(f"""
            v_and_b32 v{DR+3}, 0xffff0000, v{DR+1}
            v_lshlrev_b32 v{DR+2}, 16, v{DR+1}
            v_and_b32 v{DR+1}, 0xffff0000, v{DR}
            v_lshlrev_b32 v{DR}, 16, v{DR}
            """)
        if 4 <= i < 8:
            for g_ in (2*(i-4), 2*(i-4)+1): e1_group(XR + 2*g_, GR + 2*g_, E1 + 4*g_)
        if i == 8:
            k("s_mov_b32 s33, 0")
            for j in range(8):
                k(f"s_sub_u32 s34, s{SEL+j}, s49\ns_lshl_b32 s35, 1, s34\ns_cmp_lt_u32 s34, 32\ns_cselect_b32 s35, s35, 0\ns_or_b32 s33, s33, s35")
            k("v_lshlrev_b32 v8, v6, 1")
            for g_ in range(8):
                k(f"s_lshr_b32 s34, s33, {4*g_}\nv_and_b32 v{170+g_}, s34, v8")
        if i == 9:
            k(f"""
            s_cmp_eq_u32 s30, 1
            s_cselect_b32 s{SEL}, s{SEL+1}, s{SEL}
            s_cselect_b32 s{SEL+4}, s{SEL+5}, s{SEL+4}
            s_cselect_b32 s{SEL+8}, s{SEL+9}, s{SEL+8}
            s_cselect_b32 s{SEL+12}, s{SEL+13}, s{SEL+12}
            s_cmp_eq_u32 s30, 2
            s_cselect_b32 s{SEL}, s{SEL+2}, s{SEL}
            s_cselect_b32 s{SEL+4}, s{SEL+6}, s{SEL+4}
            s_cselect_b32 s{SEL+8}, s{SEL+10}, s{SEL+8}
            s_cselect_b32 s{SEL+12}, s{SEL+14}, s{SEL+12}
            s_cmp_eq_u32 s30, 3
            s_cselect_b32 s{SEL}, s{SEL+3}, s{SEL}
            s_cselect_b32 s{SEL+4}, s{SEL+7}, s{SEL+4}
            s_cselect_b32 s{SEL+8}, s{SEL+11}, s{SEL+8}
            s_cselect_b32 s{SEL+12}, s{SEL+15}, s{SEL+12}
            v_mov_b32 v14, s{SEL}
            v_mov_b32 v{TR_}, s{SEL+8}
            s_mov_b32 exec_lo, 0
            v_mov_b32 v14, s{SEL+4}
            v_mov_b32 v{TR_}, s{SEL+12}
            s_mov_b32 exec_lo, -1
            v_subrev_u32 v15, s48, v14
            v_cmp_gt_u32 vcc, 0x80, v15
            s_mov_b64 s[52:53], vcc
            v_lshrrev_b32 v16, 5, v1
            v_lshlrev_b32 v16, 19, v16
            v_and_b32 v17, 1, v6
            v_lshl_add_u32 v16, v17, 12, v16
            v_lshl_add_u32 v16, v7, 5, v16
            v_cndmask_b32 v16, v2, v16, vcc
            v_lshl_add_u32 v17, v14, 11, v18
            v_cndmask_b32 v17, v2, v17, vcc          ; x address
            v_lshlrev_b32 v18, 3, v14
            v_cndmask_b32 v18, v2, v18, vcc
            v_mov_b32 v9, s80
            v_cndmask_b32 v9, 0, v9, vcc
            s_lshl_b32 s54, s30, 17
            s_lshl_b32 s55, s27, 13
            s_add_u32 s54, s54, s55
            s_add_u32 s54, s54, {WS_YP}
            s_lshl_b32 s55, s27, 7
            s_mov_b32 s56, {WS_GATE}
            """)
        vm.wait(f"st{i+1}", lg)
        k("s_barrier")
    def yloads(tag):
        for q in range(8):
            for h in range(2):
                r = YP + 8*q + 4*h
                t = f"buffer_load_dwordx4 v[{r}:{r+3}], v16, s[{WS}:{WS+3}], s54 offen offset:{q*512+h*16} sc1"
                if tag: vm.issue(tag, t)
                else: k(t)
    yloads("y")
    vm.issue("y", f"buffer_load_dwordx2 v[{TX}:{TX+1}], v17, s[{XS}:{XS+3}], s55 offen")
    vm.issue("y", f"buffer_load_dwordx2 v[{TG}:{TG+1}], v18, s[{WS}:{WS+3}], s56 offen")
    k(f"""
    v_lshlrev_b32 v10, 4, v7
    v_lshl_add_u32 v11, v14, 12, v10
    v_lshl_add_u32 v10, v6, 12, v10
    v_xor_b32 v12, v7, v6
    v_lshlrev_b32 v12, 4, v12
    v_lshl_add_u32 v12, v6, 8, v12
    s_lshl_b32 s33, s30, 13
    v_add_u32 v12, s33, v12
    v_xor_b32 v13, 64, v12
    v_and_b32 v8, 7, v15
    v_xor_b32 v8, v8, v7
    v_lshlrev_b32 v8, 4, v8
    v_and_b32 v5, 0x7f, v15
    v_lshl_add_u32 v8, v5, 8, v8
    s_lshl_b32 s57, s27, 8
    s_lshl_b32 s58, s49, 12
    s_add_u32 s58, s58, s57
    """)
    vm.wait("st14"); k("s_barrier")
    vm.wait("st15"); k("s_barrier")
    stamp(k, cfg, 1)
    k(f"s_mov_b32 s59, {SPIN}\nL2_ypoll:\ns_waitcnt vmcnt(0)\ns_cmp_eq_u64 s[52:53], 0\ns_cbranch_scc1 L2_notok")
    k(f"v_xor_b32 v{T}, v9, v{YP+1}")
    for q in range(1, 32): k(f"v_xor_b32 v{T+1}, v9, v{YP+2*q+1}\nv_or_b32 v{T}, v{T}, v{T+1}")
    k(f"v_cmp_ne_u32 vcc, 0, v{T}\ns_sub_u32 s59, s59, 1\ns_cbranch_scc1 L2_yok\ns_cbranch_vccz L2_yok")
    yloads(None)
    k("s_branch L2_ypoll\nL2_yok:")
    for x in range(4):
        for q in range(1, 8): k(f"v_add_f32 v{YP+2*x}, v{YP+2*x}, v{YP+8*q+2*x}")
    for x in range(4): k(f"v_mov_b32 v{YP+2*x+1}, v{YP+2*x}")
    for x in range(4): k(f"v_permlane16_swap_b32 v{YP+2*x}, v{YP+2*x+1}")
    for x in range(4): k(f"v_add_f32 v{YP+8+x}, v{YP+2*x}, v{YP+2*x+1}")
    Y = YP + 8
    for h in range(2):
        y = Y + 2*h
        k(f"""
        v_cvt_pk_bf16_f32 v{y}, v{y}, v{y+1}
        v_and_b32 v{y+1}, 0xffff0000, v{y}
        v_lshlrev_b32 v{y}, 16, v{y}
        v_mul_f32 v{y}, v{y}, v{TR_}
        v_mul_f32 v{y+1}, v{y+1}, v{TR_}
        v_cvt_pk_bf16_f32 v{y}, v{y}, v{y+1}
        v_and_b32 v{y+1}, 0xffff0000, v{y}
        v_lshlrev_b32 v{y}, 16, v{y}
        v_lshlrev_b32 v{T}, 16, v{TX+h}
        v_and_b32 v{T+1}, 0xffff0000, v{TX+h}
        """)
        k(pk("add", y, y, T))
        k(f"v_cvt_pk_bf16_f32 v{y}, v{y}, v{y+1}\nv_and_b32 v{y+1}, 0xffff0000, v{y}\nv_lshlrev_b32 v{y}, 16, v{y}")
    e1_group(TX, TG, TE, b=Y)
    k("L2_notok:")
    stamp(k, cfg, 2)
    k("s_barrier")
    A = 20
    for g_ in range(8): k(f"ds_read_b128 v[{A+4*g_}:{A+4*g_+3}], v{12 + (g_ & 1)} offset:{g_*1024}")
    k(f"ds_read_b128 v[{A+32}:{A+35}], v8")
    for g_ in range(8):
        k(f"v_cmp_eq_u32 vcc, 0, v{170+g_}\ns_waitcnt lgkmcnt({8-g_})")
        for h in range(2): k(pk("fma", A+4*g_+2*h, GR+2*g_, A+4*g_+2*h, E1+4*g_+2*h, sa=0))
        k(f"s_mov_b64 exec, vcc\nbuffer_store_dwordx4 v[{A+4*g_}:{A+4*g_+3}], v10, s[{OS}:{OS+3}], s58 offen\ns_mov_b64 exec, -1\ns_add_u32 s58, s58, 16384")
    k(f"s_waitcnt lgkmcnt(0)")
    for h in range(2): k(pk("fma", A+32+2*h, TG, A+32+2*h, TE+2*h, sa=0))
    k(f"""
    s_and_b32 exec_lo, s52, 0xffff
    s_and_b32 exec_hi, s53, 0xffff
    s_cbranch_execz L2_aend
    buffer_store_dwordx4 v[{A+32}:{A+35}], v11, s[{OS}:{OS+3}], s57 offen
    L2_aend:
    """)
    stamp(k, cfg, 3)
    stamp_flush(k, cfg, 1)
    k("s_endpgm")
```

```python
NAME = "gated_mix__ssm_conv_s5__moe_arch_mod__prompt"
KA = dict(x=0, lam_re=8, lam_im=16, b_re=24, b_im=32, c_re=40, c_im=48, log_dt=56, dskip=64,
          bx=72, w_r=80, w_gate=88, w_up=96, w_down=104, gate_w=112, out=120, dbg=128, ws=136)
SZ = dict(x=2048*1024*2, lam_re=2048, lam_im=2048, b_re=1024*1024*2, b_im=1024*1024*2, c_re=1024*1024*2,
          c_im=1024*1024*2, log_dt=2048, dskip=2048, bx=2048*1024*2, w_r=2048, w_gate=1024*3584*2,
          w_up=1024*3584*2, w_down=1024*3584*2, gate_w=2048, out=2048*1024*4, dbg=256, ws=268435456)

HEADER = """; Kernarg layout for this problem (144 bytes, ptrs only, base s[0:1]):
"""

class Kern:
    def __init__(self, name, grid, block, lds, vgpr, sgpr=102, agpr=0):
        self.name, self.grid, self.block, self.lds = name, grid, block, lds
        self.vgpr, self.sgpr, self.agpr = vgpr, sgpr, agpr
        self.lines = []
        self.nlab = 0
    def __call__(self, s=""):
        for l in s.split("\n"):
            l = l.strip()
            if not l: continue
            if l.endswith(":"): self.lines.append(l)
            else: self.lines.append("    " + l)
    def label(self, base):
        self.nlab += 1
        return f"L_{self.name[:2]}{self.name[-9:-7]}_{base}_{self.nlab}"
    def text(self):
        return f".globl {self.name}\n.p2align 8\n.type {self.name},@function\n{self.name}:\n" + "\n".join(self.lines) + "\n"
    def desc(self):
        acc = (self.vgpr + 3) // 4 * 4
        nfv = acc + self.agpr if self.agpr else self.vgpr
        return f""".p2align 6
.amdhsa_kernel {self.name}
  .amdhsa_next_free_vgpr {nfv}
  .amdhsa_next_free_sgpr {self.sgpr}
  .amdhsa_accum_offset {acc}
  .amdhsa_group_segment_fixed_size 0
  .amdhsa_kernarg_size 144
  .amdhsa_user_sgpr_count 2
  .amdhsa_user_sgpr_kernarg_segment_ptr 1
  .amdhsa_system_sgpr_workgroup_id_x 1
  .amdhsa_float_denorm_mode_32 3
.end_amdhsa_kernel
"""
    def launch_line(self):
        g, b = self.grid, self.block
        return f"; @launch kernel={self.name} grid=({g},1,1) block=({b},1,1) lds={self.lds}\n"

def make_file(kerns, order=None, notes=""):
    order = order or kerns
    s = HEADER + notes
    for k in order: s += k.launch_line()
    s += '.amdgcn_target "amdgcn-amd-amdhsa--gfx950"\n.text\n'
    for k in kerns: s += k.text()
    s += '.section .rodata,"a"\n'
    for k in kerns: s += k.desc()
    return s

def srd(k, s, ptr_s, size):
    if ptr_s != s:
        k(f"s_mov_b32 s{s}, s{ptr_s}\ns_mov_b32 s{s+1}, s{ptr_s+1}")
    k(f"s_mov_b32 s{s+2}, {size}\ns_mov_b32 s{s+3}, 0x20000")

def load_srd(k, s, name):
    k(f"s_load_dwordx2 s[{s}:{s+1}], s[0:1], {KA[name]}")
    k(f"s_mov_b32 s{s+2}, {SZ[name]}\ns_mov_b32 s{s+3}, 0x20000")

import re as _re
_TRANS = ("v_exp_f32", "v_log_f32", "v_rcp_f32", "v_rsq_f32", "v_sqrt_f32", "v_sin_f32", "v_cos_f32", "v_rcp_iflag_f32")
def _regs(tok):
    tok = tok.strip().lstrip("-").replace("abs(", "").replace(")", "").replace("|", "")
    m = _re.fullmatch(r"([vas])(\d+)", tok)
    if m: return {(m.group(1), int(m.group(2)))}
    m = _re.fullmatch(r"([vas])\[(\d+):(\d+)\]", tok)
    if m: return {(m.group(1), i) for i in range(int(m.group(2)), int(m.group(3)) + 1)}
    if tok == "vcc": return {("s", 106), ("s", 107)}
    if tok == "vcc_lo": return {("s", 106)}
    if tok == "vcc_hi": return {("s", 107)}
    if tok == "m0": return {("s", 124)}
    if tok == "exec": return {("s", 126), ("s", 127)}
    return set()
class _I:
    def __init__(self, line):
        s = line.split(";")[0].strip()
        self.label = s.endswith(":") or not s or s.startswith(".")
        self.mn = ""; self.d = set(); self.r = set(); self.ops = []
        if self.label: return
        parts = s.split(None, 1); mn = self.mn = parts[0]
        ops = [o.strip() for o in parts[1].split(",")] if len(parts) > 1 else []
        if ops:
            last = ops[-1].split()
            ops[-1] = last[0]; self.mods = " ".join(last[1:])
        else: self.mods = ""
        self.mods_all = s
        self.ops = ops
        R = [_regs(o) for o in ops]
        self.valu = mn.startswith("v_") and not mn.startswith("v_mfma")
        self.mfma = mn.startswith("v_mfma")
        self.vmem = mn.startswith(("buffer_", "global_"))
        self.ds = mn.startswith("ds_")
        self.salu = mn.startswith("s_")
        self.trans = mn.startswith(_TRANS)
        self.dpp = "row_" in s or "quad_perm" in s or "wave_" in s or mn.endswith("_dpp")
        self.perm = mn.startswith("v_permlane")
        self.lds_dma = self.vmem and (" lds" in s or "load_lds" in mn)
        if self.mfma:
            self.d = R[0]; self.a = R[1] | R[2]; self.c = R[3]; self.r = self.a | self.c
            self.passes = 8 if "32x32" in mn else 4
        elif self.valu:
            nd = 1
            if mn.startswith(("v_add_co", "v_sub_co", "v_addc_co", "v_subb_co", "v_subrev_co", "v_div_scale", "v_mad_u64")): nd = 2
            for x in R[:nd]: self.d |= x
            for x in R[nd:]: self.r |= x
            if mn.startswith(("v_fmac", "v_dot2c", "v_writelane", "v_pk_fmac")) or self.dpp: self.r |= R[0]
            if self.perm: self.d |= R[1]; self.r |= R[0]
            if mn.startswith("v_cmpx"): self.d |= _regs("exec")
            if mn.startswith("v_div_fmas"): self.r |= _regs("vcc")
        elif self.vmem:
            st = "store" in mn or "atomic" in mn
            if self.lds_dma:
                for x in R: self.r |= x
                self.r |= _regs("m0")
            elif mn.startswith("buffer_"):
                if mn.startswith(("buffer_wbl2", "buffer_inv")): pass
                elif st:
                    for x in R: self.r |= x
                    self.data = R[0]
                    if "atomic" in mn and "sc0" in s: self.d |= R[0]
                else:
                    self.d = R[0]
                    for x in R[1:]: self.r |= x
            else:
                if st:
                    for x in R: self.r |= x
                    self.data = R[1]
                else:
                    self.d = R[0]
                    for x in R[1:]: self.r |= x
            self.wide_store = st and ("x4" in mn or "x3" in mn)
        elif self.ds:
            if mn.startswith(("ds_read", "ds_bpermute", "ds_permute", "ds_swizzle")) or "_rtn" in mn:
                self.d = R[0]
                for x in R[1:]: self.r |= x
            else:
                for x in R: self.r |= x
        elif self.salu:
            if mn.startswith(("s_cmp", "s_cbranch", "s_branch", "s_waitcnt", "s_nop", "s_barrier", "s_endpgm", "s_setprio", "s_sleep", "s_bitcmp")):
                for x in R: self.r |= x
            else:
                self.d = R[0] if R else set()
                for x in R[1:]: self.r |= x
                if "saveexec" in mn: self.d |= _regs("exec")
    def states(self):
        if self.label: return 0
        if self.mn == "s_nop": return int(self.ops[0], 0) + 1
        return 1
def _need(p, c):
    n = 0
    vd = {x for x in p.d if x[0] != "s"}; sd = {x for x in p.d if x[0] == "s"}
    if p.valu:
        if vd & c.r:
            if c.mn.startswith(("v_readlane", "v_readfirstlane")): n = max(n, 1)
            if c.valu and (c.dpp or c.perm): n = max(n, 2)
            if c.mfma: n = max(n, 2)
            if p.trans and c.valu and not c.trans: n = max(n, 1)
        if sd & c.r:
            if c.valu: n = max(n, 4 if c.mn.startswith(("v_readlane", "v_writelane", "v_div_fmas")) else 2)
            if c.vmem: n = max(n, 5)
        if sd & _regs("exec"):
            if c.valu and (c.dpp or c.perm): n = max(n, 5)
            if c.mfma or c.mn.startswith(("v_readlane", "v_readfirstlane", "v_writelane")): n = max(n, 4)
    if p.mn.startswith("v_dot") and (vd & (c.r | c.d)):
        acc_only = c.mn == p.mn and not (vd & (_regs(c.ops[1]) | _regs(c.ops[2])))
        if not acc_only: n = max(n, 3)
    if p.mfma:
        big = 12 if p.passes == 8 else 8
        if c.mfma:
            if p.d & c.a: n = max(n, big)
            elif p.d & c.c and not (p.d == c.c and p.passes == c.passes): n = max(n, big - 2)
        elif (c.valu or c.vmem or c.ds) and (p.d & (c.r | c.d)): n = max(n, big)
        if c.valu and (p.c & c.d): n = max(n, 7 if p.passes == 8 else 3)
    if p.vmem and getattr(p, "wide_store", False) and (p.data & c.d): n = max(n, 2 if c.valu else 1)
    if p.salu and ("s", 124) in p.d and c.lds_dma: n = max(n, 1)
    return n
def fix_hazards(lines, verbose=False):
    out = []; hist = []
    for line in lines:
        i = _I(line)
        if not i.label:
            dist = 0; pad = 0
            for p in reversed(hist):
                if dist >= 12: break
                nd = _need(p, i)
                if nd > dist: pad = max(pad, nd - dist)
                dist += p.states()
            if pad:
                l = f"    s_nop {pad-1}"
                out.append(l); hist.append(_I(l))
                if verbose: print("pad", pad, "before", line.strip())
            hist.append(i)
            if len(hist) > 40: hist = hist[-20:]
        out.append(line)
    return out

class VM:
    def __init__(self, k): self.k = k; self.q = []
    def issue(self, tag, text=None):
        if text: self.k(text)
        self.q.append(tag)
    def count_after(self, tag):
        idx = max(i for i, t in enumerate(self.q) if t == tag)
        return len(self.q) - 1 - idx
    def wait(self, tag, extra=""):
        if tag not in self.q:
            if extra: self.k(f"s_waitcnt {extra}")
            return
        n = self.count_after(tag)
        assert n <= 63, n
        self.k(f"s_waitcnt vmcnt({n}) {extra}".strip())
        self.q = self.q[len(self.q) - n:] if n else []
```

```python
import sys, os, json
ROOT = os.path.dirname(os.path.dirname(os.path.abspath(__file__)))
sys.path.insert(0, ROOT + "/tools"); sys.path.insert(0, ROOT + "/src")
from asmgen import *
from k1 import gen_k1
def build(cfg):
    ks = [gen_k1(cfg)]
    if not cfg.get("k1only"):
        from k2 import gen_k2
        ks.append(gen_k2(cfg))
    return make_file(ks)
if __name__ == "__main__":
    out = sys.argv[1]
    cfg = json.loads(sys.argv[2]) if len(sys.argv) > 2 else {}
    open(out, "w").write(build(cfg))
```

```python
import sys, os, json
ROOT = os.path.dirname(os.path.dirname(os.path.abspath(__file__)))
sys.path.insert(0, ROOT + "/tools"); sys.path.insert(0, ROOT + "/src")
from asmgen import *
from k1 import gen_k1
def build(cfg):
    ks = [gen_k1(cfg)]
    if not cfg.get("k1only"):
        from k2 import gen_k2
        ks.append(gen_k2(cfg))
    order = list(ks)
    if cfg.get("empty"):
        e = Kern("e0_kernel", cfg.get("empty_grid", 1), 64, 0, 8, 16); e("s_endpgm")
        ks.append(e)
        for pos in cfg["empty"]: order.insert(pos, e)
    return make_file(ks, order)
if __name__ == "__main__":
    out = sys.argv[1]
    cfg = json.loads(sys.argv[2]) if len(sys.argv) > 2 else {}
    open(out, "w").write(build(cfg))
```

```python
from asmgen import *
from layout import *

LOG2E = 0x3fb8aa3b
INV2PI = 0x3e22f983
XB = 131072
L_FLAG, L_CNT, L_NONCE, L_CAND, L_EX, L_GU = XB, XB + 16, XB + 20, XB + 256, XB + 1024, XB + 8192
L_TR = 65536
L_WG, L_WU = 0, 32768
SPIN = 1 << 20

def pk(op, d, a, b, c=None, sa=None, sb=None, sc=None, na=0, nb=0, nc=0):
    srcs = [(a, sa, na), (b, sb, nb)] + ([(c, sc, nc)] if c is not None else [])
    if sa not in (1, 'x') and sb in (1, 'x'): srcs[0], srcs[1] = srcs[1], srcs[0]
    lo = [{None: 0, 0: 0, 1: 1, 'x': 1}[s] for _, s, _ in srcs]
    hi = [{None: 1, 0: 0, 1: 1, 'x': 0}[s] for _, s, _ in srcs]
    nl = [n & 1 for _, _, n in srcs]; nh = [n >> 1 for _, _, n in srcs]
    t = f"v_pk_{op}_f32 v[{d}:{d+1}], " + ", ".join(f"v[{r}:{r+1}]" for r, _, _ in srcs)
    f = lambda x: "[" + ",".join(map(str, x)) + "]"
    if any(lo): t += f" op_sel:{f(lo)}"
    if not all(hi): t += f" op_sel_hi:{f(hi)}"
    if any(nl): t += f" neg_lo:{f(nl)}"
    if any(nh): t += f" neg_hi:{f(nh)}"
    return t

def csq(k, dr, di, ar, ai, t):
    k(pk("mul", t, ar, ai)); k(pk("mul", dr, ar, ar)); k(pk("fma", dr, ai, ai, dr, na=3)); k(pk("add", di, t, t))
def cmul_cb(k, dr, di, ar, ai, br, bi):
    k(pk("mul", dr, ar, br)); k(pk("mul", di, ar, bi)); k(pk("fma", dr, ai, bi, dr, na=3)); k(pk("fma", di, ai, br, di))
def cfma_ri(k, d, cr, ci, cb, h, g, t):
    k(pk("fma", t, cr, h, g, sa=cb)); k(pk("fma", d, ci, h, t, sa=cb, sb='x', nb=1))

def wg_coords(k):
    k("""
    s_and_b32 s24, s2, 7
    s_lshr_b32 s25, s2, 3
    s_lshr_b32 s26, s25, 3
    s_lshl_b32 s26, s26, 2
    s_lshr_b32 s27, s24, 1
    s_add_u32 s26, s26, s27
    s_and_b32 s27, s24, 1
    s_lshl_b32 s27, s27, 3
    s_and_b32 s28, s25, 7
    s_add_u32 s27, s27, s28
    """)

ROT = {
    "none": "s_mov_b32 s61, 0",
    "cn": "s_add_u32 s61, s26, s27",
    "q": "s_lshr_b32 s61, s25, 3\ns_lshl_b32 s61, s61, 1\ns_add_u32 s61, s61, s28\ns_lshl_b32 s61, s61, 1",
    "x": "s_lshl_b32 s61, s24, 1",
    "qx": "s_lshr_b32 s61, s25, 3\ns_lshl_b32 s61, s61, 1\ns_add_u32 s61, s61, s28\ns_lshl_b32 s61, s61, 1\ns_lshr_b32 s62, s24, 1\ns_add_u32 s61, s61, s62\ns_and_b32 s62, s24, 1\ns_add_u32 s61, s61, s62",
    "c4": "s_lshr_b32 s61, s25, 3\ns_lshl_b32 s61, s61, 2",
    "n2": "s_lshl_b32 s61, s28, 1",
    "h8": "s_and_b32 s61, s25, 1\ns_lshl_b32 s61, s61, 3",
}

def add_base(k, s, off):
    k(f"s_add_u32 s{s}, s{s}, {off}\ns_addc_u32 s{s+1}, s{s+1}, 0")

def wave_max(k, v, t, sdst):
    k(f"v_mov_b32 v{t}, v{v}")
    for m in ("row_shr:1", "row_shr:2", "row_shr:4", "row_shr:8"):
        k(f"v_max_u32_dpp v{t}, v{t}, v{t} {m} row_mask:0xf bank_mask:0xf")
    k(f"v_max_u32_dpp v{t}, v{t}, v{t} row_bcast:15 row_mask:0xa bank_mask:0xf")
    k(f"v_max_u32_dpp v{t}, v{t}, v{t} row_bcast:31 row_mask:0xc bank_mask:0xf")
    k(f"v_readlane_b32 s{sdst}, v{t}, 63")

def wave_sum(k, regs):
    for m, rm in (("row_shr:1", 0xf), ("row_shr:2", 0xf), ("row_shr:4", 0xf), ("row_shr:8", 0xf), ("row_bcast:15", 0xa), ("row_bcast:31", 0xc)):
        for v in regs:
            k(f"v_add_f32_dpp v{v}, v{v}, v{v} {m} row_mask:{rm:#x} bank_mask:0xf")

def sigmoid_bf16(k, d, x, t):
    k(f"""
    v_mul_f32 v{t}, {LOG2E ^ 0x80000000:#x}, v{x}
    v_exp_f32 v{t}, v{t}
    v_add_f32 v{t}, 1.0, v{t}
    v_rcp_f32 v{t}, v{t}
    v_cvt_pk_bf16_f32 v{d}, v{t}, v{t}
    v_lshlrev_b32 v{d}, 16, v{d}
    """)

def gen_k1(cfg):
    k = Kern("k1_kernel", 256, 512, 163840, 200)
    st = cfg.get("stamps")
    if st: k("s_memrealtime s[90:91]\ns_memtime s[88:89]\nv_mov_b32 v199, 0")
    k("s_cmp_ge_u32 s2, 256\ns_cbranch_scc1 L1_end")
    k("v_lshrrev_b32 v2, 6, v0\nv_and_b32 v1, 63, v0\ns_nop 0\nv_readfirstlane_b32 s29, v2")
    wg_coords(k)
    k("s_cmp_lt_u32 s29, 4\ns_cbranch_scc1 L1_compute")
    loader(k, cfg)
    k("L1_compute:")
    compute(k, cfg)
    k("L1_end:\ns_endpgm")
    k.lines = fix_hazards(k.lines)
    return k

def stamp(k, cfg, i, cond="s_waitcnt lgkmcnt(0)"):
    if not cfg.get("stamps"): return
    k(f"s_memrealtime s[92:93]\ns_memtime s[94:95]\ns_waitcnt lgkmcnt(0)\nv_writelane_b32 v199, s92, {i}\nv_writelane_b32 v199, s94, {32+i}")
def stamp_loop(k, cfg, base, sreg):
    if not cfg.get("lstamps"): return
    k(f"""s_memrealtime s[92:93]
    s_memtime s[94:95]
    s_add_u32 s96, s{sreg}, {base}
    s_add_u32 s97, s96, 32
    v_cmp_eq_u32 s[98:99], s96, v1
    v_cmp_eq_u32 s[100:101], s97, v1
    s_waitcnt lgkmcnt(0)
    v_mov_b32 v197, s92
    v_mov_b32 v198, s94
    v_cndmask_b32 v199, v199, v197, s[98:99]
    v_cndmask_b32 v199, v199, v198, s[100:101]""")
def stamp_flush(k, cfg, which):
    if not cfg.get("stamps"): return
    k(f"""
    s_load_dwordx2 s[92:93], s[0:1], {KA['ws']}
    s_mov_b32 s94, {SZ['ws']}
    s_mov_b32 s95, 0x20000
    v_writelane_b32 v199, s90, 31
    v_writelane_b32 v199, s88, 63
    s_lshl_b32 s96, s2, 11
    s_lshl_b32 s97, s29, 8
    s_add_u32 s96, s96, s97
    s_add_u32 s96, s96, {WS_STAMP + which * 0x80000}
    s_mov_b64 exec, -1
    v_mbcnt_lo_u32_b32 v198, -1, 0
    v_mbcnt_hi_u32_b32 v198, -1, v198
    v_lshlrev_b32 v198, 2, v198
    s_waitcnt lgkmcnt(0)
    buffer_store_dword v199, v198, s[92:95], s96 offen
    """)

def loader(k, cfg):
    vm = VM(k)
    XS, BS, WS, RS, GS, DS, WGS, WUS, XF = 8, 12, 16, 36, 40, 44, 48, 52, 56
    k(f"""
    s_load_dwordx2 s[{XF}:{XF+1}], s[0:1], {KA['x']}
    s_load_dwordx4 s[{BS}:{BS+3}], s[0:1], {KA['b_re']}
    s_load_dwordx2 s[{RS}:{RS+1}], s[0:1], {KA['w_r']}
    s_load_dwordx2 s[{GS}:{GS+1}], s[0:1], {KA['gate_w']}
    s_load_dwordx2 s[{WS}:{WS+1}], s[0:1], {KA['ws']}
    s_load_dwordx2 s[{DS}:{DS+1}], s[0:1], {KA['dbg']}
    s_load_dwordx2 s[{WGS}:{WGS+1}], s[0:1], {KA['w_gate']}
    s_load_dwordx2 s[{WUS}:{WUS+1}], s[0:1], {KA['w_up']}
    s_and_b32 s30, s29, 3
    v_lshrrev_b32 v3, 3, v1      ; r3
    v_and_b32 v4, 7, v1
    v_lshrrev_b32 v5, 1, v3
    v_xor_b32 v4, v4, v5
    v_lshlrev_b32 v4, 4, v4
    v_lshl_add_u32 v14, v3, 11, v4   ; B piece 0
    v_xor_b32 v15, 64, v14
    v_add_u32 v16, {2*15360}, v14
    v_add_u32 v17, {3*15360}, v15
    v_add_u32 v15, {15360}, v15
    v_lshrrev_b32 v6, 2, v3
    v_lshlrev_b32 v6, 4, v6
    v_and_b32 v7, 1, v3
    v_lshl_add_u32 v6, v7, 3, v6
    v_and_b32 v7, 1, v5
    v_add_u32 v6, v6, v7         ; tl
    v_lshl_add_u32 v10, v6, 11, v4   ; A piece 0
    v_xor_b32 v11, 64, v10
    v_add_u32 v12, {2*2048-2048}, v10
    v_add_u32 v13, {34*2048-3072}, v11
    v_add_u32 v11, {32*2048-1024}, v11
    s_lshr_b32 s31, s30, 1       ; w>>1
    s_and_b32 s32, s30, 1        ; w&1
    s_lshl_b32 s33, s26, 7
    s_lshl_b32 s34, s31, 6
    s_add_u32 s33, s33, s34
    s_lshl_b32 s34, s32, 2
    s_add_u32 s33, s33, s34
    s_lshl_b32 s33, s33, 11
    s_lshl_b32 s34, s27, 6
    s_lshl_b32 s35, s31, 5
    s_add_u32 s34, s34, s35
    s_lshl_b32 s34, s34, 11
    s_lshl_b32 s60, s30, 12
    """)
    k(ROT[cfg.get("rot1", "cn")])
    k(f"""
    s_and_b32 s61, s61, 15
    s_lshl_b32 s61, s61, 7
    s_cmp_eq_u32 s32, 1
    s_waitcnt lgkmcnt(0)
    s_cselect_b32 s{BS}, s{BS+2}, s{BS}
    s_cselect_b32 s{BS+1}, s{BS+3}, s{BS+1}
    s_add_u32 s{BS}, s{BS}, s34
    s_addc_u32 s{BS+1}, s{BS+1}, 0
    s_sub_u32 s{BS+2}, {SZ['b_re']}, s34
    s_mov_b32 s{BS+3}, 0x20000
    s_add_u32 s{XS}, s{XF}, s33
    s_addc_u32 s{XS+1}, s{XF+1}, 0
    s_sub_u32 s{XS+2}, {SZ['x']}, s33
    s_mov_b32 s{XS+3}, 0x20000
    """)
    def stage(i):
        slot = (i % 4) * 32768
        k(f"s_add_u32 m0, s60, {slot}")
        for j in range(4): vm.issue(f"st{i}", f"buffer_load_dwordx4 v{10+j}, s[{XS}:{XS+3}], s61 offen offset:{j*1024} lds")
        k(f"s_add_u32 m0, s60, {slot + 16384}")
        for j in range(4): vm.issue(f"st{i}", f"buffer_load_dwordx4 v{14+j}, s[{BS}:{BS+3}], s61 offen offset:{j*1024} lds")
        if i < 15: k("s_add_u32 s61, s61, 128\ns_and_b32 s61, s61, 2047")
    stamp(k, cfg, 10)
    stage(0)
    stage(1)
    stamp(k, cfg, 11)
    k(f"""
    v_mov_b32 v9, 0
    v_mov_b32 v8, 0
    v_mov_b32 v7, {L_FLAG}
    ds_write_b64 v7, v[8:9]
    ds_write_b64 v7, v[8:9] offset:8
    ds_write_b32 v7, v9 offset:16
    """)
    for s, nm in ((XF, 'x'), (RS, 'w_r'), (GS, 'gate_w'), (WS, 'ws'), (DS, 'dbg'), (WGS, 'w_gate'), (WUS, 'w_up')):
        k(f"s_mov_b32 s{s+2}, {SZ[nm]}\ns_mov_b32 s{s+3}, 0x20000")
    X0, WR, GW = 20, 36, 44
    k(f"""
    s_lshl_b32 s62, s26, 7
    s_lshl_b32 s63, s27, 3
    s_add_u32 s62, s62, s63
    s_lshl_b32 s63, s30, 1
    s_add_u32 s62, s62, s63      ; s62 = t0
    s_lshl_b32 s63, s62, 11
    v_lshlrev_b32 v18, 4, v1
    """)
    def router_loads():
        for r in range(2):
            for h in range(2):
                vm.issue("rt", f"buffer_load_dwordx4 v[{X0+8*r+4*h}:{X0+8*r+4*h+3}], v18, s[{XF}:{XF+3}], s63 offen offset:{r*2048+h*1024}")
        for h in range(2):
            vm.issue("rt", f"buffer_load_dwordx4 v[{WR+4*h}:{WR+4*h+3}], v18, s[{RS}:{RS+3}], 0 offen offset:{h*1024}")
            vm.issue("rt", f"buffer_load_dwordx4 v[{GW+4*h}:{GW+4*h+3}], v18, s[{GS}:{GS+3}], 0 offen offset:{h*1024}")
    k(f"""
    s_or_b32 s64, s2, s30
    s_cmp_lg_u32 s64, 0
    s_cbranch_scc1 L1_notag
    s_load_dword s64, s[{WS}:{WS+1}], {WS_G}
    s_waitcnt lgkmcnt(0)
    s_mul_i32 s64, s64, 1664525
    s_add_u32 s64, s64, 1013904223
    s_cmp_eq_u32 s64, 0
    s_cselect_b32 s64, 1013904223, s64
    v_mov_b32 v19, s64
    s_mov_b64 exec, 1
    buffer_store_dword v19, v9, s[{WS}:{WS+3}], 0 offen offset:{WS_G} sc1
    buffer_store_dword v19, v9, s[{DS}:{DS+3}], 0 offen sc1
    s_mov_b64 exec, -1
    L1_notag:
    """)
    vm.wait("st0", "lgkmcnt(0)")
    stamp(k, cfg, 0)
    k("s_barrier")
    GL, GH, AR, AZ, T0 = 52, 60, 68, 70, 72
    def router_row(r):
        k(f"v_mov_b32 v{AR+r}, 0\nv_mov_b32 v{AZ+r}, 0")
        for i in range(8):
            x = X0 + 8*r + i; a, b = T0 + 2*(i & 1), T0 + 2*(i & 1) + 1
            k(f"""
            v_dot2_f32_bf16 v{a}, v{x}, v{GL+i}, 0
            v_dot2_f32_bf16 v{b}, v{x}, v{GH+i}, 0
            v_dot2c_f32_bf16 v{AR+r}, v{x}, v{WR+i}
            v_cvt_pk_bf16_f32 v{a}, v{a}, v{b}
            v_lshlrev_b32 v{b}, 16, v{a}
            v_and_b32 v{a}, 0xffff0000, v{a}
            v_add_f32 v{AZ+r}, v{AZ+r}, v{b}
            v_add_f32 v{AZ+r}, v{AZ+r}, v{a}
            """)
    KEY = 80
    R0 = cfg.get("rslot", 4)
    for i in range(13):
        if i == 0: stage(2)
        stage(i + 3)
        if i == R0 - 2:
            router_loads()
            vm.issue("tag", f"buffer_load_dword v19, v9, s[{DS}:{DS+3}], 0 offen sc1")
        if i == R0 + 1:
            vm.wait("tag")
            for q in range(8): k(f"v_and_b32 v{GL+q}, 0xffff, v{GW+q}\nv_and_b32 v{GH+q}, 0xffff0000, v{GW+q}")
            router_row(0)
        if i == R0 + 2:
            router_row(1)
        if i == R0 + 3:
            k("s_nop 2")
            wave_sum(k, [AR, AR+1, AZ, AZ+1])
            k(f"""
            v_readlane_b32 s66, v{AR+1}, 63
            v_readlane_b32 s67, v{AZ+1}, 63
            v_writelane_b32 v{AR}, s66, 62
            v_writelane_b32 v{AZ}, s67, 62
            v_cvt_pk_bf16_f32 v{AR}, v{AR}, v{AZ}
            v_and_b32 v{AZ}, 0xffff0000, v{AR}
            v_lshlrev_b32 v{AR}, 16, v{AR}
            v_ashrrev_i32 v{T0}, 31, v{AR}
            v_or_b32 v{T0}, 0x80000000, v{T0}
            v_xor_b32 v{T0}, v{T0}, v{AR}
            v_and_b32 v{T0}, 0xffff0000, v{T0}
            v_sub_u32 v{T0+2}, 63, v1
            v_add_u32 v{T0+2}, s62, v{T0+2}
            v_sub_u32 v{T0+1}, 2047, v{T0+2}
            v_or_b32 v{T0}, v{T0}, v{T0+1}           ; key
            v_lshlrev_b32 v{T0+2}, 3, v{T0+2}
            """)
            sigmoid_bf16(k, T0+4, AZ, T0+3)
            k(f"""
            v_sub_f32 v{T0+5}, 1.0, v{T0+4}
            v_cvt_pk_bf16_f32 v{T0+5}, v{T0+5}, v{T0+5}
            v_lshlrev_b32 v{T0+5}, 16, v{T0+5}
            """)
        if i == R0 + 4:
            k(f"""
            s_mov_b32 s68, {SPIN}
            L1_tagpoll:
            v_readfirstlane_b32 s65, v19
            s_sub_u32 s68, s68, 1
            s_cbranch_scc1 L1_tagok
            s_cmp_lg_u32 s65, 0
            s_cbranch_scc1 L1_tagok
            buffer_load_dword v19, v9, s[{DS}:{DS+3}], 0 offen sc1
            s_waitcnt vmcnt(0)
            s_branch L1_tagpoll
            L1_tagok:
            v_mov_b32 v{T0+1}, s65
            ds_write_b32 v7, v{T0+1} offset:20
            s_mov_b32 exec_lo, 0
            s_mov_b32 exec_hi, 0xc0000000
            s_mov_b32 s66, {WS_RKEY}
            s_mov_b32 s67, {WS_GATE}
            """)
            vm.issue("pub", f"buffer_store_dwordx2 v[{T0}:{T0+1}], v{T0+2}, s[{WS}:{WS+3}], s66 offen sc1")
            vm.issue("pub", f"buffer_store_dwordx2 v[{T0+4}:{T0+5}], v{T0+2}, s[{WS}:{WS+3}], s67 offen")
            k("s_mov_b64 exec, -1")
        if i == 12:
            k(f"s_lshl_b32 s66, s30, 12\ns_add_u32 s66, s66, {WS_RKEY}")
            for q in range(4):
                vm.issue("keys", f"buffer_load_dwordx4 v[{KEY+4*q}:{KEY+4*q+3}], v18, s[{WS}:{WS+3}], s66 offen offset:{q*1024} sc1")
        if cfg.get("lstamps"): stamp(k, cfg, 12 + i)
        vm.wait(f"st{i+1}", "lgkmcnt(0)" if i == R0 + 4 else "")
        k("s_barrier")
    NT = " nt" if cfg.get("ntw") else ""
    k(f"""
    s_mul_i32 s70, s24, 7
    s_lshr_b32 s71, s25, 2
    s_add_u32 s70, s70, s71
    s_lshl_b32 s70, s70, 2
    s_and_b32 s71, s25, 3
    s_add_u32 s70, s70, s71
    s_lshl_b32 s70, s70, 5                        ; 2 f0
    s_lshl_b32 s72, s30, 8                        ; k0 = 256 w
    s_mul_i32 s73, s72, 7168
    s_add_u32 s73, s73, s70
    s_cmp_ge_u32 s25, 28
    s_cselect_b32 s{WGS+2}, 0, s{WGS+2}
    s_cselect_b32 s{WUS+2}, 0, s{WUS+2}
    v_lshrrev_b32 v10, 1, v1
    v_mul_u32_u24 v10, 7168, v10
    v_and_b32 v11, 1, v1
    v_lshl_add_u32 v10, v11, 4, v10
    s_lshl_b32 s75, s30, 13
    """)
    def wdma(tag, srd, base):
        for j in range(8):
            k(f"s_add_u32 m0, s75, {base + j*1024}\ns_add_u32 s74, s73, {j*32*7168}")
            vm.issue(tag, f"buffer_load_dwordx4 v10, s[{srd}:{srd+3}], s74 offen{NT} lds")
    wdma("wg", WGS, L_WG)
    vm.wait("keys")
    k(f"s_mov_b32 s68, {SPIN}\nL1_keypoll:")
    k(f"v_xor_b32 v20, s65, v{KEY+1}")
    for q in range(1, 8): k(f"v_xor_b32 v21, s65, v{KEY+2*q+1}\nv_or_b32 v20, v20, v21")
    k(f"""
    v_cmp_ne_u32 vcc, 0, v20
    s_sub_u32 s68, s68, 1
    s_cbranch_scc1 L1_keyok
    s_cbranch_vccz L1_keyok
    """)
    for q in range(4):
        k(f"buffer_load_dwordx4 v[{KEY+4*q}:{KEY+4*q+3}], v18, s[{WS}:{WS+3}], s66 offen offset:{q*1024} sc1")
    k("s_waitcnt vmcnt(0)\ns_branch L1_keypoll\nL1_keyok:")
    def top8(nk, src, dst):
        k("s_mov_b32 s76, 0\ns_mov_b32 s78, 0x01010101\ns_mov_b32 s79, 0x01010101\ns_mov_b32 s80, 8")
        L = k.label("top")
        k(f"{L}:")
        for i in range(nk): k(f"v_subrev_u32 v{22+i}, s76, v{src(i)}")
        if nk == 8:
            k("v_max3_u32 v22, v22, v23, v24\nv_max3_u32 v25, v25, v26, v27\nv_max3_u32 v22, v22, v28, v29\nv_max_u32 v22, v22, v25")
        wave_max(k, 22, 23, 77)
        k(f"""
        s_add_u32 s76, s76, s77
        s_mov_b64 exec, s[78:79]
        v_mov_b32 v{dst}, s76
        s_mov_b64 exec, -1
        s_lshl_b64 s[78:79], s[78:79], 1
        s_sub_u32 s80, s80, 1
        s_cmp_lg_u32 s80, 0
        s_cbranch_scc1 {L}
        """)
    top8(8, lambda i: KEY + 2*i, 30)
    k(f"""
    v_and_b32 v31, 7, v1
    s_lshl_b32 s76, s30, 5
    v_lshl_add_u32 v32, v31, 2, s76
    ds_write_b32 v32, v30 offset:{L_CAND - XB}
    """.replace("ds_write_b32 v32, v30 offset:%d" % (L_CAND - XB), "v_add_u32 v32, %d, v32\nds_write_b32 v32, v30" % L_CAND))
    vm.wait("st14", "lgkmcnt(0)")
    k("s_barrier")
    wdma("wu", WUS, L_WU)
    k(f"""
    v_and_b32 v32, 31, v1
    v_lshlrev_b32 v32, 2, v32
    v_add_u32 v32, {L_CAND}, v32
    ds_read_b32 v33, v32
    s_waitcnt lgkmcnt(0)
    """)
    vm.wait("st15")
    k("s_barrier")
    top8(1, lambda i: 33, 30)
    stamp(k, cfg, 1)
    k(f"""
    v_and_b32 v31, 0x7ff, v30
    v_sub_u32 v31, 2047, v31
    v_lshrrev_b32 v32, 4, v1
    v_lshlrev_b32 v32, 4, v32
    v_lshl_add_u32 v32, v31, 11, v32
    s_lshl_b32 s76, s72, 1
    """)
    XA = 36
    for s in range(8):
        vm.issue("xs", f"buffer_load_dwordx4 v[{XA+4*s}:{XA+4*s+3}], v32, s[{XF}:{XF+3}], s76 offen offset:{s*64}")
    k(f"""
    s_cmp_lg_u32 s2, 255
    s_cbranch_scc1 L1_nosel
    s_cmp_lg_u32 s30, 0
    s_cbranch_scc1 L1_nosel
    v_ashrrev_i32 v33, 31, v30
    v_not_b32 v33, v33
    v_or_b32 v33, 0x80000000, v33
    v_xor_b32 v33, v33, v30
    v_and_b32 v33, 0xffff0000, v33
    """)
    sigmoid_bf16(k, 34, 33, 35)
    k(f"""
    v_lshlrev_b32 v35, 2, v1
    s_mov_b64 exec, 0xff
    buffer_store_dword v31, v35, s[{WS}:{WS+3}], 0 offen offset:{WS_SEL}
    buffer_store_dword v34, v35, s[{WS}:{WS+3}], 0 offen offset:{WS_SEL+32}
    s_endpgm
    L1_nosel:
    s_cmp_ge_u32 s25, 28
    s_cbranch_scc1 L1_lend
    """)
    k(f"""
    v_lshrrev_b32 v33, 4, v1
    v_bfe_u32 v34, v1, 2, 2
    v_lshl_add_u32 v33, v33, 3, v34
    v_lshlrev_b32 v33, 5, v33
    v_and_b32 v34, 3, v1
    v_lshl_add_u32 v33, v34, 3, v33
    v_add_u32 v33, s75, v33
    """)
    D = 96; FB = 128
    for mat, tag, base in ((0, "wg", L_WG), (1, "wu", L_WU)):
        vm.wait(tag)
        for s in range(8):
            for hh in range(2):
                b = FB + 32*mat + 4*s + 2*hh
                k(f"ds_read_b64_tr_b16 v[{b}:{b+1}], v33 offset:{base + (32*s+4*hh)*32}")
    vm.wait("xs")
    for mat in range(2):
        for s in range(8):
            if mat == 0 and s == 0: k("s_waitcnt lgkmcnt(15)")
            if mat == 1: k(f"s_waitcnt lgkmcnt({2*(7-s)})")
            b = FB + 32*mat + 4*s; d = D + 4*mat
            k(f"v_mfma_f32_16x16x32_bf16 v[{d}:{d+3}], v[{XA+4*s}:{XA+4*s+3}], v[{b}:{b+3}], {'0' if s == 0 else f'v[{d}:{d+3}]'}")
    k(f"""
    s_lshl_b32 s76, s30, 10
    v_lshl_add_u32 v34, v1, 4, s76
    v_add_u32 v34, {L_GU}, v34
    s_mov_b64 exec, 0xffffffff
    ds_write_b128 v34, v[{D}:{D+3}]
    ds_write_b128 v34, v[{D+4}:{D+7}] offset:512
    s_mov_b64 exec, 1
    v_mov_b32 v35, 1
    ds_add_rtn_u32 v35, v7, v35 offset:16
    s_mov_b64 exec, 0xffffffff
    s_waitcnt lgkmcnt(0)
    v_readfirstlane_b32 s76, v35
    s_cmp_lg_u32 s76, 3
    s_cbranch_scc1 L1_lend
    v_lshlrev_b32 v34, 4, v1
    v_add_u32 v34, {L_GU}, v34
    """)
    for w in range(4):
        for mat in range(2): k(f"ds_read_b128 v[{D+8*w+4*mat}:{D+8*w+4*mat+3}], v34 offset:{w*1024+mat*512}")
    k(f"""
    v_lshrrev_b32 v35, 4, v1
    v_mul_u32_u24 v35, {4*7168}, v35
    v_and_b32 v36, 15, v1
    v_lshl_add_u32 v35, v36, 1, v35
    s_add_u32 s76, s70, {WS_ACT}
    s_add_u32 s77, s76, 7168
    s_add_u32 s78, s76, {2*7168}
    s_add_u32 s79, s76, {3*7168}
    s_waitcnt lgkmcnt(0)
    """)
    T = 40
    for h in range(2):
        g, u = D + 2*h, D + 4 + 2*h
        for a in (g, u):
            k(pk("add", a, a, a+8)); k(pk("add", a+16, a+16, a+24)); k(pk("add", a, a, a+16))
        k(f"""
        v_cvt_pk_bf16_f32 v{T}, v{g}, v{g+1}
        v_cvt_pk_bf16_f32 v{T+1}, v{u}, v{u+1}
        v_lshlrev_b32 v{g}, 16, v{T}
        v_and_b32 v{g+1}, 0xffff0000, v{T}
        v_lshlrev_b32 v{u}, 16, v{T+1}
        v_and_b32 v{u+1}, 0xffff0000, v{T+1}
        v_mul_f32 v{T}, {LOG2E ^ 0x80000000:#x}, v{g}
        v_mul_f32 v{T+1}, {LOG2E ^ 0x80000000:#x}, v{g+1}
        v_exp_f32 v{T}, v{T}
        v_exp_f32 v{T+1}, v{T+1}
        v_add_f32 v{T}, 1.0, v{T}
        v_add_f32 v{T+1}, 1.0, v{T+1}
        v_rcp_f32 v{T}, v{T}
        v_rcp_f32 v{T+1}, v{T+1}
        """)
        k(pk("mul", g, g, T))
        k(f"v_cvt_pk_bf16_f32 v{T}, v{g}, v{g+1}\nv_lshlrev_b32 v{g}, 16, v{T}\nv_and_b32 v{g+1}, 0xffff0000, v{T}")
        k(pk("mul", g, g, u))
        k(f"""
        v_cvt_pk_bf16_f32 v{g}, v{g}, v{g+1}
        buffer_store_short v{g}, v35, s[{WS}:{WS+3}], s{76+2*h} offen
        buffer_store_short_d16_hi v{g}, v35, s[{WS}:{WS+3}], s{77+2*h} offen
        """)
    k("L1_lend:")
    stamp(k, cfg, 2)
    stamp_flush(k, cfg, 0)
    k("s_endpgm")

def compute(k, cfg):
    LRS, LIS, DTS, WS, ES, HS = 8, 12, 16, 20, 36, 40
    LR, LI, L8R, L8I, L16R, L16I, RAWR, RAWI, T1, T2 = 10, 12, 14, 16, 18, 20, 22, 24, 26, 28
    FR, ACC, GR = 32, 96, 160
    k(f"""
    s_load_dwordx2 s[{LRS}:{LRS+1}], s[0:1], {KA['lam_re']}
    s_load_dwordx2 s[{LIS}:{LIS+1}], s[0:1], {KA['lam_im']}
    s_load_dwordx2 s[{DTS}:{DTS+1}], s[0:1], {KA['log_dt']}
    s_load_dwordx2 s[{WS}:{WS+1}], s[0:1], {KA['ws']}
    s_lshr_b32 s30, s29, 1       ; wm
    s_and_b32 s31, s29, 1        ; wn
    v_and_b32 v6, 15, v1         ; j
    v_lshrrev_b32 v7, 4, v1      ; q
    s_lshl_b32 s32, s27, 6
    s_lshl_b32 s33, s31, 5
    s_add_u32 s32, s32, s33
    s_lshl_b32 s32, s32, 1
    v_lshlrev_b32 v8, 1, v6
    """)
    for s in (LRS, LIS, DTS): k(f"s_mov_b32 s{s+2}, 2048\ns_mov_b32 s{s+3}, 0x20000")
    k("s_waitcnt lgkmcnt(0)")
    for cb in range(2):
        k(f"buffer_load_ushort v{T1+cb}, v8, s[{DTS}:{DTS+3}], s32 offen offset:{cb*32}")
        k(f"buffer_load_ushort v{RAWR+cb}, v8, s[{LRS}:{LRS+3}], s32 offen offset:{cb*32}")
        k(f"buffer_load_ushort v{RAWI+cb}, v8, s[{LIS}:{LIS+3}], s32 offen offset:{cb*32}")
    k(f"""
    v_lshrrev_b32 v8, 1, v6
    v_xor_b32 v8, v8, v7
    v_lshlrev_b32 v8, 4, v8
    v_lshl_add_u32 v8, v6, 7, v8
    s_lshl_b32 s33, s30, 13
    s_lshl_b32 s34, s31, 13
    s_add_u32 s34, s34, 16384
    v_add_u32 v2, s33, v8
    v_add_u32 v4, s34, v8
    v_xor_b32 v3, 64, v2
    v_xor_b32 v5, 64, v4
    s_lshl_b32 s33, s27, 14
    s_add_u32 s33, s33, {WS_E}
    s_add_u32 s{ES}, s{WS}, s33
    s_addc_u32 s{ES+1}, s{WS+1}, 0
    s_mov_b32 s{ES+2}, 16384
    s_mov_b32 s{ES+3}, 0x20000
    s_lshl_b32 s33, s27, 2
    s_add_u32 s33, s33, s31
    s_lshl_b32 s33, s33, 7
    s_lshl_b32 s34, s26, 3
    s_add_u32 s33, s33, s34
    s_lshl_b32 s34, s30, 2
    s_add_u32 s33, s33, s34
    s_lshl_b32 s33, s33, 10
    s_add_u32 s33, s33, {WS_H}
    s_add_u32 s{HS}, s{WS}, s33
    s_addc_u32 s{HS+1}, s{WS+1}, 0
    s_mov_b32 s{HS+2}, {2*131072 + 4096}
    s_mov_b32 s{HS+3}, 0x20000
    """)
    for r in range(64): k(f"v_mov_b32 v{ACC+r}, 0")
    k("s_waitcnt vmcnt(0)")
    for cb in range(2):
        k(f"""
        v_lshlrev_b32 v{T1+cb}, 16, v{T1+cb}
        v_lshlrev_b32 v{RAWR+cb}, 16, v{RAWR+cb}
        v_lshlrev_b32 v{RAWI+cb}, 16, v{RAWI+cb}
        v_mul_f32 v{T1+cb}, {LOG2E:#x}, v{T1+cb}
        v_exp_f32 v{T1+cb}, v{T1+cb}
        """)
    k(f"v_cvt_pk_bf16_f32 v{T1}, v{T1}, v{T1+1}\nv_and_b32 v{T1+1}, 0xffff0000, v{T1}\nv_lshlrev_b32 v{T1}, 16, v{T1}")
    k(pk("mul", T2, T1, RAWI)); k(pk("mul", T1, T1, RAWR))
    for cb in range(2):
        k(f"""
        v_mul_f32 v{T1+cb}, {LOG2E:#x}, v{T1+cb}
        v_mul_f32 v{T2+cb}, {INV2PI:#x}, v{T2+cb}
        v_exp_f32 v{T1+cb}, v{T1+cb}
        v_rndne_f32 v{LR+cb}, v{T2+cb}
        v_sub_f32 v{T2+cb}, v{T2+cb}, v{LR+cb}
        v_cos_f32 v{LR+cb}, v{T2+cb}
        v_sin_f32 v{LI+cb}, v{T2+cb}
        """)
    k(pk("mul", LR, LR, T1)); k(pk("mul", LI, LI, T1))
    csq(k, L8R, L8I, LR, LI, T1); csq(k, L16R, L16I, L8R, L8I, T1); csq(k, L8R, L8I, L16R, L16I, T1); csq(k, L16R, L16I, L8R, L8I, T1)
    if cfg.get("prio"): k(f"s_setprio {cfg['prio']}")
    k("s_barrier")
    stamp(k, cfg, 0)
    def rd(sub, fs, slot):
        b = FR + 32*fs; o = slot*32768
        A = [f"ds_read_b128 v[{b+4*m}:{b+4*m+3}], v{2+sub} offset:{o+m*2048}" for m in range(4)]
        B = [f"ds_read_b128 v[{b+16+4*m}:{b+16+4*m+3}], v{4+sub} offset:{o+m*2048}" for m in range(4)]
        return [A[0], B[0], B[1], B[2], B[3], A[1], A[2], A[3]]
    def mm(fs):
        b = FR + 32*fs; out = []
        for mb in range(4):
            for x in (range(4) if mb % 2 == 0 else range(3, -1, -1)):
                ri, cb = x >> 1, x & 1
                a = ACC + (cb*2+ri)*16 + mb*4
                out.append(f"v_mfma_f32_16x16x32_bf16 v[{a}:{a+3}], v[{b+4*mb}:{b+4*mb+3}], v[{b+16+4*x}:{b+16+4*x+3}], v[{a}:{a+3}]")
        return out
    for l in rd(0, 0, 0): k(l)
    k("s_mov_b32 s35, 0\nL1_loop:")
    BAR = cfg.get("bar1", 1)
    for half in range(2):
        m = mm(0); r = rd(1, 1, half)
        k("s_waitcnt lgkmcnt(0)")
        for i in range(16):
            k(m[i])
            if i < 8: k(r[i])
        m = mm(1)
        if half == 0: r = rd(0, 0, 1)
        else: r = rd(0, 0, 0)
        k("s_waitcnt lgkmcnt(0)")
        for i in range(16):
            k(m[i])
            if half == 1 and i == 0:
                for a in range(2, 6): k(f"v_xor_b32 v{a}, 0x10000, v{a}")
            if i == BAR - 1:
                if half == 0: k("s_barrier")
                else: k("s_cmp_eq_u32 s35, 7\ns_cbranch_scc1 L1_nobar\ns_barrier\nL1_nobar:")
            if BAR <= i < BAR + 8: k(r[i - BAR])
    stamp_loop(k, cfg, 12, 35)
    k("s_add_u32 s35, s35, 1\ns_cmp_lt_u32 s35, 8\ns_cbranch_scc1 L1_loop")
    stamp(k, cfg, 1)
    U = lambda cb, ri, tp: ACC + (cb*2+ri)*16 + 2*tp
    k(f"""
    s_sub_u32 s33, s26, 1
    v_sub_u32 v8, s33, v7
    v_lshlrev_b32 v8, 10, v8
    v_lshl_add_u32 v8, v6, 4, v8
    s_lshl_b32 s33, s31, 9
    v_add_u32 v192, s33, v8
    v_add_u32 v193, -4096, v192
    v_add_u32 v194, -8192, v192
    v_add_u32 v195, -12288, v192
    v_mov_b32 v9, {L_FLAG}
    ds_read_b32 v30, v9 offset:20
    """)
    def lb_loads():
        for i in range(4):
            for cb in range(2):
                g = GR + (i*2+cb)*4
                k(f"buffer_load_dwordx4 v[{g}:{g+3}], v{192+i}, s[{ES}:{ES+3}], 0 offen offset:{cb*256} sc1")
    lb_loads()
    k("s_waitcnt lgkmcnt(0)\nv_readfirstlane_b32 s44, v30")
    for tp in range(1, 8):
        for ri_first in (0,):
            for cb in range(2): k(pk("fma", U(cb,0,tp), LR, U(cb,0,tp-1), U(cb,0,tp), sa=cb))
            for cb in range(2): k(pk("fma", U(cb,1,tp), LR, U(cb,1,tp-1), U(cb,1,tp), sa=cb))
            for cb in range(2): k(pk("fma", U(cb,0,tp), LI, U(cb,1,tp-1), U(cb,0,tp), sa=cb, na=3))
            for cb in range(2): k(pk("fma", U(cb,1,tp), LI, U(cb,0,tp-1), U(cb,1,tp), sa=cb))
    for cb in range(2):
        e = T1 + 2*cb; r0, i0 = U(cb,0,7), U(cb,1,7)
        k(f"""
        v_fma_f32 v{e}, v{L8R+cb}, v{r0}, v{r0+1}
        v_fma_f32 v{e+1}, v{L8R+cb}, v{i0}, v{i0+1}
        v_fma_f32 v{e}, -v{L8I+cb}, v{i0}, v{e}
        v_fma_f32 v{e+1}, v{L8I+cb}, v{r0}, v{e+1}
        """)
    k(f"""
    s_lshl_b32 s33, s31, 8
    s_add_u32 s33, s33, {L_EX}
    v_lshl_add_u32 v30, v6, 3, s33          ; e[0][ch]
    s_lshl_b32 s33, s30, 11
    v_lshl_add_u32 v31, v7, 9, s33
    v_add_u32 v31, v31, v30                 ; e[seg][ch]
    ds_write_b64 v31, v[{T1}:{T1+1}]
    ds_write_b64 v31, v[{T1+2}:{T1+3}] offset:128
    s_lshl_b32 s33, s29, 2
    v_add_u32 v31, s33, v9
    s_xor_b32 s33, s33, 8
    v_add_u32 v9, s33, v9
    v_mov_b32 v8, 1
    ds_write_b32 v31, v8
    s_mov_b32 s45, {SPIN}
    L1_expoll:
    ds_read_b32 v8, v9
    """)
    EV = lambda s, cb: FR + (s*2+cb)*2
    for s in range(8):
        for cb in range(2): k(f"ds_read_b64 v[{EV(s,cb)}:{EV(s,cb)+1}], v30 offset:{s*512+cb*128}")
    k(f"""
    s_waitcnt lgkmcnt(0)
    v_readfirstlane_b32 s33, v8
    s_sub_u32 s45, s45, 1
    s_cbranch_scc1 L1_exok
    s_cmp_eq_u32 s33, 0
    s_cbranch_scc1 L1_expoll
    L1_exok:
    """)
    for s in range(1, 8):
        for cb in range(2): cfma_ri(k, EV(s,cb), L16R, L16I, cb, EV(s-1,cb), EV(s,cb), EV(s,cb))
    k(f"""
    s_cmp_eq_u32 s30, 0
    s_cbranch_scc1 L1_nopub
    s_cmp_eq_u32 s26, 15
    s_cbranch_scc1 L1_nopub
    v_mov_b32 v{T1}, v{EV(7,0)}
    v_mov_b32 v{T1+1}, v{EV(7,0)+1}
    v_mov_b32 v{T1+2}, s44
    v_mov_b32 v{T1+3}, s44
    s_lshl_b32 s33, s26, 10
    s_lshl_b32 s34, s31, 9
    s_add_u32 s33, s33, s34
    v_lshlrev_b32 v8, 4, v1
    s_mov_b64 exec, 0xffff0000
    v_mov_b32 v{T1}, v{EV(7,1)}
    v_mov_b32 v{T1+1}, v{EV(7,1)+1}
    s_mov_b64 exec, 0xffffffff
    buffer_store_dwordx4 v[{T1}:{T1+3}], v8, s[{ES}:{ES+3}], s33 offen sc1
    s_mov_b64 exec, -1
    L1_nopub:
    """)
    stamp(k, cfg, 2)
    PL = FR + 28
    k(f"v_mov_b32 v{PL}, 0\nv_mov_b32 v{PL+1}, 0\nv_mov_b32 v{PL+2}, 0\nv_mov_b32 v{PL+3}, 0")
    k("s_lshl_b32 s33, s30, 2\nv_add_u32 v8, s33, v7")
    for s in range(1, 8):
        k(f"v_cmp_eq_u32 vcc, {s}, v8")
        for x in range(4): k(f"v_cndmask_b32 v{PL+x}, v{PL+x}, v{EV(s-1,0)+x}, vcc")
    A_R, A_I, B_R, B_I, WR_, WI_, VR_, VI_, L5R, L5I, TT = FR, FR+2, FR+4, FR+6, FR+8, FR+10, FR+12, FR+14, FR+16, FR+18, FR+20
    def sel_one(dr, di, sr, si, bit, v):
        k(f"v_and_b32 v9, {bit}, v{v}\nv_cmp_ne_u32 vcc, 0, v9")
        for cb in range(2): k(f"v_cndmask_b32 v{dr+cb}, 1.0, v{sr+cb}, vcc\nv_cndmask_b32 v{di+cb}, 0, v{si+cb}, vcc")
    SR_, SI_, S2R, S2I = FR+22, FR+24, T1, T2
    sel_one(WR_, WI_, L16R, L16I, 1, 8)
    csq(k, A_R, A_I, L16R, L16I, TT)
    sel_one(SR_, SI_, A_R, A_I, 2, 8)
    cmul_cb(k, VR_, VI_, WR_, WI_, SR_, SI_)
    csq(k, B_R, B_I, A_R, A_I, TT)
    sel_one(SR_, SI_, B_R, B_I, 4, 8)
    cmul_cb(k, WR_, WI_, VR_, VI_, SR_, SI_)
    csq(k, A_R, A_I, B_R, B_I, TT)
    sel_one(S2R, S2I, A_R, A_I, 1, 7)
    csq(k, B_R, B_I, A_R, A_I, TT)
    sel_one(SR_, SI_, B_R, B_I, 2, 7)
    cmul_cb(k, VR_, VI_, S2R, S2I, SR_, SI_)
    csq(k, L5R, L5I, B_R, B_I, TT)
    cmul_cb(k, A_R, A_I, WR_, WI_, L8R, L8I)
    WRs = lambda cb: L16R + 0 if cb == 0 else L16I
    WIs = lambda cb: (B_R, B_I)[cb]
    for cb in range(2):
        k(f"v_mov_b32 v{WRs(cb)}, v{WR_+cb}\nv_mov_b32 v{WRs(cb)+1}, v{A_R+cb}\nv_mov_b32 v{WIs(cb)}, v{WI_+cb}\nv_mov_b32 v{WIs(cb)+1}, v{A_I+cb}")
    PRs = lambda cb: (A_R, WR_)[cb]
    PIs = lambda cb: (A_I, WI_)[cb]
    for cb in range(2):
        p = PL + 2*cb; r0, i0 = U(cb,0,7), U(cb,1,7)
        k(f"""
        v_fma_f32 v{PRs(cb)+1}, v{L8R+cb}, v{p}, v{r0}
        v_fma_f32 v{PIs(cb)+1}, v{L8R+cb}, v{p+1}, v{i0}
        v_mov_b32 v{PRs(cb)}, v{p}
        v_mov_b32 v{PIs(cb)}, v{p+1}
        v_fma_f32 v{PRs(cb)+1}, -v{L8I+cb}, v{p+1}, v{PRs(cb)+1}
        v_fma_f32 v{PIs(cb)+1}, v{L8I+cb}, v{p}, v{PIs(cb)+1}
        """)
    for cb in range(2):
        k(f"v_max_f32 v{T1+cb}, |v{RAWR+cb}|, |v{RAWI+cb}|\nv_rcp_f32 v{T2+cb}, v{T1+cb}")
    k(pk("mul", RAWR, RAWR, T2)); k(pk("mul", RAWI, RAWI, T2))
    k(pk("mul", T2, RAWR, RAWR)); k(pk("fma", T2, RAWI, RAWI, T2)); k(pk("mul", T2, T2, T1))
    for cb in range(2): k(f"v_rcp_f32 v{T2+cb}, v{T2+cb}\nv_add_f32 v{T1+cb}, -1.0, v{LR+cb}")
    k(pk("add", T2, T2, T2))
    k(pk("mul", SR_, T1, RAWR)); k(pk("mul", SI_, LI, RAWR)); k(pk("fma", SR_, LI, RAWI, SR_)); k(pk("fma", SI_, T1, RAWI, SI_, na=3))
    k(pk("mul", SR_, SR_, T2)); k(pk("mul", SI_, SI_, T2))
    TB = lambda tp, cb: FR + 32 + (tp*2+cb)*2
    for cb in range(2):
        k(f"v_mov_b32 v{T1+2*cb}, v{SR_+cb}\nv_mov_b32 v{T1+2*cb+1}, v{SI_+cb}")
    for tp in range(8):
        for cb in range(2):
            src = T1 + 2*cb if tp == 0 else TB(tp-1, cb)
            k(pk("mul", TB(tp,cb), LR, src, sa=cb))
        for cb in range(2):
            src = T1 + 2*cb if tp == 0 else TB(tp-1, cb)
            k(pk("fma", TB(tp,cb), LI, src, TB(tp,cb), sa=cb, sb='x', nb=1))
    for tp in range(8):
        for cb in range(2):
            t = T1 + 2*cb; R, I = U(cb,0,tp), U(cb,1,tp)
            k(pk("mul", t, SI_, R, sa=cb, na=3)); k(pk("mul", R, SR_, R, sa=cb))
            k(pk("fma", R, SI_, I, R, sa=cb, na=3)); k(pk("fma", I, SR_, I, t, sa=cb, na=3))
    EX = RAWR
    EXP = [RAWR, RAWI, L8R, L8I]
    k(f"v_mov_b32 v9, s44")
    for i in range(4):
        k(f"v_cmp_le_i32 vcc, 0, v{192+i}\nv_cndmask_b32 v{EXP[i]}, 0, v9, vcc\nv_cndmask_b32 v{EXP[i]+1}, 0, v9, vcc")
    k(f"""
    s_lshl_b32 s33, s29, 13
    s_add_u32 s33, s33, {L_TR}
    v_lshrrev_b32 v8, 1, v6
    v_and_b32 v8, 4, v8
    v_and_b32 v9, 7, v6
    v_xor_b32 v8, v8, v9                    ; g(j)
    v_lshlrev_b32 v9, 1, v7
    v_xor_b32 v8, v8, v9
    v_lshlrev_b32 v8, 4, v8
    v_lshl_add_u32 v8, v6, 7, v8
    v_add_u32 v2, s33, v8
    v_xor_b32 v3, 16, v2
    v_bfe_u32 v8, v1, 2, 2                  ; r
    v_bfe_u32 v9, v1, 1, 1
    v_xor_b32 v9, v9, v8
    v_and_b32 v4, 1, v7
    v_lshlrev_b32 v4, 2, v4
    v_xor_b32 v9, v9, v4
    v_lshlrev_b32 v9, 4, v9
    v_lshl_add_u32 v8, v7, 3, v8
    v_lshl_add_u32 v9, v8, 7, v9
    v_and_b32 v8, 1, v1
    v_lshl_add_u32 v9, v8, 3, v9
    v_add_u32 v4, s33, v9
    v_xor_b32 v5, 32, v4
    v_xor_b32 v30, 64, v4
    v_xor_b32 v31, 96, v4
    v_lshlrev_b32 v196, 4, v1
    s_mov_b32 s45, {SPIN}
    """)
    if cfg.get("dbgregs"):
        k(f"s_mov_b32 s{WS+2}, {SZ['ws']}\ns_mov_b32 s{WS+3}, 0x20000\ns_lshl_b32 s34, s2, 2\ns_add_u32 s34, s34, s29\ns_lshl_b32 s34, s34, 14\ns_add_u32 s34, s34, {WS_STAMP}\nv_lshlrev_b32 v197, 2, v1")
        for i, r in enumerate(cfg["dbgregs"]):
            if i and i % 16 == 0: k("s_add_u32 s34, s34, 4096")
            k(f"buffer_store_dword v{r}, v197, s[{WS}:{WS+3}], s34 offen offset:{(i%16)*256}")
    stamp(k, cfg, 3)
    k("L1_lbpoll:\ns_waitcnt vmcnt(0)")
    for i in range(4):
        for cb in range(2):
            g = GR + (i*2+cb)*4
            k(f"v_cmp_ne_u64 s[{46+2*(i*2+cb)}:{47+2*(i*2+cb)}], v[{g+2}:{g+3}], v[{EXP[i]}:{EXP[i]+1}]")
    k("""
    s_or_b64 s[46:47], s[46:47], s[48:49]
    s_or_b64 s[50:51], s[50:51], s[52:53]
    s_or_b64 s[54:55], s[54:55], s[56:57]
    s_or_b64 s[58:59], s[58:59], s[60:61]
    s_or_b64 s[46:47], s[46:47], s[50:51]
    s_or_b64 s[54:55], s[54:55], s[58:59]
    s_or_b64 s[46:47], s[46:47], s[54:55]
    s_cbranch_scc0 L1_lbok
    s_sub_u32 s45, s45, 1
    s_cbranch_scc1 L1_lbok
    """)
    lb_loads()
    k("s_branch L1_lbpoll\nL1_lbok:")
    stamp(k, cfg, 4)
    G = lambda i, cb: GR + (i*2+cb)*4
    for i in (2, 1, 0):
        for cb in range(2): cfma_ri(k, G(i,cb), L5R, L5I, cb, G(i+1,cb), G(i,cb), G(i,cb))
    H = lambda cb: G(1, cb)
    for cb in range(2): k(pk("mul", H(cb), VR_, G(0,cb), sa=cb))
    for cb in range(2): k(pk("fma", H(cb), VI_, G(0,cb), H(cb), sa=cb, sb='x', nb=1))
    for op in ("v_permlane16_swap_b32", "v_permlane32_swap_b32"):
        for cb in range(2): k(f"v_mov_b32 v{H(cb)+2}, v{H(cb)}\nv_mov_b32 v{H(cb)+3}, v{H(cb)+1}")
        for cb in range(2): k(f"{op} v{H(cb)}, v{H(cb)+2}\n{op} v{H(cb)+1}, v{H(cb)+3}")
        for cb in range(2): k(pk("add", H(cb), H(cb), H(cb)+2))
    for cb in range(2):
        k(pk("fma", PRs(cb), WRs(cb), H(cb), PRs(cb), sb=0)); k(pk("fma", PIs(cb), WRs(cb), H(cb), PIs(cb), sb=1))
    for cb in range(2):
        k(pk("fma", PRs(cb), WIs(cb), H(cb), PRs(cb), sb=1, nb=3)); k(pk("fma", PIs(cb), WIs(cb), H(cb), PIs(cb), sb=0))
    PK = GR
    for cb in range(2):
        for tp in range(8):
            R, I, T = U(cb,0,tp), U(cb,1,tp), TB(tp,cb)
            k(pk("fma", R, T, PRs(cb), R, sa=0)); k(pk("fma", I, T, PIs(cb), I, sa=0, na=3))
            k(pk("fma", R, T, PIs(cb), R, sa=1, na=3)); k(pk("fma", I, T, PRs(cb), I, sa=1, na=3))
        for ri in range(2):
            for sub in range(2):
                b = PK + ((ri*2+cb)*2+sub)*4
                for x in range(4): k(f"v_cvt_pk_bf16_f32 v{b+x}, v{U(cb,ri,2*x)+sub}, v{U(cb,ri,2*x+1)+sub}")
                k(f"ds_write_b128 v{2+sub}, v[{b}:{b+3}] offset:{(ri*32+cb*16)*128}")
    RA = {0: 4, 2: 5, 4: 30, 6: 31}
    k(f"s_mov_b32 s33, {2*131072}")
    OUT = ACC
    for ri in range(2):
        for qq in range(4):
            b = OUT + (ri*4+qq)*4
            for hh in range(2): k(f"ds_read_b64_tr_b16 v[{b+2*hh}:{b+2*hh+1}], v{RA[(2*qq) ^ (4*hh)]} offset:{(ri*32+4*hh)*128}")
    for ri in range(2):
        for qq in range(4):
            b = OUT + (ri*4+qq)*4
            k(f"s_waitcnt lgkmcnt({min(15, 2*(7-(ri*4+qq)))})")
            k(f"buffer_store_dwordx4 v[{b}:{b+3}], v196, s[{HS}:{HS+3}], {'s33' if ri else '0'} offen offset:{qq*1024}")
    stamp(k, cfg, 5)
    stamp_flush(k, cfg, 0)
```

```python
from asmgen import *
from layout import *
from k1 import ROT, pk, wg_coords, stamp, stamp_loop, stamp_flush, sigmoid_bf16, LOG2E, SPIN

L_WD = 65536
LDS2 = 98304

def gen_k2(cfg):
    k = Kern("k2_kernel", 256, 512, LDS2, 200)
    if cfg.get("stamps"): k("s_memrealtime s[90:91]\ns_memtime s[88:89]\nv_mov_b32 v199, 0")
    k("s_cmp_ge_u32 s2, 256\ns_cbranch_scc1 L2_end")
    k("v_lshrrev_b32 v2, 6, v0\nv_and_b32 v1, 63, v0\ns_nop 0\nv_readfirstlane_b32 s29, v2")
    wg_coords(k)
    k(ROT[cfg.get("rot2", "cn")])
    k("s_and_b32 s61, s61, 15")
    k("s_cmp_lt_u32 s29, 4\ns_cbranch_scc1 L2_compute")
    aux(k, cfg)
    k("L2_compute:")
    compute(k, cfg)
    k("L2_end:\ns_endpgm")
    k.lines = fix_hazards(k.lines)
    return k

def compute(k, cfg):
    HS = 8
    CF, HR, ACC = 8, 40, 104
    k(f"""
    s_load_dwordx2 s[{HS}:{HS+1}], s[0:1], {KA['ws']}
    s_lshl_b32 s32, s26, 3
    s_lshl_b32 s33, s29, 1
    s_add_u32 s32, s32, s33
    s_lshl_b32 s32, s32, 10
    s_add_u32 s33, s32, {WS_H}
    s_sub_u32 s{HS+2}, {64*131072}, s32
    s_mov_b32 s{HS+3}, 0x20000
    s_lshl_b32 s62, s61, 19
    v_lshlrev_b32 v4, 4, v1
    v_and_b32 v6, 15, v1
    v_lshrrev_b32 v7, 4, v1
    v_lshrrev_b32 v2, 1, v6
    v_xor_b32 v2, v2, v7
    v_lshlrev_b32 v2, 4, v2
    v_lshl_add_u32 v2, v6, 7, v2
    v_xor_b32 v3, 64, v2
    s_waitcnt lgkmcnt(0)
    s_add_u32 s{HS}, s{HS}, s33
    s_addc_u32 s{HS+1}, s{HS+1}, 0
    """)
    def hload(u, tb):
        r = HR + 8*(u % 8) + 4*tb
        k(f"buffer_load_dwordx4 v[{r}:{r+3}], v4, s[{HS}:{HS+3}], s62 offen offset:{tb*1024}")
    def hadv(): k(f"s_add_u32 s62, s62, 131072\ns_and_b32 s62, s62, {64*131072-1}")
    k("s_barrier")
    for u in range(8):
        hload(u, 0); hload(u, 1); hadv()
    for r in range(32): k(f"v_mov_b32 v{ACC+r}, 0")
    k(f"""
    v_and_b32 v5, 7, v6
    v_xor_b32 v5, v5, v7
    v_lshlrev_b32 v5, 4, v5
    v_lshl_add_u32 v5, v6, 8, v5
    s_lshl_b32 s33, s29, 13
    v_add_u32 v136, s33, v5
    v_xor_b32 v137, 64, v136
    v_xor_b32 v138, 128, v136
    v_xor_b32 v139, 192, v136
    """)
    if cfg.get("prio"): k(f"s_setprio {cfg['prio']}")
    k("s_barrier")
    stamp(k, cfg, 0)
    def rd(sub, fs, slot):
        b = CF + 16*fs; ri, s = sub >> 1, sub & 1
        return [f"ds_read_b128 v[{b+4*d}:{b+4*d+3}], v{2+s} offset:{slot*16384 + ri*8192 + d*2048}" for d in range(4)]
    def mm(u, fs):
        b = CF + 16*fs; out = []
        for tb in range(2):
            h = HR + 8*(u % 8) + 4*tb
            for d in (range(4) if tb == 0 else range(3, -1, -1)):
                a = ACC + (tb*4+d)*4
                out.append(f"v_mfma_f32_16x16x32_bf16 v[{a}:{a+3}], v[{b+4*d}:{b+4*d+3}], v[{h}:{h+3}], v[{a}:{a+3}]")
        return out
    for l in rd(0, 0, 0): k(l)
    k("s_mov_b32 s35, 0\nL2_loop:")
    k(f"s_cmp_eq_u32 s35, 7\ns_cselect_b32 s{HS+2}, 0, s{HS+2}")
    for u in range(8):
        half, sub = u >> 2, u & 3
        m = mm(u, u & 1)
        r = rd(sub+1, (u+1) & 1, half) if sub < 3 else rd(0, 0, 1 - half)
        k("s_waitcnt vmcnt(15) lgkmcnt(0)")
        for i in range(8):
            if i == 4: k("s_waitcnt vmcnt(15)")
            k(m[i])
            if sub == 3 and i == 0:
                if half == 1: k("v_xor_b32 v2, 0x8000, v2\nv_xor_b32 v3, 0x8000, v3\ns_cbranch_scc1 L2_nobar\ns_barrier\nL2_nobar:")
                else: k("s_barrier")
            o = 1 if sub == 3 else 0
            if o <= i < o + 4: k(r[i - o])
            if i == 3: hload(u, 0)
            if i == 7:
                hload(u, 1)
                if u == 6: k(f"s_add_u32 s62, s62, 131072\ns_and_b32 s62, s62, {64*131072-1}\ns_cmp_eq_u32 s35, 7")
                else: hadv()
    stamp_loop(k, cfg, 12, 35)
    k("s_add_u32 s35, s35, 1\ns_cmp_lt_u32 s35, 8\ns_cbranch_scc1 L2_loop")
    stamp(k, cfg, 1)
    for tb in range(2):
        for d in range(4):
            a = ACC + (tb*4+d)*4
            k(f"ds_write_b128 v{136+d}, v[{a}:{a+3}] offset:{tb*4096}")
    k("s_waitcnt lgkmcnt(0)\ns_barrier")
    stamp(k, cfg, 2)
    stamp_flush(k, cfg, 1)

def aux(k, cfg):
    vm = VM(k)
    CS, WS, XS, WD, DK, OS = 8, 12, 16, 36, 40, 44
    k(f"""
    s_load_dwordx4 s[{CS}:{CS+3}], s[0:1], {KA['c_re']}
    s_load_dwordx2 s[{WS}:{WS+1}], s[0:1], {KA['ws']}
    s_load_dwordx2 s[{XS}:{XS+1}], s[0:1], {KA['x']}
    s_load_dwordx2 s[{WD}:{WD+1}], s[0:1], {KA['w_down']}
    s_load_dwordx2 s[{DK}:{DK+1}], s[0:1], {KA['dskip']}
    s_load_dwordx2 s[{OS}:{OS+1}], s[0:1], {KA['out']}
    s_and_b32 s30, s29, 3        ; w
    v_lshrrev_b32 v3, 3, v1      ; r3
    v_and_b32 v4, 7, v1
    v_lshrrev_b32 v5, 1, v3
    v_xor_b32 v5, v4, v5
    v_lshlrev_b32 v5, 4, v5
    v_lshl_add_u32 v10, v3, 11, v5
    v_xor_b32 v11, 64, v10
    v_add_u32 v12, {2*15360}, v10
    v_add_u32 v13, {3*15360}, v11
    v_add_u32 v11, {15360}, v11
    s_lshr_b32 s31, s30, 1
    s_and_b32 s32, s30, 1
    s_lshl_b32 s34, s27, 6
    s_lshl_b32 s35, s31, 5
    s_add_u32 s34, s34, s35
    s_lshl_b32 s34, s34, 11
    s_lshl_b32 s60, s32, 13
    s_lshl_b32 s35, s31, 12
    s_add_u32 s60, s60, s35
    s_lshl_b32 s61, s61, 7
    s_cmp_eq_u32 s32, 1
    s_waitcnt lgkmcnt(0)
    s_cselect_b32 s{CS}, s{CS+2}, s{CS}
    s_cselect_b32 s{CS+1}, s{CS+3}, s{CS+1}
    s_add_u32 s{CS}, s{CS}, s34
    s_addc_u32 s{CS+1}, s{CS+1}, 0
    s_sub_u32 s{CS+2}, {SZ['c_re']}, s34
    s_mov_b32 s{CS+3}, 0x20000
    """)
    def stage(i):
        k(f"s_add_u32 m0, s60, {(i % 4) * 16384}")
        for j in range(4): vm.issue(f"st{i}", f"buffer_load_dwordx4 v{10+j}, s[{CS}:{CS+3}], s61 offen offset:{j*1024} lds")
        if i < 15: k("s_add_u32 s61, s61, 128\ns_and_b32 s61, s61, 2047")
    stamp(k, cfg, 10)
    stage(0)
    stage(1)
    k("s_barrier")
    stamp(k, cfg, 11)
    SEL = 64
    k(f"s_load_dwordx16 s[{SEL}:{SEL+15}], s[{WS}:{WS+1}], {WS_SEL}\ns_load_dword s80, s[{WS}:{WS+1}], {WS_G}")
    for s, nm in ((WS, 'ws'), (XS, 'x'), (WD, 'w_down'), (DK, 'dskip'), (OS, 'out')):
        k(f"s_mov_b32 s{s+2}, {SZ[nm]}\ns_mov_b32 s{s+3}, 0x20000")
    XR, GR, DR, E1 = 84, 100, 116, 120
    AF, BF, D = 20, 48, 76
    NT = " nt" if cfg.get("ntw") else ""
    k(f"""
    v_bfrev_b32 v2, 1
    v_lshrrev_b32 v6, 4, v1      ; rg
    v_and_b32 v7, 15, v1         ; cl
    v_lshlrev_b32 v17, 4, v4
    v_lshl_add_u32 v17, v3, 11, v17
    s_mul_i32 s50, s26, 28
    s_mul_i32 s51, s30, 7
    s_add_u32 s50, s50, s51
    s_lshl_b32 s50, s50, 14
    s_lshl_b32 s55, s27, 7
    s_add_u32 s50, s50, s55
    s_lshl_b32 s51, s51, 10
    s_lshl_b32 s48, s26, 7
    s_lshl_b32 s49, s30, 5
    s_add_u32 s49, s48, s49      ; R0
    v_lshlrev_b32 v18, 3, v7
    v_lshl_add_u32 v19, v6, 11, v18
    v_lshlrev_b32 v9, 3, v6
    v_mul_u32_u24 v8, 7168, v4
    v_lshl_add_u32 v8, v6, 4, v8
    """)
    def wd_loads():
        for j in range(7):
            k(f"s_add_u32 m0, s51, {L_WD + j*1024}")
            if j: k("s_add_u32 s50, s50, 16384")
            vm.issue("wd", f"buffer_load_dwordx4 v17, s[{WD}:{WD+3}], s50 offen{NT} lds")
    def act_loads():
        k(f"s_mul_i32 s33, s26, 448\ns_add_u32 s33, s33, {WS_ACT}")
        for s in range(7): vm.issue("act", f"buffer_load_dwordx4 v[{BF+4*s}:{BF+4*s+3}], v8, s[{WS}:{WS+3}], s33 offen offset:{64*s}")
    def ep_loads():
        k(f"s_lshl_b32 s33, s49, 11\ns_add_u32 s33, s33, s55\ns_lshl_b32 s34, s49, 3\ns_add_u32 s34, s34, {WS_GATE}")
        for i in range(8):
            vm.issue("ep", f"buffer_load_dwordx2 v[{XR+2*i}:{XR+2*i+1}], v19, s[{XS}:{XS+3}], s33 offen")
            if i < 7: k("s_add_u32 s33, s33, 8192")
            vm.issue("ep", f"buffer_load_dwordx2 v[{GR+2*i}:{GR+2*i+1}], v9, s[{WS}:{WS+3}], s34 offen offset:{i*32}")
        vm.issue("ep", f"buffer_load_dwordx2 v[{DR}:{DR+1}], v18, s[{DK}:{DK+3}], s55 offen")
    vm.wait("st0")
    stamp(k, cfg, 0)
    k("s_barrier")
    T = 152
    def e1_group(x, gp, e, b=None):
        for h in range(2):
            k(f"v_lshlrev_b32 v{T}, 16, v{x+h}\nv_and_b32 v{T+1}, 0xffff0000, v{x+h}")
            k(pk("mul", T+2, T, DR+2*h))
            k(pk("mul", T, gp, T if b is None else b+2*h, sa=1))
            k(f"""
            v_cvt_pk_bf16_f32 v{T+2}, v{T+2}, v{T+3}
            v_cvt_pk_bf16_f32 v{T}, v{T}, v{T+1}
            v_and_b32 v{T+3}, 0xffff0000, v{T+2}
            v_lshlrev_b32 v{T+2}, 16, v{T+2}
            v_and_b32 v{T+1}, 0xffff0000, v{T}
            v_lshlrev_b32 v{T}, 16, v{T}
            """)
            k(pk("fma", e+2*h, gp, T+2, T, sa=0))
    YP = 20
    TX, TG, TE, TR_ = 160, 162, 164, 168
    for i in range(13):
        if i == 0: stage(2)
        stage(i + 3)
        lg = ""
        if i == 1: wd_loads()
        if i == 2: act_loads()
        if i == 3: ep_loads()
        if i == 5:
            vm.wait("act", "lgkmcnt(0)")
            k(f"""
            v_bfe_u32 v5, v1, 2, 2
            v_lshl_add_u32 v5, v6, 3, v5
            v_lshlrev_b32 v5, 7, v5
            v_and_b32 v14, 3, v1
            v_lshl_add_u32 v5, v14, 3, v5
            s_lshl_b32 s33, s30, 5
            s_add_u32 s33, s33, {L_WD}
            v_add_u32 v5, s33, v5
            """)
            for s in range(7):
                for hh in range(2): k(f"ds_read_b64_tr_b16 v[{AF+4*s+2*hh}:{AF+4*s+2*hh+1}], v5 offset:{(32*s+4*hh)*128}")
            for s in range(7):
                k(f"s_waitcnt lgkmcnt({2*(6-s)})")
                k(f"v_mfma_f32_16x16x32_bf16 v[{D}:{D+3}], v[{AF+4*s}:{AF+4*s+3}], v[{BF+4*s}:{BF+4*s+3}], {'0' if s == 0 else f'v[{D}:{D+3}]'}")
            k(f"""
            v_lshlrev_b32 v8, 17, v7
            v_lshl_add_u32 v8, v6, 5, v8
            s_lshl_b32 s33, s27, 13
            s_lshl_b32 s34, s26, 9
            s_add_u32 s33, s33, s34
            s_lshl_b32 s34, s30, 7
            s_add_u32 s33, s33, s34
            s_add_u32 s33, s33, {WS_YP}
            v_mov_b32 v21, s80
            v_mov_b32 v23, s80
            v_mov_b32 v25, s80
            v_mov_b32 v27, s80
            v_mov_b32 v20, v{D}
            v_mov_b32 v22, v{D+1}
            v_mov_b32 v24, v{D+2}
            v_mov_b32 v26, v{D+3}
            s_mov_b32 exec_lo, 0x00ff00ff
            s_mov_b32 exec_hi, 0x00ff00ff
            """)
            vm.issue("yp", f"buffer_store_dwordx4 v[20:23], v8, s[{WS}:{WS+3}], s33 offen sc1")
            vm.issue("yp", f"buffer_store_dwordx4 v[24:27], v8, s[{WS}:{WS+3}], s33 offen offset:16 sc1")
            k("s_mov_b64 exec, -1")
        if i == 6:
            vm.wait("ep")
            k(f"""
            v_and_b32 v{DR+3}, 0xffff0000, v{DR+1}
            v_lshlrev_b32 v{DR+2}, 16, v{DR+1}
            v_and_b32 v{DR+1}, 0xffff0000, v{DR}
            v_lshlrev_b32 v{DR}, 16, v{DR}
            """)
        if 6 <= i < 10:
            for g_ in (2*(i-6), 2*(i-6)+1): e1_group(XR + 2*g_, GR + 2*g_, E1 + 4*g_)
        if i == 10:
            k("s_mov_b32 s33, 0")
            for j in range(8):
                k(f"s_sub_u32 s34, s{SEL+j}, s49\ns_lshl_b32 s35, 1, s34\ns_cmp_lt_u32 s34, 32\ns_cselect_b32 s35, s35, 0\ns_or_b32 s33, s33, s35")
            k("v_lshlrev_b32 v8, v6, 1")
            for g_ in range(8):
                k(f"s_lshr_b32 s34, s33, {4*g_}\nv_and_b32 v{170+g_}, s34, v8")
        if i == 11:
            k(f"""
            s_cmp_eq_u32 s30, 1
            s_cselect_b32 s{SEL}, s{SEL+1}, s{SEL}
            s_cselect_b32 s{SEL+4}, s{SEL+5}, s{SEL+4}
            s_cselect_b32 s{SEL+8}, s{SEL+9}, s{SEL+8}
            s_cselect_b32 s{SEL+12}, s{SEL+13}, s{SEL+12}
            s_cmp_eq_u32 s30, 2
            s_cselect_b32 s{SEL}, s{SEL+2}, s{SEL}
            s_cselect_b32 s{SEL+4}, s{SEL+6}, s{SEL+4}
            s_cselect_b32 s{SEL+8}, s{SEL+10}, s{SEL+8}
            s_cselect_b32 s{SEL+12}, s{SEL+14}, s{SEL+12}
            s_cmp_eq_u32 s30, 3
            s_cselect_b32 s{SEL}, s{SEL+3}, s{SEL}
            s_cselect_b32 s{SEL+4}, s{SEL+7}, s{SEL+4}
            s_cselect_b32 s{SEL+8}, s{SEL+11}, s{SEL+8}
            s_cselect_b32 s{SEL+12}, s{SEL+15}, s{SEL+12}
            v_mov_b32 v14, s{SEL}
            v_mov_b32 v{TR_}, s{SEL+8}
            s_mov_b32 exec_lo, 0
            v_mov_b32 v14, s{SEL+4}
            v_mov_b32 v{TR_}, s{SEL+12}
            s_mov_b32 exec_lo, -1
            v_subrev_u32 v15, s48, v14
            v_cmp_gt_u32 vcc, 0x80, v15
            s_mov_b64 s[52:53], vcc
            v_lshrrev_b32 v16, 5, v1
            v_lshlrev_b32 v16, 19, v16
            v_and_b32 v17, 1, v6
            v_lshl_add_u32 v16, v17, 12, v16
            v_lshl_add_u32 v16, v7, 5, v16
            v_cndmask_b32 v16, v2, v16, vcc
            v_lshl_add_u32 v17, v14, 11, v18
            v_cndmask_b32 v17, v2, v17, vcc          ; x address
            v_lshlrev_b32 v18, 3, v14
            v_cndmask_b32 v18, v2, v18, vcc
            v_mov_b32 v9, s80
            v_cndmask_b32 v9, 0, v9, vcc
            s_lshl_b32 s54, s30, 17
            s_lshl_b32 s56, s27, 13
            s_add_u32 s54, s54, s56
            s_add_u32 s54, s54, {WS_YP}
            s_mov_b32 s56, {WS_GATE}
            """)
        if cfg.get("lstamps"): stamp(k, cfg, 12 + i)
        vm.wait(f"st{i+1}", lg)
        k("s_barrier")
    def yloads(tag):
        for q in range(8):
            for h in range(2):
                r = YP + 8*q + 4*h
                t = f"buffer_load_dwordx4 v[{r}:{r+3}], v16, s[{WS}:{WS+3}], s54 offen offset:{q*512+h*16} sc1"
                if tag: vm.issue(tag, t)
                else: k(t)
    yloads("y")
    vm.issue("y", f"buffer_load_dwordx2 v[{TX}:{TX+1}], v17, s[{XS}:{XS+3}], s55 offen")
    vm.issue("y", f"buffer_load_dwordx2 v[{TG}:{TG+1}], v18, s[{WS}:{WS+3}], s56 offen")
    k(f"""
    v_lshlrev_b32 v10, 4, v7
    v_lshl_add_u32 v11, v14, 12, v10
    v_lshl_add_u32 v10, v6, 12, v10
    v_xor_b32 v12, v7, v6
    v_lshlrev_b32 v12, 4, v12
    v_lshl_add_u32 v12, v6, 8, v12
    s_lshl_b32 s33, s30, 13
    v_add_u32 v12, s33, v12
    v_xor_b32 v13, 64, v12
    v_and_b32 v8, 7, v15
    v_xor_b32 v8, v8, v7
    v_lshlrev_b32 v8, 4, v8
    v_and_b32 v5, 0x7f, v15
    v_lshl_add_u32 v8, v5, 8, v8
    s_lshl_b32 s57, s27, 8
    s_lshl_b32 s58, s49, 12
    s_add_u32 s58, s58, s57
    """)
    vm.wait("st14"); k("s_barrier")
    vm.wait("st15"); k("s_barrier")
    stamp(k, cfg, 1)
    k(f"s_mov_b32 s59, {SPIN}\nL2_ypoll:\ns_waitcnt vmcnt(0)\ns_cmp_eq_u64 s[52:53], 0\ns_cbranch_scc1 L2_notok")
    k(f"v_xor_b32 v{T}, v9, v{YP+1}")
    for q in range(1, 32): k(f"v_xor_b32 v{T+1}, v9, v{YP+2*q+1}\nv_or_b32 v{T}, v{T}, v{T+1}")
    k(f"v_cmp_ne_u32 vcc, 0, v{T}\ns_sub_u32 s59, s59, 1\ns_cbranch_scc1 L2_yok\ns_cbranch_vccz L2_yok")
    yloads(None)
    k("s_branch L2_ypoll\nL2_yok:")
    for x in range(4):
        for q in range(1, 8): k(f"v_add_f32 v{YP+2*x}, v{YP+2*x}, v{YP+8*q+2*x}")
    for x in range(4): k(f"v_mov_b32 v{YP+2*x+1}, v{YP+2*x}")
    for x in range(4): k(f"v_permlane16_swap_b32 v{YP+2*x}, v{YP+2*x+1}")
    for x in range(4): k(f"v_add_f32 v{YP+8+x}, v{YP+2*x}, v{YP+2*x+1}")
    Y = YP + 8
    for h in range(2):
        y = Y + 2*h
        k(f"""
        v_cvt_pk_bf16_f32 v{y}, v{y}, v{y+1}
        v_and_b32 v{y+1}, 0xffff0000, v{y}
        v_lshlrev_b32 v{y}, 16, v{y}
        v_mul_f32 v{y}, v{y}, v{TR_}
        v_mul_f32 v{y+1}, v{y+1}, v{TR_}
        v_cvt_pk_bf16_f32 v{y}, v{y}, v{y+1}
        v_and_b32 v{y+1}, 0xffff0000, v{y}
        v_lshlrev_b32 v{y}, 16, v{y}
        v_lshlrev_b32 v{T}, 16, v{TX+h}
        v_and_b32 v{T+1}, 0xffff0000, v{TX+h}
        """)
        k(pk("add", y, y, T))
        k(f"v_cvt_pk_bf16_f32 v{y}, v{y}, v{y+1}\nv_and_b32 v{y+1}, 0xffff0000, v{y}\nv_lshlrev_b32 v{y}, 16, v{y}")
    e1_group(TX, TG, TE, b=Y)
    k("L2_notok:")
    stamp(k, cfg, 2)
    k("s_barrier")
    A = 20
    for g_ in range(8): k(f"ds_read_b128 v[{A+4*g_}:{A+4*g_+3}], v{12 + (g_ & 1)} offset:{g_*1024}")
    k(f"ds_read_b128 v[{A+32}:{A+35}], v8")
    for g_ in range(8):
        k(f"v_cmp_eq_u32 vcc, 0, v{170+g_}\ns_waitcnt lgkmcnt({8-g_})")
        for h in range(2): k(pk("fma", A+4*g_+2*h, GR+2*g_, A+4*g_+2*h, E1+4*g_+2*h, sa=0))
        k(f"s_mov_b64 exec, vcc\nbuffer_store_dwordx4 v[{A+4*g_}:{A+4*g_+3}], v10, s[{OS}:{OS+3}], s58 offen\ns_mov_b64 exec, -1\ns_add_u32 s58, s58, 16384")
    k(f"s_waitcnt lgkmcnt(0)")
    for h in range(2): k(pk("fma", A+32+2*h, TG, A+32+2*h, TE+2*h, sa=0))
    k(f"""
    s_and_b32 exec_lo, s52, 0xffff
    s_and_b32 exec_hi, s53, 0xffff
    s_cbranch_execz L2_aend
    buffer_store_dwordx4 v[{A+32}:{A+35}], v11, s[{OS}:{OS+3}], s57 offen
    L2_aend:
    """)
    stamp(k, cfg, 3)
    stamp_flush(k, cfg, 1)
    k("s_endpgm")
```

```python
from asmgen import *
from layout import *

LOG2E = 0x3fb8aa3b
INV2PI = 0x3e22f983
SPIN = 1 << 20

def pk(op, d, a, b, c=None, sa=None, sb=None, sc=None, na=0, nb=0, nc=0):
    srcs = [(a, sa, na), (b, sb, nb)] + ([(c, sc, nc)] if c is not None else [])
    if sa not in (1, 'x') and sb in (1, 'x'): srcs[0], srcs[1] = srcs[1], srcs[0]
    lo = [{None: 0, 0: 0, 1: 1, 'x': 1}[s] for _, s, _ in srcs]
    hi = [{None: 1, 0: 0, 1: 1, 'x': 0}[s] for _, s, _ in srcs]
    nl = [n & 1 for _, _, n in srcs]; nh = [n >> 1 for _, _, n in srcs]
    t = f"v_pk_{op}_f32 v[{d}:{d+1}], " + ", ".join(f"v[{r}:{r+1}]" for r, _, _ in srcs)
    f = lambda x: "[" + ",".join(map(str, x)) + "]"
    if any(lo): t += f" op_sel:{f(lo)}"
    if not all(hi): t += f" op_sel_hi:{f(hi)}"
    if any(nl): t += f" neg_lo:{f(nl)}"
    if any(nh): t += f" neg_hi:{f(nh)}"
    return t

def csq(k, dr, di, ar, ai, t):
    k(pk("mul", t, ar, ai)); k(pk("mul", dr, ar, ar)); k(pk("fma", dr, ai, ai, dr, na=3)); k(pk("add", di, t, t))
def cmul_cb(k, dr, di, ar, ai, br, bi):
    k(pk("mul", dr, ar, br)); k(pk("mul", di, ar, bi)); k(pk("fma", dr, ai, bi, dr, na=3)); k(pk("fma", di, ai, br, di))
def cfma_ri(k, d, cr, ci, cb, h, g, t):
    k(pk("fma", t, cr, h, g, sa=cb)); k(pk("fma", d, ci, h, t, sa=cb, sb='x', nb=1))

def wg_coords(k, band=False):
    if band:
        k("""
        s_and_b32 s24, s2, 7
        s_lshr_b32 s25, s2, 3
        s_lshr_b32 s26, s25, 4
        s_lshl_b32 s26, s26, 3
        s_add_u32 s26, s26, s24      ; s26 = c (time chunk): the 16 tiles of a chunk share blockIdx % 8
        s_and_b32 s27, s25, 15
        """)
        return
    k("""
    s_and_b32 s24, s2, 7
    s_lshr_b32 s25, s2, 3
    s_lshr_b32 s26, s25, 3
    s_lshl_b32 s26, s26, 2
    s_lshr_b32 s27, s24, 1
    s_add_u32 s26, s26, s27
    s_and_b32 s27, s24, 1
    s_lshl_b32 s27, s27, 3
    s_and_b32 s28, s25, 7
    s_add_u32 s27, s27, s28
    """)

ROT = {
    "none": "s_mov_b32 s61, 0",
    "cn": "s_add_u32 s61, s26, s27",
    "q": "s_lshr_b32 s61, s25, 3\ns_lshl_b32 s61, s61, 1\ns_add_u32 s61, s61, s28\ns_lshl_b32 s61, s61, 1",
    "x": "s_lshl_b32 s61, s24, 1",
    "qx": "s_lshr_b32 s61, s25, 3\ns_lshl_b32 s61, s61, 1\ns_add_u32 s61, s61, s28\ns_lshl_b32 s61, s61, 1\ns_lshr_b32 s62, s24, 1\ns_add_u32 s61, s61, s62\ns_and_b32 s62, s24, 1\ns_add_u32 s61, s61, s62",
    "c4": "s_lshr_b32 s61, s25, 3\ns_lshl_b32 s61, s61, 2",
    "n2": "s_lshl_b32 s61, s28, 1",
    "c": "s_mov_b32 s61, s26",
    "n": "s_mov_b32 s61, s27",
    "h8": "s_and_b32 s61, s25, 1\ns_lshl_b32 s61, s61, 3",
}

def add_base(k, s, off):
    k(f"s_add_u32 s{s}, s{s}, {off}\ns_addc_u32 s{s+1}, s{s+1}, 0")

def wave_max(k, v, t, sdst):
    k(f"v_mov_b32 v{t}, v{v}")
    for m in ("row_shr:1", "row_shr:2", "row_shr:4", "row_shr:8"):
        k(f"v_max_u32_dpp v{t}, v{t}, v{t} {m} row_mask:0xf bank_mask:0xf")
    k(f"v_max_u32_dpp v{t}, v{t}, v{t} row_bcast:15 row_mask:0xa bank_mask:0xf")
    k(f"v_max_u32_dpp v{t}, v{t}, v{t} row_bcast:31 row_mask:0xc bank_mask:0xf")
    k(f"v_readlane_b32 s{sdst}, v{t}, 63")

def wave_sum(k, regs):
    for m, rm in (("row_shr:1", 0xf), ("row_shr:2", 0xf), ("row_shr:4", 0xf), ("row_shr:8", 0xf), ("row_bcast:15", 0xa), ("row_bcast:31", 0xc)):
        for v in regs:
            k(f"v_add_f32_dpp v{v}, v{v}, v{v} {m} row_mask:{rm:#x} bank_mask:0xf")

def sigmoid_bf16(k, d, x, t):
    k(f"""
    v_mul_f32 v{t}, {LOG2E ^ 0x80000000:#x}, v{x}
    v_exp_f32 v{t}, v{t}
    v_add_f32 v{t}, 1.0, v{t}
    v_rcp_f32 v{t}, v{t}
    v_cvt_pk_bf16_f32 v{d}, v{t}, v{t}
    v_lshlrev_b32 v{d}, 16, v{d}
    """)

def stamp(k, cfg, i, cond="s_waitcnt lgkmcnt(0)"):
    if not cfg.get("stamps"): return
    k(f"s_memrealtime s[92:93]\ns_memtime s[94:95]\ns_waitcnt lgkmcnt(0)\nv_writelane_b32 v199, s92, {i}\nv_writelane_b32 v199, s94, {32+i}")
def stamp_loop(k, cfg, base, sreg):
    if not cfg.get("lstamps"): return
    k(f"""s_memrealtime s[92:93]
    s_memtime s[94:95]
    s_add_u32 s96, s{sreg}, {base}
    s_add_u32 s97, s96, 32
    v_cmp_eq_u32 s[98:99], s96, v1
    v_cmp_eq_u32 s[100:101], s97, v1
    s_waitcnt lgkmcnt(0)
    v_mov_b32 v197, s92
    v_mov_b32 v198, s94
    v_cndmask_b32 v199, v199, v197, s[98:99]
    v_cndmask_b32 v199, v199, v198, s[100:101]""")
def stamp_flush(k, cfg, which):
    if not cfg.get("stamps"): return
    k(f"""
    s_load_dwordx2 s[92:93], s[0:1], {KA['ws']}
    s_mov_b32 s94, {SZ['ws']}
    s_mov_b32 s95, 0x20000
    v_writelane_b32 v199, s90, 31
    v_writelane_b32 v199, s88, 63
    s_lshl_b32 s96, s2, 11
    s_lshl_b32 s97, s29, 8
    s_add_u32 s96, s96, s97
    s_add_u32 s96, s96, {WS_STAMP + which * 0x80000}
    s_mov_b64 exec, -1
    v_mbcnt_lo_u32_b32 v198, -1, 0
    v_mbcnt_hi_u32_b32 v198, -1, v198
    v_lshlrev_b32 v198, 2, v198
    s_waitcnt lgkmcnt(0)
    buffer_store_dword v199, v198, s[92:95], s96 offen
    """)
```

```python
from common import *

S0 = 147456
L_FLAG, L_RT, L_CAND, L_SORT, L_EX, L_ACT = S0, S0 + 64, S0 + 256, S0 + 512, S0 + 1024, S0 + 5120
ACT_ROW = 464
L_TR = 131072
L_WG, L_WU = 0, 32768
L_C = 65536
L_WD = 0
L_STG = 32768

def gen_fused(cfg):
    k = Kern(NAME + "_kernel", 256, 512, 163840, 256)
    if cfg.get("stamps"): k("s_memrealtime s[90:91]\ns_memtime s[88:89]\nv_mov_b32 v199, 0")
    k("s_cmp_ge_u32 s2, 256\ns_cbranch_scc1 L_end")
    k("v_lshrrev_b32 v2, 6, v0\nv_and_b32 v1, 63, v0\ns_nop 0\nv_readfirstlane_b32 s29, v2")
    wg_coords(k, cfg.get('band', 0))
    k("s_cmp_lt_u32 s29, 4\ns_cbranch_scc1 L_compute")
    loader(k, cfg)
    k("L_compute:")
    compute(k, cfg)
    k("L_end:\ns_endpgm")
    k.lines = fix_hazards(k.lines)
    return k

def spin_tail(k, cnt, ok, again):
    k(f"s_sub_u32 s{cnt}, s{cnt}, 1\ns_cbranch_scc1 {ok}\ns_sleep 1")

def loader(k, cfg):
    vm = VM(k)
    if cfg.get("lprio", 0): k(f"s_setprio {cfg.get('lprio', 0)}")
    XS, BS, WS, RS, GS, DS, WGS, WUS, XF = 8, 12, 16, 36, 40, 44, 48, 52, 56
    TAG = 65
    k(f"""
    s_load_dwordx2 s[{XF}:{XF+1}], s[0:1], {KA['x']}
    s_load_dwordx4 s[{BS}:{BS+3}], s[0:1], {KA['b_re']}
    s_load_dwordx2 s[{RS}:{RS+1}], s[0:1], {KA['dskip']}
    s_load_dwordx2 s[{GS}:{GS+1}], s[0:1], {KA['out']}
    s_load_dwordx2 s[{WS}:{WS+1}], s[0:1], {KA['ws']}
    s_load_dwordx2 s[{DS}:{DS+1}], s[0:1], {KA['dbg']}
    s_load_dwordx2 s[{WGS}:{WGS+1}], s[0:1], {KA['w_gate']}
    s_load_dwordx2 s[{WUS}:{WUS+1}], s[0:1], {KA['w_up']}
    s_and_b32 s30, s29, 3
    v_lshrrev_b32 v3, 3, v1      ; r3
    v_and_b32 v4, 7, v1
    v_lshrrev_b32 v5, 1, v3
    v_xor_b32 v2, v4, v5
    v_lshlrev_b32 v2, 4, v2
    v_lshl_add_u32 v14, v3, 11, v2   ; B piece 0
    v_xor_b32 v15, 64, v14
    v_add_u32 v16, {2*15360}, v14
    v_add_u32 v17, {3*15360}, v15
    v_add_u32 v15, {15360}, v15
    v_lshrrev_b32 v6, 2, v3
    v_lshlrev_b32 v6, 4, v6
    v_and_b32 v7, 1, v3
    v_lshl_add_u32 v6, v7, 3, v6
    v_and_b32 v7, 1, v5
    v_add_u32 v6, v6, v7         ; tl
    v_lshl_add_u32 v10, v6, 11, v2   ; A piece 0
    v_xor_b32 v11, 64, v10
    v_add_u32 v12, {2*2048-2048}, v10
    v_add_u32 v13, {34*2048-3072}, v11
    v_add_u32 v11, {32*2048-1024}, v11
    s_lshr_b32 s31, s30, 1       ; w>>1
    s_and_b32 s32, s30, 1        ; w&1
    s_lshl_b32 s33, s26, 7
    s_lshl_b32 s34, s31, 6
    s_add_u32 s33, s33, s34
    s_lshl_b32 s34, s32, 2
    s_add_u32 s33, s33, s34
    s_lshl_b32 s33, s33, 11
    s_lshl_b32 s34, s27, 6
    s_lshl_b32 s35, s31, 5
    s_add_u32 s34, s34, s35
    s_lshl_b32 s64, s34, 11
    s_lshl_b32 s60, s30, 12
    """)
    k(ROT[cfg.get("rot1", "cn")])
    k(f"""
    s_and_b32 s61, s61, 15
    s_lshl_b32 s61, s61, 7
    s_cmp_eq_u32 s32, 1
    s_waitcnt lgkmcnt(0)
    s_cselect_b32 s{BS}, s{BS+2}, s{BS}
    s_cselect_b32 s{BS+1}, s{BS+3}, s{BS+1}
    s_add_u32 s{BS}, s{BS}, s64
    s_addc_u32 s{BS+1}, s{BS+1}, 0
    s_sub_u32 s{BS+2}, {SZ['b_re']}, s64
    s_mov_b32 s{BS+3}, 0x20000
    s_add_u32 s{XS}, s{XF}, s33
    s_addc_u32 s{XS+1}, s{XF+1}, 0
    s_sub_u32 s{XS+2}, {SZ['x']}, s33
    s_mov_b32 s{XS+3}, 0x20000
    """)
    def stage(i):
        slot = (i % 4) * 32768
        k(f"s_add_u32 m0, s60, {slot}")
        for j in range(4): vm.issue(f"st{i}", f"buffer_load_dwordx4 v{10+j}, s[{XS}:{XS+3}], s61 offen offset:{j*1024} lds")
        k(f"s_add_u32 m0, s60, {slot + 16384}")
        for j in range(4): vm.issue(f"st{i}", f"buffer_load_dwordx4 v{14+j}, s[{BS}:{BS+3}], s61 offen offset:{j*1024} lds")
        if i < 15: k("s_add_u32 s61, s61, 128\ns_and_b32 s61, s61, 2047")
    stamp(k, cfg, 10)
    stage(0)
    stage(1)
    k(f"""
    v_mov_b32 v9, 0
    v_mov_b32 v8, 0
    v_mov_b32 v7, {L_FLAG}
    ds_write_b64 v7, v[8:9]
    ds_write_b64 v7, v[8:9] offset:8
    ds_write_b32 v7, v9 offset:16
    """)
    for s, nm in ((XF, 'x'), (RS, 'dskip'), (GS, 'out'), (WS, 'ws'), (DS, 'dbg'), (WGS, 'w_gate'), (WUS, 'w_up')):
        k(f"s_mov_b32 s{s+2}, {SZ[nm]}\ns_mov_b32 s{s+3}, 0x20000")
    k(f"""
    s_lshl_b32 s62, s26, 7
    s_lshl_b32 s63, s27, 3
    s_add_u32 s62, s62, s63
    s_lshl_b32 s62, s62, 3
    v_lshlrev_b32 v18, 4, v1
    v_lshlrev_b32 v19, 3, v4
    """)
    k(f"""
    s_or_b32 s66, s2, s30
    s_cmp_lg_u32 s66, 0
    s_cbranch_scc1 L_notag
    s_load_dword s66, s[{WS}:{WS+1}], {WS_G}
    s_waitcnt lgkmcnt(0)
    s_mul_i32 s66, s66, 1664525
    s_add_u32 s66, s66, 1013904223
    s_cmp_eq_u32 s66, 0
    s_cselect_b32 s66, 1013904223, s66
    v_mov_b32 v20, s66
    s_mov_b64 exec, 1
    buffer_store_dword v20, v9, s[{WS}:{WS+3}], 0 offen offset:{WS_G} sc1
    buffer_store_dword v20, v9, s[{DS}:{DS+3}], 0 offen sc1
    s_mov_b64 exec, -1
    L_notag:
    """)
    vm.wait("st0", "lgkmcnt(0)")
    stamp(k, cfg, 0)
    k("s_barrier")
    T0 = 72
    KEY = 80
    def key_loads(tag):
        for q in range(4):
            t = f"buffer_load_dwordx4 v[{KEY+4*q}:{KEY+4*q+3}], v18, s[{WS}:{WS+3}], s69 offen offset:{q*1024} sc1"
            vm.issue(tag, t) if tag else k(t)
    def top_round(j):
        for i in range(8): k(f"v_subrev_u32 v{22+i}, s76, v{KEY+2*i}")
        k("v_max3_u32 v22, v22, v23, v24\nv_max3_u32 v25, v25, v26, v27\nv_max3_u32 v22, v22, v28, v29\nv_max_u32 v22, v22, v25")
        for m, rm in (("row_shr:1", 0xf), ("row_shr:2", 0xf), ("row_shr:4", 0xf), ("row_shr:8", 0xf), ("row_bcast:15", 0xa), ("row_bcast:31", 0xc)):
            k(f"v_max_u32_dpp v22, v22, v22 {m} row_mask:{rm:#x} bank_mask:0xf")
        k(f"v_readlane_b32 s77, v22, 63\ns_add_u32 s76, s76, s77\nv_writelane_b32 v30, s76, {j}")
    NT = " nt" if cfg.get("ntw") else ""
    def wdma(tag, srd, base):
        for j in range(8):
            k(f"s_add_u32 m0, s75, {base + j*1024}\ns_add_u32 s74, s73, {j*8*7168}")
            vm.issue(tag, f"buffer_load_dwordx4 v10, s[{srd}:{srd+3}], s74 offen{NT} lds")
    CS, WD, DK, OS = XS, DS, RS, GS
    KS = cfg.get("kslot", 4)
    WUV = 128
    WUS0, WUSTEP = cfg.get("wu0", 3), cfg.get("wustep", 2)
    XA = 36
    for i in range(15):
        lg = ""
        if i == 0:
            vm.issue("tag", f"buffer_load_dword v20, v9, s[{DS}:{DS+3}], 0 offen sc1")
            stage(2)
        if i < 13: stage(i + 3)
        if i == 0:
            k(f"""
            v_add_u32 v21, {L_RT}, v19
            ds_read_b64 v[{T0}:{T0+1}], v21
            s_load_dwordx4 s[84:87], s[0:1], {KA['c_re']}
            s_mul_hi_u32 s70, s2, {(2**32 + 55) // 56}     ; kq
            s_mul_i32 s71, s70, 56
            s_sub_u32 s71, s2, s71                        ; cg
            s_lshl_b32 s72, s70, 8
            s_lshl_b32 s73, s30, 6
            s_add_u32 s72, s72, s73                       ; k0 = 256 kq + 64 w
            s_mul_i32 s73, s72, 7168
            s_lshl_b32 s74, s71, 7
            s_add_u32 s73, s73, s74
            s_cmp_ge_u32 s2, 224
            s_cselect_b32 s{WGS+2}, 0, s{WGS+2}
            s_cselect_b32 s{WUS+2}, 0, s{WUS+2}
            s_lshl_b32 s75, s30, 13
            s_lshl_b32 s69, s30, 12
            s_add_u32 s69, s69, {WS_RKEY}
            s_mov_b32 s76, 0
            v_mul_u32_u24 v31, 7168, v3
            v_lshl_add_u32 v31, v4, 4, v31
            s_and_b32 s63, s25, 3
            """)
        if i == 1:
            vm.wait("tag", "lgkmcnt(0)")
            k(f"""
            s_mov_b32 s68, {SPIN}
            L_tagpoll:
            v_readfirstlane_b32 s{TAG}, v20
            s_cmp_lg_u32 s{TAG}, 0
            s_cbranch_scc1 L_tagok
            s_sub_u32 s68, s68, 1
            s_cbranch_scc1 L_tagok
            buffer_load_dword v20, v9, s[{DS}:{DS+3}], 0 offen sc1
            s_waitcnt vmcnt(0)
            s_branch L_tagpoll
            L_tagok:
            s_load_dwordx2 s[{WD}:{WD+1}], s[0:1], {KA['w_down']}
            v_mov_b32 v{T0+2}, v{T0+1}
            v_mov_b32 v{T0+1}, s{TAG}
            v_mov_b32 v{T0+3}, s{TAG}
            ds_write_b32 v7, v{T0+1} offset:24
            s_add_u32 s66, s62, {WS_RKEY}
            s_add_u32 s67, s62, {WS_GATE}
            s_cmp_lg_u32 s30, 0
            s_cbranch_scc1 L_nopub
            s_mov_b64 exec, 0xff
            buffer_store_dwordx2 v[{T0}:{T0+1}], v19, s[{WS}:{WS+3}], s66 offen sc1
            buffer_store_dwordx2 v[{T0+2}:{T0+3}], v19, s[{WS}:{WS+3}], s67 offen sc1
            s_mov_b64 exec, -1
            L_nopub:
            s_mov_b32 s{WD+2}, {SZ['w_down']}
            s_cmp_eq_u32 s32, 1
            s_cselect_b32 s84, s86, s84
            s_cselect_b32 s85, s87, s85
            s_add_u32 s84, s84, s64
            s_addc_u32 s85, s85, 0
            """)
            lg = "lgkmcnt(0)"
        if cfg.get("wu_at", "loop") == "loop" and i >= WUS0 and (i - WUS0) % WUSTEP == 0 and (i - WUS0) // WUSTEP < 4:
            L = k.label("wu")
            k(f"s_cmp_lg_u32 s63, {(i - WUS0) // WUSTEP}\ns_cbranch_scc1 {L}")
            for j in range(8):
                k(f"s_add_u32 s74, s73, {j*8*7168}\nbuffer_load_dwordx4 v[{WUV+4*j}:{WUV+4*j+3}], v31, s[{WUS}:{WUS+3}], s74 offen{NT}")
            k(f"{L}:")
        if i == KS: key_loads("keys")
        if i == 13:
            k("v_mov_b32 v10, v31")
            if cfg.get("cpf"):
                k(f"""
                s_load_dwordx4 s[{XS}:{XS+3}], s[0:1], {KA['c_re']}
                s_lshl_b32 s33, s2, 13
                s_lshl_b32 s34, s31, 12
                s_add_u32 s33, s33, s34
                s_cmp_eq_u32 s32, 1
                s_waitcnt lgkmcnt(0)
                s_cselect_b32 s{XS}, s{XS+2}, s{XS}
                s_cselect_b32 s{XS+1}, s{XS+3}, s{XS+1}
                s_mov_b32 s{XS+2}, {SZ['c_re']}
                s_mov_b32 s{XS+3}, 0x20000
                """)
                for j in range(4): vm.issue("cpf", f"buffer_load_dwordx4 v[60:63], v18, s[{XS}:{XS+3}], s33 offen offset:{j*1024}")
            wdma("wg", WGS, L_WG)
        if i == KS + 1:
            vm.wait("keys")
            k(f"s_mov_b32 s68, {SPIN}\nL_keypoll:")
            k(f"v_xor_b32 v20, s{TAG}, v{KEY+1}")
            for q in range(1, 8): k(f"v_xor_b32 v21, s{TAG}, v{KEY+2*q+1}\nv_or_b32 v20, v20, v21")
            k("v_cmp_ne_u32 vcc, 0, v20\ns_cbranch_vccz L_keyok\ns_sub_u32 s68, s68, 1\ns_cbranch_scc1 L_keyok")
            key_loads(None)
            k("s_waitcnt vmcnt(0)\ns_branch L_keypoll\nL_keyok:")
        if KS < i <= KS + 8 and not cfg.get('noaux1'): top_round(i - KS - 1)
        if i == KS + 8:
            k(f"s_lshl_b32 s76, s30, 5\nv_lshl_add_u32 v32, v1, 2, s76\nv_add_u32 v32, {L_CAND}, v32\ns_mov_b64 exec, 0xff\nds_write_b32 v32, v30\ns_mov_b64 exec, -1")
            lg = "lgkmcnt(0)"
        if i == 13:
            k(f"""
            v_and_b32 v32, 31, v1
            v_lshlrev_b32 v32, 2, v32
            v_add_u32 v32, {L_CAND}, v32
            v_lshrrev_b32 v33, 5, v1
            v_lshlrev_b32 v33, 6, v33
            v_add_u32 v33, {L_CAND}, v33
            ds_read_b32 v34, v32
            """)
            for q in range(4): k(f"ds_read_b128 v[{36+4*q}:{39+4*q}], v33 offset:{16*q}")
            k(f"v_mov_b32 v35, 0\ns_lshl_b32 s76, s30, 5\ns_add_u32 s76, s76, {L_SORT}\ns_waitcnt lgkmcnt(0)")
            for q in range(16):
                sp = 78 + 2*(q % 3)
                k(f"v_cmp_gt_u32 s[{sp}:{sp+1}], v{36+q}, v34")
                if q >= 2: k(f"v_addc_co_u32 v35, vcc, 0, v35, s[{78+2*((q-2)%3)}:{79+2*((q-2)%3)}]")
            for q in (14, 15): k(f"v_addc_co_u32 v35, vcc, 0, v35, s[{78+2*(q%3)}:{79+2*(q%3)}]")
        if i == 14:
            k(f"""
            v_mov_b32 v36, v35
            v_lshrrev_b32 v6, 4, v1                  ; q / rg
            v_lshlrev_b32 v32, 4, v6
            v_permlane32_swap_b32 v35, v36
            v_add_u32 v35, v35, v36
            v_cmp_gt_u32 vcc, 8, v35
            v_lshl_add_u32 v35, v35, 2, s76
            v_lshl_add_u32 v36, v4, 2, s76
            s_and_saveexec_b64 s[66:67], vcc
            ds_write_b32 v35, v34
            s_mov_b64 exec, -1
            ds_read_b32 v30, v36
            v_add_u32 v33, s75, v18
            s_lshl_b32 s76, s72, 1
            s_waitcnt lgkmcnt(0)
            v_and_b32 v31, 0x7ff, v30
            v_sub_u32 v31, 2047, v31
            v_lshl_add_u32 v32, v31, 11, v32
            """)
            for s_ in range(2):
                vm.issue("xs", f"buffer_load_dwordx4 v[{XA+4*s_}:{XA+4*s_+3}], v32, s[{XF}:{XF+3}], s76 offen offset:{s_*64}")
        if cfg.get("lstamps"): stamp(k, cfg, 12 + i)
        vm.wait(f"st{i+1}", lg)
        k("s_barrier")
    if cfg.get("wu_at", "loop") == "loop":
        for j in range(8): k(f"ds_write_b128 v33, v[{WUV+4*j}:{WUV+4*j+3}] offset:{L_WU + j*1024}")
    else: wdma("wu", WUS, L_WU)
    k(f"""
    s_mov_b32 s{CS}, s84
    s_mov_b32 s{CS+1}, s85
    s_sub_u32 s{CS+2}, {SZ['c_re']}, s64
    s_lshl_b32 s60, s32, 13
    s_lshl_b32 s35, s31, 12
    s_add_u32 s60, s60, s35
    s_add_u32 s60, s60, {L_C}
    """)
    k(ROT[cfg.get("rot2", "cn")])
    k("s_add_u32 s61, s61, 2\ns_and_b32 s61, s61, 15\ns_lshl_b32 s61, s61, 7")
    def stage2(i):
        k(f"s_add_u32 m0, s60, {(i % 4) * 16384}")
        for j in range(4): vm.issue(f"c{i}", f"buffer_load_dwordx4 v{14+j}, s[{CS}:{CS+3}], s61 offen offset:{j*1024} lds")
        if i < 15: k("s_add_u32 s61, s61, 128\ns_and_b32 s61, s61, 2047")
    stamp(k, cfg, 1)
    k("""
    v_ashrrev_i32 v33, 31, v30
    v_not_b32 v33, v33
    v_or_b32 v33, 0x80000000, v33
    v_xor_b32 v33, v33, v30
    v_and_b32 v33, 0xffff0000, v33
    """)
    sigmoid_bf16(k, 30, 33, 35)
    k(f"""
    v_bfe_u32 v34, v1, 2, 2
    v_lshl_add_u32 v33, v6, 3, v34
    v_lshlrev_b32 v33, 7, v33
    v_and_b32 v34, 3, v1
    v_lshl_add_u32 v5, v34, 3, v33
    v_add_u32 v33, s75, v5
    s_cmp_ge_u32 s2, 224
    s_cbranch_scc1 L_gudone
    """)
    D = 96; FB = 160
    q0 = list(vm.q)
    for mat, tag, base in ((1, "wu", L_WU), (0, "wg", L_WG)) if cfg.get("wu_at", "loop") == "loop" else ((0, "wg", L_WG), (1, "wu", L_WU)):
        vm.wait(tag)
        for s in range(2):
            for cb in range(4):
                for hh in range(2):
                    b = FB + (s*4+cb)*4 + 2*hh
                    k(f"ds_read_b64_tr_b16 v[{b}:{b+1}], v33 offset:{base + (32*s+4*hh)*128 + cb*32}")
        vm.wait("xs")
        for s in range(2):
            k(f"s_waitcnt lgkmcnt({8*(1-s)})")
            for cb in range(4):
                b = FB + (s*4+cb)*4; d = D + (mat*4+cb)*4
                k(f"v_mfma_f32_16x16x32_bf16 v[{d}:{d+3}], v[{XA+4*s}:{XA+4*s+3}], v[{b}:{b+3}], {'0' if s == 0 else f'v[{d}:{d+3}]'}")
    k(f"v_lshl_add_u32 v34, v1, 4, s75\ns_mov_b64 exec, 0xffffffff")
    for b in range(8): k(f"ds_write_b128 v34, v[{D+4*b}:{D+4*b+3}] offset:{L_WG + b*512}")
    k(f"""
    s_mov_b64 exec, 1
    v_mov_b32 v35, 1
    ds_add_rtn_u32 v35, v7, v35 offset:16
    s_mov_b64 exec, -1
    s_waitcnt lgkmcnt(0)
    v_readfirstlane_b32 s76, v35
    s_cmp_lg_u32 s76, 3
    s_cbranch_scc1 L_gudone
    """)
    for w in range(4):
        for i in range(4): k(f"ds_read_b128 v[{D+16*w+4*i}:{D+16*w+4*i+3}], v18 offset:{L_WG + w*8192 + i*1024}")
    k(f"""
    v_lshrrev_b32 v35, 5, v1
    v_lshlrev_b32 v35, 13, v35
    v_and_b32 v36, 31, v1
    v_lshl_add_u32 v35, v36, 4, v35
    s_lshl_b32 s76, s71, 15
    s_lshl_b32 s77, s70, 11
    s_add_u32 s76, s76, s77
    s_add_u32 s76, s76, {WS_GU}
    s_add_u32 s77, s76, 16384
    v_mov_b32 v42, s{TAG}
    v_mov_b32 v43, s{TAG}
    v_mov_b32 v46, s{TAG}
    v_mov_b32 v47, s{TAG}
    s_waitcnt lgkmcnt(0)
    """)
    for i in range(4):
        for ab in range(2):
            a = D + 4*i + 2*ab; o = 40 + 4*ab
            k(pk("add", a, a, a+16)); k(pk("add", a+32, a+32, a+48)); k(pk("add", o, a, a+32))
            k(f"buffer_store_dwordx4 v[{o}:{o+3}], v35, s[{WS}:{WS+3}], s{76 + (i&1)} offen offset:{ab*1024 + (i>>1)*512} sc1")
    k("L_gudone:")
    vm.q = q0
    stamp(k, cfg, 2)
    XR, GR, DR, E1 = 84, 100, 116, 120
    AF, BF, DD = 20, 48, 76
    T = 152
    IDX, RSG = 178, 179
    k(f"""
    v_mov_b32 v{IDX}, v31
    v_mov_b32 v{RSG}, v30
    v_bfrev_b32 v2, 1
    v_and_b32 v7, 15, v1         ; cl
    v_lshlrev_b32 v11, 4, v4
    v_lshl_add_u32 v11, v3, 11, v11
    s_mul_i32 s50, s26, 28
    s_mul_i32 s51, s30, 7
    s_add_u32 s50, s50, s51
    s_lshl_b32 s50, s50, 14
    s_lshl_b32 s55, s27, 7
    s_add_u32 s50, s50, s55
    s_lshl_b32 s51, s51, 10
    s_lshl_b32 s48, s26, 7
    s_lshl_b32 s49, s30, 5
    s_add_u32 s49, s48, s49      ; R0
    v_lshlrev_b32 v12, 3, v7
    v_lshl_add_u32 v19, v6, 11, v12
    v_lshlrev_b32 v9, 3, v1
    """)
    stamp(k, cfg, 3)
    k("s_barrier")
    def e1_group(x, gp, e, b=None):
        for h in range(2):
            k(f"v_lshlrev_b32 v{T}, 16, v{x+h}\nv_and_b32 v{T+1}, 0xffff0000, v{x+h}")
            k(pk("mul", T+2, T, DR+2*h))
            k(pk("mul", T, gp, T if b is None else b+2*h, sa=1))
            k(f"""
            v_cvt_pk_bf16_f32 v{T+2}, v{T+2}, v{T+3}
            v_cvt_pk_bf16_f32 v{T}, v{T}, v{T+1}
            v_and_b32 v{T+3}, 0xffff0000, v{T+2}
            v_lshlrev_b32 v{T+2}, 16, v{T+2}
            v_and_b32 v{T+1}, 0xffff0000, v{T}
            v_lshlrev_b32 v{T}, 16, v{T}
            """)
            k(pk("fma", e+2*h, gp, T+2, T, sa=0))
    YP = 20
    TX, TG, TE, TR_, GG = 160, 162, 164, 168, 156
    GQ = 20
    def gu_loads():
        for kq in range(4):
            for ab in range(2):
                r = GQ + (kq*2+ab)*4
                k(f"buffer_load_dwordx4 v[{r}:{r+3}], v18, s[{WS}:{WS+3}], s{70 + (kq>>1)} offen offset:{(kq&1)*2048 + ab*1024} sc1")
    AG = 52
    def act_loads(tag):
        for r in range(2):
            t = f"buffer_load_dwordx4 v[{AG+4*r}:{AG+4*r+3}], v{(18, 13)[r]}, s[{WS}:{WS+3}], s72 offen offset:{r*1024} sc1"
            vm.issue(tag, t) if tag else k(t)
    mark = 0
    AUX = cfg.get('aux2', 'wd,gu,ep,act,e1,down,y').split(',')
    for i in range(13):
        if i == 0: stage2(2)
        stage2(i + 3)
        lg = ""
        WD0 = cfg.get("wd0", 1)
        if WD0 <= i < WD0 + 4 and 'wd' in AUX:
            L = k.label("wd")
            k(f"s_cmp_lg_u32 s63, {i - WD0}\ns_cbranch_scc1 {L}")
            for j in range(7):
                k(f"s_add_u32 m0, s51, {L_WD + j*1024}")
                if j: k("s_add_u32 s50, s50, 16384")
                k(f"buffer_load_dwordx4 v11, s[{WD}:{WD+3}], s50 offen{NT} lds")
            k(f"{L}:")
        if i == 1 and 'gu' in AUX:
            k(f"""
            s_lshl_b32 s70, s2, 13
            s_add_u32 s70, s70, {WS_GU}
            s_add_u32 s71, s70, 4096
            s_cmp_lt_u32 s2, 224
            s_cselect_b32 s73, s30, 1
            s_cmp_lg_u32 s73, 0
            s_cbranch_scc1 L_nogu1
            """)
            gu_loads()
            k("L_nogu1:")
            mark = vm.total
        if i == 2 and 'ep' in AUX:
            k(f"s_lshl_b32 s33, s49, 11\ns_add_u32 s33, s33, s55\ns_lshl_b32 s74, s49, 3\ns_add_u32 s74, s74, {WS_GATE}")
            vm.issue("g", f"buffer_load_dwordx2 v[{GG}:{GG+1}], v9, s[{WS}:{WS+3}], s74 offen sc1")
            vm.issue("ep", f"buffer_load_dwordx2 v[{DR}:{DR+1}], v12, s[{DK}:{DK+3}], s55 offen")
            for g_ in range(8):
                vm.issue("ep", f"buffer_load_dwordx2 v[{XR+2*g_}:{XR+2*g_+1}], v19, s[{XF}:{XF+3}], s33 offen")
                if g_ < 7: k("s_add_u32 s33, s33, 8192")
        if i == 3 and 'gu' in AUX:
            k(f"""
            s_cmp_lg_u32 s73, 0
            s_cbranch_scc1 L_nogu2
            v_mov_b32 v{T}, s{TAG}
            v_mov_b32 v{T+1}, s{TAG}
            s_mov_b32 s68, {SPIN}
            s_waitcnt vmcnt({vm.total - mark})
            L_gupoll:
            """)
            for q in range(8):
                k(f"v_cmp_ne_u64 {'vcc' if q == 0 else 's[66:67]'}, v[{GQ+4*q+2}:{GQ+4*q+3}], v[{T}:{T+1}]")
                if q: k("s_or_b64 vcc, vcc, s[66:67]")
            k("s_cbranch_vccz L_guok\ns_sub_u32 s68, s68, 1\ns_cbranch_scc1 L_guok")
            gu_loads()
            k("s_waitcnt vmcnt(0)\ns_branch L_gupoll\nL_guok:")
            for ab in range(2):
                a = GQ + 4*ab
                k(pk("add", a, a, a+8)); k(pk("add", a+16, a+16, a+24)); k(pk("add", a, a, a+16))
            for ab in range(2):
                g, u = GQ + 4*ab, GQ + 4*ab + 2
                k(f"v_cvt_pk_bf16_f32 v{g}, v{g}, v{g+1}\nv_mov_b32 v{u}, v{g}\nv_permlane32_swap_b32 v{g}, v{u}")
                k(f"""
                v_and_b32 v{g+1}, 0xffff0000, v{g}
                v_lshlrev_b32 v{g}, 16, v{g}
                v_and_b32 v{u+1}, 0xffff0000, v{u}
                v_lshlrev_b32 v{u}, 16, v{u}
                v_mul_f32 v{T+2}, {LOG2E ^ 0x80000000:#x}, v{g}
                v_mul_f32 v{T+3}, {LOG2E ^ 0x80000000:#x}, v{g+1}
                v_exp_f32 v{T+2}, v{T+2}
                v_exp_f32 v{T+3}, v{T+3}
                v_add_f32 v{T+2}, 1.0, v{T+2}
                v_add_f32 v{T+3}, 1.0, v{T+3}
                v_rcp_f32 v{T+2}, v{T+2}
                v_rcp_f32 v{T+3}, v{T+3}
                """)
                k(pk("mul", g, g, T+2))
                k(f"v_cvt_pk_bf16_f32 v{g}, v{g}, v{g+1}\nv_and_b32 v{g+1}, 0xffff0000, v{g}\nv_lshlrev_b32 v{g}, 16, v{g}")
                k(pk("mul", g, g, u))
                k(f"v_cvt_pk_bf16_f32 v{T-2+ab}, v{g}, v{g+1}")
            k(f"""
            s_lshl_b32 s33, s2, 9
            s_add_u32 s33, s33, {WS_ACT}
            s_mov_b64 exec, 0xffffffff
            buffer_store_dwordx4 v[{T-2}:{T+1}], v18, s[{WS}:{WS+3}], s33 offen sc1
            s_mov_b64 exec, -1
            L_nogu2:
            """)
        if i == 4 and 'ep' in AUX:
            vm.wait("ep")
            k(f"""
            s_mov_b32 s68, {SPIN}
            L_gpoll:
            v_cmp_ne_u32 vcc, s{TAG}, v{GG+1}
            s_and_b32 vcc_hi, vcc_hi, 0
            s_cbranch_vccz L_gok
            s_sub_u32 s68, s68, 1
            s_cbranch_scc1 L_gok
            buffer_load_dwordx2 v[{GG}:{GG+1}], v9, s[{WS}:{WS+3}], s74 offen sc1
            s_waitcnt vmcnt(0)
            s_branch L_gpoll
            L_gok:
            v_lshlrev_b32 v8, 2, v6
            """)
            for g_ in range(8): k(f"ds_bpermute_b32 v{GR+2*g_}, v8, v{GG} offset:{16*g_}")
            k(f"""
            v_and_b32 v{DR+3}, 0xffff0000, v{DR+1}
            v_lshlrev_b32 v{DR+2}, 16, v{DR+1}
            v_and_b32 v{DR+1}, 0xffff0000, v{DR}
            v_lshlrev_b32 v{DR}, 16, v{DR}
            s_mul_i32 s72, s26, 7168
            s_mul_i32 s33, s30, 1792
            s_add_u32 s72, s72, s33
            s_add_u32 s72, s72, {WS_ACT}
            v_cmp_gt_u32 vcc, 48, v1
            v_cndmask_b32 v13, v2, v18, vcc
            s_waitcnt lgkmcnt(0)
            """)
            for g_ in range(8): k(f"v_and_b32 v{GR+2*g_+1}, 0xffff0000, v{GR+2*g_}\nv_lshlrev_b32 v{GR+2*g_}, 16, v{GR+2*g_}")
        if i == 6 and 'act' in AUX: act_loads("act")
        for g_ in {5: (0, 1), 6: (2,), 7: (3, 4), 8: (5,), 10: (6,), 12: (7,)}.get(i, ()):
            if 'e1' in AUX: e1_group(XR + 2*g_, GR + 2*g_, E1 + 4*g_)
        if i == 8 and 'act' in AUX:
            vm.wait("act")
            k(f"""
            v_mov_b32 v{T}, s{TAG}
            v_mov_b32 v{T+1}, s{TAG}
            s_mov_b32 s68, {SPIN}
            L_actpoll:
            v_cmp_ne_u64 vcc, v[{AG+2}:{AG+3}], v[{T}:{T+1}]
            v_cmp_ne_u64 s[66:67], v[{AG+6}:{AG+7}], v[{T}:{T+1}]
            s_and_b32 s67, s67, 0xffff
            s_or_b64 vcc, vcc, s[66:67]
            s_cbranch_vccz L_actok
            s_sub_u32 s68, s68, 1
            s_cbranch_scc1 L_actok
            """)
            act_loads(None)
            k(f"""
            s_waitcnt vmcnt(0)
            s_branch L_actpoll
            L_actok:
            s_mul_i32 s33, s30, 112
            v_add_u32 v8, s33, v1
            v_bfe_u32 v{T}, v8, 4, 1
            v_mul_u32_u24 v{T}, {4*ACT_ROW}, v{T}
            v_and_b32 v{T+1}, 15, v8
            v_lshl_add_u32 v{T}, v{T+1}, 1, v{T}
            v_and_b32 v8, 0x1e0, v8
            v_add_u32 v8, v8, v{T}
            v_add_u32 v8, {L_ACT}, v8
            """)
            for r in range(2):
                if r: k("s_mov_b32 exec_hi, 0xffff")
                for h in range(2): k(f"ds_write_b16 v8, v{AG+4*r+h} offset:{r*64 + 2*h*ACT_ROW}\nds_write_b16_d16_hi v8, v{AG+4*r+h} offset:{r*64 + (2*h+1)*ACT_ROW}")
            k("s_mov_b32 exec_hi, -1")
            lg = "lgkmcnt(0)"
        if i == 9 and 'down' in AUX:
            k(f"""
            v_mul_u32_u24 v8, {ACT_ROW}, v4
            v_lshl_add_u32 v8, v6, 4, v8
            v_add_u32 v8, {L_ACT}, v8
            s_lshl_b32 s33, s30, 5
            v_add_u32 v5, s33, v5
            """)
            for s in range(7):
                k(f"ds_read_b128 v[{BF+4*s}:{BF+4*s+3}], v8 offset:{64*s}")
                for hh in range(2): k(f"ds_read_b64_tr_b16 v[{AF+4*s+2*hh}:{AF+4*s+2*hh+1}], v5 offset:{L_WD + (32*s+4*hh)*128}")
            for s in range(7):
                k(f"s_waitcnt lgkmcnt({min(15, 3*(6-s))})")
                k(f"v_mfma_f32_16x16x32_bf16 v[{DD}:{DD+3}], v[{BF+4*s}:{BF+4*s+3}], v[{AF+4*s}:{AF+4*s+3}], {'0' if s == 0 else f'v[{DD}:{DD+3}]'}")
            k(f"""
            v_and_b32 v8, 1, v6
            v_lshlrev_b32 v8, 1, v8
            v_lshrrev_b32 v20, 1, v6
            v_add_u32 v8, v8, v20
            v_lshlrev_b32 v8, 18, v8
            v_lshl_add_u32 v8, v7, 3, v8
            s_lshl_b32 s33, s27, 13
            s_lshl_b32 s34, s26, 9
            s_add_u32 s33, s33, s34
            s_lshl_b32 s34, s30, 7
            s_add_u32 s33, s33, s34
            s_add_u32 s33, s33, {WS_YP}
            s_add_u32 s34, s33, 131072
            v_mov_b32 v21, s{TAG}
            v_mov_b32 v23, s{TAG}
            v_mov_b32 v20, v{DD}
            v_mov_b32 v22, v{DD+1}
            s_mov_b32 exec_lo, 0
            v_mov_b32 v20, v{DD+2}
            v_mov_b32 v22, v{DD+3}
            s_mov_b32 exec_lo, -1
            """)
            vm.issue("yp", f"buffer_store_dwordx2 v[20:21], v8, s[{WS}:{WS+3}], s33 offen sc1")
            vm.issue("yp", f"buffer_store_dwordx2 v[22:23], v8, s[{WS}:{WS+3}], s34 offen sc1")
        if i == 10:
            k(f"""
            v_subrev_u32 v8, s49, v{IDX}
            v_lshlrev_b32 v{T}, v8, 1
            v_cmp_gt_u32 vcc, 32, v8
            v_cndmask_b32 v{T}, 0, v{T}, vcc
            v_or_b32_dpp v{T}, v{T}, v{T} row_shr:1 row_mask:0xf bank_mask:0xf
            v_or_b32_dpp v{T}, v{T}, v{T} row_shr:2 row_mask:0xf bank_mask:0xf
            v_or_b32_dpp v{T}, v{T}, v{T} row_shr:4 row_mask:0xf bank_mask:0xf
            v_lshlrev_b32 v8, v6, 1
            v_readlane_b32 s33, v{T}, 7
            """)
            for g_ in range(8): k(f"s_lshr_b32 s34, s33, {4*g_}\nv_and_b32 v{170+g_}, s34, v8")
        if i == 11:
            k(f"""
            s_add_u32 s33, s30, 4
            v_readlane_b32 s66, v{IDX}, s30
            v_readlane_b32 s67, v{RSG}, s30
            v_readlane_b32 s68, v{IDX}, s33
            v_readlane_b32 s69, v{RSG}, s33
            v_mov_b32 v10, s66
            v_mov_b32 v{TR_}, s67
            s_mov_b32 exec_lo, 0
            v_mov_b32 v10, s68
            v_mov_b32 v{TR_}, s69
            s_mov_b32 exec_lo, -1
            v_subrev_u32 v3, s48, v10
            v_cmp_gt_u32 vcc, 0x80, v3
            v_lshrrev_b32 v11, 5, v1
            v_lshlrev_b32 v11, 19, v11
            v_and_b32 v13, 1, v6
            v_lshl_add_u32 v11, v13, 12, v11
            v_lshl_add_u32 v11, v7, 5, v11
            s_mov_b64 s[52:53], vcc
            v_cndmask_b32 v11, v2, v11, vcc
            v_lshl_add_u32 v13, v10, 11, v12
            v_cndmask_b32 v13, v2, v13, vcc          ; x address
            v_lshlrev_b32 v12, 3, v10
            v_cndmask_b32 v12, v2, v12, vcc
            v_mov_b32 v9, s{TAG}
            v_cndmask_b32 v9, 0, v9, vcc
            s_lshl_b32 s54, s30, 17
            s_lshl_b32 s66, s27, 13
            s_add_u32 s54, s54, s66
            s_add_u32 s54, s54, {WS_YP}
            s_mov_b32 s66, {WS_GATE}
            """)
        if cfg.get("lstamps2"): stamp(k, cfg, 12 + i)
        vm.wait(f"c{i+1}", lg)
        k("s_barrier")
    def yloads(tag):
        for q in range(8):
            for h in range(2):
                r = YP + 8*q + 4*h
                t = f"buffer_load_dwordx4 v[{r}:{r+3}], v11, s[{WS}:{WS+3}], s54 offen offset:{q*512+h*16} sc1"
                vm.issue(tag, t) if tag else k(t)
    if 'y' not in AUX: k("s_mov_b64 s[52:53], 0")
    k("s_cmp_eq_u64 s[52:53], 0\ns_cbranch_scc1 L_noy")
    yloads(None)
    k(f"buffer_load_dwordx2 v[{TX}:{TX+1}], v13, s[{XF}:{XF+3}], s55 offen")
    k(f"buffer_load_dword v{TG}, v12, s[{WS}:{WS+3}], s66 offen sc1")
    k(f"""
    s_waitcnt vmcnt({vm.count_after('c14') + 18})
    s_barrier
    s_waitcnt vmcnt(18)
    s_barrier
    s_branch L_yjoin
    L_noy:
    """)
    vm.wait("c14"); k("s_barrier")
    vm.wait("c15"); k("s_barrier")
    k("L_yjoin:")
    k(f"""
    v_lshlrev_b32 v14, 4, v7
    v_lshl_add_u32 v15, v10, 12, v14
    v_lshl_add_u32 v14, v6, 12, v14
    v_xor_b32 v16, v7, v6
    v_lshlrev_b32 v16, 4, v16
    v_lshl_add_u32 v16, v6, 8, v16
    s_lshl_b32 s33, s30, 13
    s_add_u32 s33, s33, {L_STG}
    v_add_u32 v16, s33, v16
    v_xor_b32 v17, 64, v16
    v_and_b32 v8, 7, v3
    v_xor_b32 v8, v8, v7
    v_lshlrev_b32 v8, 4, v8
    v_and_b32 v5, 0x7f, v3
    v_lshl_add_u32 v8, v5, 8, v8
    s_lshl_b32 s67, s27, 8
    s_lshl_b32 s69, s49, 12
    s_add_u32 s69, s69, s67
    """)
    stamp(k, cfg, 4)
    k(f"s_cmp_eq_u64 s[52:53], 0\ns_cbranch_scc1 L_notok\ns_mov_b32 s68, {SPIN}\nL_ypoll:\ns_waitcnt vmcnt(0)")
    k(f"v_xor_b32 v{T}, v9, v{YP+1}")
    for q in range(1, 32): k(f"v_xor_b32 v{T+1}, v9, v{YP+2*q+1}\nv_or_b32 v{T}, v{T}, v{T+1}")
    k(f"v_cmp_ne_u32 vcc, 0, v{T}\ns_cbranch_vccz L_yok\ns_sub_u32 s68, s68, 1\ns_cbranch_scc1 L_yok")
    yloads(None)
    k("s_branch L_ypoll\nL_yok:")
    for q in range(1, 8):
        for x in range(4): k(f"v_add_f32 v{YP+2*x}, v{YP+2*x}, v{YP+8*q+2*x}")
    for x in range(4): k(f"v_mov_b32 v{YP+2*x+1}, v{YP+2*x}")
    for x in range(4): k(f"v_permlane16_swap_b32 v{YP+2*x}, v{YP+2*x+1}")
    for x in range(4): k(f"v_add_f32 v{YP+8+x}, v{YP+2*x}, v{YP+2*x+1}")
    Y = YP + 8
    k(f"v_and_b32 v{TG+1}, 0xffff0000, v{TG}\nv_lshlrev_b32 v{TG}, 16, v{TG}")
    for h in range(2):
        y = Y + 2*h
        k(f"""
        v_cvt_pk_bf16_f32 v{y}, v{y}, v{y+1}
        v_and_b32 v{y+1}, 0xffff0000, v{y}
        v_lshlrev_b32 v{y}, 16, v{y}
        v_mul_f32 v{y}, v{y}, v{TR_}
        v_mul_f32 v{y+1}, v{y+1}, v{TR_}
        v_cvt_pk_bf16_f32 v{y}, v{y}, v{y+1}
        v_and_b32 v{y+1}, 0xffff0000, v{y}
        v_lshlrev_b32 v{y}, 16, v{y}
        v_lshlrev_b32 v{T}, 16, v{TX+h}
        v_and_b32 v{T+1}, 0xffff0000, v{TX+h}
        """)
        k(pk("add", y, y, T))
        k(f"v_cvt_pk_bf16_f32 v{y}, v{y}, v{y+1}\nv_and_b32 v{y+1}, 0xffff0000, v{y}\nv_lshlrev_b32 v{y}, 16, v{y}")
    e1_group(TX, TG, TE, b=Y)
    k("L_notok:")
    stamp(k, cfg, 5)
    k("s_barrier")
    A = 20
    for g_ in range(8): k(f"ds_read_b128 v[{A+4*g_}:{A+4*g_+3}], v{16 + (g_ & 1)} offset:{g_*1024}")
    k(f"ds_read_b128 v[{A+32}:{A+35}], v8 offset:{L_STG}")
    ONT = " nt" if cfg.get("nto") else ""
    for g_ in range(8):
        k(f"v_cmp_eq_u32 vcc, 0, v{170+g_}\ns_waitcnt lgkmcnt({8-g_})")
        for h in range(2): k(pk("fma", A+4*g_+2*h, GR+2*g_, A+4*g_+2*h, E1+4*g_+2*h, sa=0))
        k(f"s_mov_b64 exec, vcc\nbuffer_store_dwordx4 v[{A+4*g_}:{A+4*g_+3}], v14, s[{OS}:{OS+3}], s69 offen{ONT}\ns_mov_b64 exec, -1\ns_add_u32 s69, s69, 16384")
    k(f"s_waitcnt lgkmcnt(0)")
    for h in range(2): k(pk("fma", A+32+2*h, TG, A+32+2*h, TE+2*h, sa=0))
    k(f"""
    s_and_b32 exec_lo, s52, 0xffff
    s_and_b32 exec_hi, s53, 0xffff
    s_cbranch_execz L_aend
    buffer_store_dwordx4 v[{A+32}:{A+35}], v15, s[{OS}:{OS+3}], s67 offen{ONT}
    L_aend:
    """)
    stamp(k, cfg, 6)
    if cfg.get("stamps"): k("s_waitcnt vmcnt(0)"); stamp(k, cfg, 7)
    stamp_flush(k, cfg, 0)
    k("s_endpgm")

def compute(k, cfg):
    LRS, LIS, DTS, WS, ES, HS, XS, RS, GS, CS = 8, 12, 16, 20, 36, 40, 64, 68, 72, 76
    LR, LI, L8R, L8I, L16R, L16I, SR_, SI_, T1, T2 = 10, 12, 14, 16, 18, 20, 22, 24, 26, 28
    FR, ACC, GR = 32, 96, 160
    TB = lambda tp, cb: 200 + (tp*2+cb)*2
    WRs = lambda cb: 232 + 2*cb
    WIs = lambda cb: 236 + 2*cb
    VR_, VI_, L5R, L5I = 240, 242, 244, 246
    EXP = [248, 250, 252, 254]
    X0, WR, GW, GL, GH, AR, AZ, T0, ONE = 160, 176, 184, 64, 72, 80, 82, 84, 92
    RAWR, RAWI = 32, 34
    k(f"""
    s_load_dwordx2 s[{XS}:{XS+1}], s[0:1], {KA['x']}
    s_load_dwordx2 s[{RS}:{RS+1}], s[0:1], {KA['w_r']}
    s_load_dwordx2 s[{GS}:{GS+1}], s[0:1], {KA['gate_w']}
    s_load_dwordx2 s[{LRS}:{LRS+1}], s[0:1], {KA['lam_re']}
    s_load_dwordx2 s[{LIS}:{LIS+1}], s[0:1], {KA['lam_im']}
    s_load_dwordx2 s[{DTS}:{DTS+1}], s[0:1], {KA['log_dt']}
    s_load_dwordx2 s[{WS}:{WS+1}], s[0:1], {KA['ws']}
    s_load_dwordx4 s[{CS}:{CS+3}], s[0:1], {KA['c_re']}
    s_lshr_b32 s30, s29, 1       ; wm
    s_and_b32 s31, s29, 1        ; wn
    v_and_b32 v6, 15, v1         ; j
    v_lshrrev_b32 v7, 4, v1      ; q
    s_lshl_b32 s32, s27, 6
    s_lshl_b32 s33, s31, 5
    s_add_u32 s32, s32, s33
    s_lshl_b32 s32, s32, 1
    v_lshlrev_b32 v8, 1, v6
    v_lshlrev_b32 v196, 4, v1
    s_lshl_b32 s46, s26, 7
    s_lshl_b32 s47, s27, 3
    s_add_u32 s46, s46, s47
    s_lshl_b32 s47, s29, 1
    s_add_u32 s46, s46, s47
    s_lshl_b32 s48, s46, 11
    s_mov_b32 s{XS+2}, {SZ['x']}
    s_mov_b32 s{XS+3}, 0x20000
    """)
    for s in (LRS, LIS, DTS, RS, GS): k(f"s_mov_b32 s{s+2}, 2048\ns_mov_b32 s{s+3}, 0x20000")
    k("s_waitcnt lgkmcnt(0)")
    for cb in range(2):
        k(f"buffer_load_ushort v{T1+cb}, v8, s[{DTS}:{DTS+3}], s32 offen offset:{cb*32}")
        k(f"buffer_load_ushort v{RAWR+cb}, v8, s[{LRS}:{LRS+3}], s32 offen offset:{cb*32}")
        k(f"buffer_load_ushort v{RAWI+cb}, v8, s[{LIS}:{LIS+3}], s32 offen offset:{cb*32}")
    for h in range(2):
        k(f"buffer_load_dwordx4 v[{GW+4*h}:{GW+4*h+3}], v196, s[{GS}:{GS+3}], 0 offen offset:{h*1024}")
        k(f"buffer_load_dwordx4 v[{WR+4*h}:{WR+4*h+3}], v196, s[{RS}:{RS+3}], 0 offen offset:{h*1024}")
    for r in range(2):
        for h in range(2):
            k(f"buffer_load_dwordx4 v[{X0+8*r+4*h}:{X0+8*r+4*h+3}], v196, s[{XS}:{XS+3}], s48 offen offset:{r*2048+h*1024}")
    if cfg.get("codepf", 1):
        k(f"""
        s_getpc_b64 s[{LRS}:{LRS+1}]
        Lc_pc:
        s_sub_u32 s{LRS}, s{LRS}, Lc_pc - {NAME}_kernel
        s_subb_u32 s{LRS+1}, s{LRS+1}, 0
        s_mov_b32 s{LRS+2}, L_end - {NAME}_kernel
        s_lshl_b32 s33, s25, 10
        s_cmp_lg_u32 s29, 0
        s_cbranch_scc1 Lc_nopf
        buffer_load_dwordx4 v[192:195], v196, s[{LRS}:{LRS+3}], s33 offen
        Lc_nopf:
        """)
    k(f"""
    v_lshrrev_b32 v8, 1, v6
    v_xor_b32 v8, v8, v7
    v_lshlrev_b32 v8, 4, v8
    v_lshl_add_u32 v8, v6, 7, v8
    s_lshl_b32 s33, s30, 13
    s_lshl_b32 s34, s31, 13
    s_add_u32 s34, s34, 16384
    v_add_u32 v2, s33, v8
    v_add_u32 v4, s34, v8
    v_xor_b32 v3, 64, v2
    v_xor_b32 v5, 64, v4
    s_lshl_b32 s33, s27, 14
    s_add_u32 s33, s33, {WS_E}
    s_add_u32 s{ES}, s{WS}, s33
    s_addc_u32 s{ES+1}, s{WS+1}, 0
    s_mov_b32 s{ES+2}, 16384
    s_mov_b32 s{ES+3}, 0x20000
    s_add_u32 s33, s27, s26
    s_and_b32 s33, s33, 15
    s_lshl_b32 s33, s33, 2
    s_add_u32 s33, s33, s31
    s_lshl_b32 s33, s33, 3
    s_lshl_b32 s34, s26, 9
    s_add_u32 s33, s33, s34
    s_lshl_b32 s34, s30, 2
    s_add_u32 s33, s33, s34
    s_lshl_b32 s33, s33, 10
    s_add_u32 s33, s33, {WS_H}
    s_add_u32 s{HS}, s{WS}, s33
    s_addc_u32 s{HS+1}, s{WS+1}, 0
    s_mov_b32 s{HS+2}, {2*8192 + 4096}
    s_mov_b32 s{HS+3}, 0x20000
    s_lshl_b32 s33, s27, 6
    s_lshl_b32 s34, s30, 5
    s_add_u32 s33, s33, s34
    s_lshl_b32 s33, s33, 11
    s_cmp_eq_u32 s31, 1
    s_cselect_b32 s{CS}, s{CS+2}, s{CS}
    s_cselect_b32 s{CS+1}, s{CS+3}, s{CS+1}
    s_add_u32 s{CS}, s{CS}, s33
    s_addc_u32 s{CS+1}, s{CS+1}, 0
    s_sub_u32 s{CS+2}, {SZ['c_re']}, s33
    s_mov_b32 s{CS+3}, 0x20000
    """)
    for r in range(64): k(f"v_mov_b32 v{ACC+r}, 0")
    k("s_waitcnt vmcnt(8)")
    for cb in range(2):
        k(f"""
        v_lshlrev_b32 v{T1+cb}, 16, v{T1+cb}
        v_lshlrev_b32 v{RAWR+cb}, 16, v{RAWR+cb}
        v_lshlrev_b32 v{RAWI+cb}, 16, v{RAWI+cb}
        v_mul_f32 v{T1+cb}, {LOG2E:#x}, v{T1+cb}
        v_exp_f32 v{T1+cb}, v{T1+cb}
        """)
    k(f"v_cvt_pk_bf16_f32 v{T1}, v{T1}, v{T1+1}\nv_and_b32 v{T1+1}, 0xffff0000, v{T1}\nv_lshlrev_b32 v{T1}, 16, v{T1}")
    k(pk("mul", T2, T1, RAWI)); k(pk("mul", T1, T1, RAWR))
    for cb in range(2):
        k(f"""
        v_mul_f32 v{T1+cb}, {LOG2E:#x}, v{T1+cb}
        v_mul_f32 v{T2+cb}, {INV2PI:#x}, v{T2+cb}
        v_exp_f32 v{T1+cb}, v{T1+cb}
        v_rndne_f32 v{LR+cb}, v{T2+cb}
        v_sub_f32 v{T2+cb}, v{T2+cb}, v{LR+cb}
        v_cos_f32 v{LR+cb}, v{T2+cb}
        v_sin_f32 v{LI+cb}, v{T2+cb}
        """)
    k(pk("mul", LR, LR, T1)); k(pk("mul", LI, LI, T1))
    csq(k, L8R, L8I, LR, LI, T1); csq(k, L16R, L16I, L8R, L8I, T1); csq(k, L8R, L8I, L16R, L16I, T1); csq(k, L16R, L16I, L8R, L8I, T1)
    A_R, A_I, B_R, B_I, WR_, WI_, S2R, S2I, TT = 36, 38, 40, 42, 44, 46, 48, 50, 52
    k("s_lshl_b32 s33, s30, 2\nv_add_u32 v8, s33, v7")
    def sel_one(dr, di, sr, si, bit, v):
        k(f"v_and_b32 v9, {bit}, v{v}\nv_cmp_ne_u32 vcc, 0, v9")
        for cb in range(2): k(f"v_cndmask_b32 v{dr+cb}, 1.0, v{sr+cb}, vcc\nv_cndmask_b32 v{di+cb}, 0, v{si+cb}, vcc")
    sel_one(WR_, WI_, L16R, L16I, 1, 8)
    csq(k, A_R, A_I, L16R, L16I, TT)
    sel_one(SR_, SI_, A_R, A_I, 2, 8)
    cmul_cb(k, VR_, VI_, WR_, WI_, SR_, SI_)
    csq(k, B_R, B_I, A_R, A_I, TT)
    sel_one(SR_, SI_, B_R, B_I, 4, 8)
    cmul_cb(k, WR_, WI_, VR_, VI_, SR_, SI_)
    csq(k, A_R, A_I, B_R, B_I, TT)
    sel_one(S2R, S2I, A_R, A_I, 1, 7)
    csq(k, B_R, B_I, A_R, A_I, TT)
    sel_one(SR_, SI_, B_R, B_I, 2, 7)
    cmul_cb(k, VR_, VI_, S2R, S2I, SR_, SI_)
    csq(k, L5R, L5I, B_R, B_I, TT)
    cmul_cb(k, A_R, A_I, WR_, WI_, L8R, L8I)
    for cb in range(2):
        k(f"v_mov_b32 v{WRs(cb)}, v{WR_+cb}\nv_mov_b32 v{WRs(cb)+1}, v{A_R+cb}\nv_mov_b32 v{WIs(cb)}, v{WI_+cb}\nv_mov_b32 v{WIs(cb)+1}, v{A_I+cb}")
    for cb in range(2):
        k(f"v_max_f32 v{T1+cb}, |v{RAWR+cb}|, |v{RAWI+cb}|\nv_rcp_f32 v{T2+cb}, v{T1+cb}")
    k(pk("mul", RAWR, RAWR, T2)); k(pk("mul", RAWI, RAWI, T2))
    k(pk("mul", T2, RAWR, RAWR)); k(pk("fma", T2, RAWI, RAWI, T2)); k(pk("mul", T2, T2, T1))
    for cb in range(2): k(f"v_rcp_f32 v{T2+cb}, v{T2+cb}\nv_add_f32 v{T1+cb}, -1.0, v{LR+cb}")
    k(pk("add", T2, T2, T2))
    k(pk("mul", SR_, T1, RAWR)); k(pk("mul", SI_, LI, RAWR)); k(pk("fma", SR_, LI, RAWI, SR_)); k(pk("fma", SI_, T1, RAWI, SI_, na=3))
    k(pk("mul", SR_, SR_, T2)); k(pk("mul", SI_, SI_, T2))
    for cb in range(2):
        k(f"v_mov_b32 v{T1+2*cb}, v{SR_+cb}\nv_mov_b32 v{T1+2*cb+1}, v{SI_+cb}")
    for tp in range(8):
        for cb in range(2):
            src = T1 + 2*cb if tp == 0 else TB(tp-1, cb)
            k(pk("mul", TB(tp,cb), LR, src, sa=cb))
        for cb in range(2):
            src = T1 + 2*cb if tp == 0 else TB(tp-1, cb)
            k(pk("fma", TB(tp,cb), LI, src, TB(tp,cb), sa=cb, sb='x', nb=1))
    k(f"v_mov_b32 v{ONE}, 0x3f803f80\nv_mov_b32 v{AR}, 0\nv_mov_b32 v{AR+1}, 0\nv_mov_b32 v{AZ}, 0\nv_mov_b32 v{AZ+1}, 0\ns_waitcnt vmcnt(0)")
    for q in range(8): k(f"v_and_b32 v{GL+q}, 0xffff, v{GW+q}\nv_and_b32 v{GH+q}, 0xffff0000, v{GW+q}")
    for i in range(8):
        t = T0 + 4*(i & 1)
        for r in range(2):
            k(f"v_dot2_f32_bf16 v{t+2*r}, v{X0+8*r+i}, v{GL+i}, 0\nv_dot2_f32_bf16 v{t+2*r+1}, v{X0+8*r+i}, v{GH+i}, 0")
        for r in range(2): k(f"v_dot2c_f32_bf16 v{AR+r}, v{X0+8*r+i}, v{WR+i}")
        if i:
            for r in range(2): k(f"v_dot2c_f32_bf16 v{AZ+r}, v{T0+4*((i-1)&1)+2*r}, v{ONE}")
        for r in range(2): k(f"v_cvt_pk_bf16_f32 v{t+2*r}, v{t+2*r}, v{t+2*r+1}")
    for r in range(2): k(f"v_dot2c_f32_bf16 v{AZ+r}, v{T0+4+2*r}, v{ONE}")
    wave_sum(k, [AR, AR+1, AZ, AZ+1])
    k(f"""
    v_readlane_b32 s33, v{AR+1}, 63
    v_readlane_b32 s34, v{AZ+1}, 63
    v_sub_u32 v{T0+2}, 63, v1
    v_add_u32 v{T0+3}, s46, v{T0+2}
    v_sub_u32 v{T0+3}, 2047, v{T0+3}
    v_add_u32 v{T0+2}, s47, v{T0+2}
    v_lshlrev_b32 v{T0+2}, 3, v{T0+2}
    v_add_u32 v{T0+2}, {L_RT}, v{T0+2}
    v_writelane_b32 v{AR}, s33, 62
    v_writelane_b32 v{AZ}, s34, 62
    v_cvt_pk_bf16_f32 v{AR}, v{AR}, v{AZ}
    v_and_b32 v{AZ}, 0xffff0000, v{AR}
    v_lshlrev_b32 v{AR}, 16, v{AR}
    v_ashrrev_i32 v{T0}, 31, v{AR}
    v_or_b32 v{T0}, 0x80000000, v{T0}
    v_xor_b32 v{T0}, v{T0}, v{AR}
    v_and_b32 v{T0}, 0xffff0000, v{T0}
    v_or_b32 v{T0}, v{T0}, v{T0+3}           ; key
    """)
    sigmoid_bf16(k, T0+4, AZ, T0+3)
    k(f"""
    v_sub_f32 v{T0+5}, 1.0, v{T0+4}
    v_cvt_pk_bf16_f32 v{T0+1}, v{T0+4}, v{T0+5}
    s_mov_b32 exec_lo, 0
    s_mov_b32 exec_hi, 0xc0000000
    ds_write_b64 v{T0+2}, v[{T0}:{T0+1}]
    s_mov_b64 exec, -1
    s_waitcnt lgkmcnt(0)
    """)
    stamp(k, cfg, 11)
    if cfg.get("prio"): k(f"s_setprio {cfg['prio']}")
    k("s_barrier")
    stamp(k, cfg, 0)
    def rd(sub, fs, slot):
        b = FR + 32*fs; o = slot*32768
        A = [f"ds_read_b128 v[{b+4*m}:{b+4*m+3}], v{2+sub} offset:{o+m*2048}" for m in range(4)]
        B = [f"ds_read_b128 v[{b+16+4*m}:{b+16+4*m+3}], v{4+sub} offset:{o+m*2048}" for m in range(4)]
        return [A[0], B[0], B[1], B[2], B[3], A[1], A[2], A[3]]
    def mm(fs):
        b = FR + 32*fs; out = []
        for mb in range(4):
            for x in (range(4) if mb % 2 == 0 else range(3, -1, -1)):
                ri, cb = x >> 1, x & 1
                a = ACC + (cb*2+ri)*16 + mb*4
                out.append(f"v_mfma_f32_16x16x32_bf16 v[{a}:{a+3}], v[{b+4*mb}:{b+4*mb+3}], v[{b+16+4*x}:{b+16+4*x+3}], v[{a}:{a+3}]")
        return out
    for l in rd(0, 0, 0): k(l)
    k("s_mov_b32 s35, 0\nLc_loop:")
    BAR = cfg.get("bar1", 1)
    for half in range(2):
        m = mm(0); r = rd(1, 1, half)
        k("s_waitcnt lgkmcnt(0)")
        for i in range(16):
            k(m[i])
            if i < 8: k(r[i])
        m = mm(1)
        if half == 0: r = rd(0, 0, 1)
        else: r = rd(0, 0, 0)
        k("s_waitcnt lgkmcnt(0)")
        for i in range(16):
            k(m[i])
            if half == 1 and i == 0:
                for a in range(2, 6): k(f"v_xor_b32 v{a}, 0x10000, v{a}")
            if i == BAR - 1:
                if half == 0: k("s_barrier")
                else: k("s_cmp_eq_u32 s35, 7\ns_cbranch_scc1 Lc_nobar\ns_barrier\nLc_nobar:")
            if BAR <= i < BAR + 8: k(r[i - BAR])
    stamp_loop(k, cfg, 12, 35)
    k("s_add_u32 s35, s35, 1\ns_cmp_lt_u32 s35, 8\ns_cbranch_scc1 Lc_loop")
    stamp(k, cfg, 1)
    U = lambda cb, ri, tp: ACC + (cb*2+ri)*16 + 2*tp
    k(f"""
    s_sub_u32 s33, s26, 1
    v_sub_u32 v8, s33, v7
    v_lshlrev_b32 v8, 10, v8
    v_lshl_add_u32 v8, v6, 4, v8
    s_lshl_b32 s33, s31, 9
    v_add_u32 v192, s33, v8
    v_add_u32 v193, -4096, v192
    v_add_u32 v194, -8192, v192
    v_add_u32 v195, -12288, v192
    v_mov_b32 v9, {L_FLAG}
    ds_read_b32 v30, v9 offset:24
    """)
    def lb_loads():
        for i in range(4):
            for cb in range(2):
                g = GR + (i*2+cb)*4
                k(f"buffer_load_dwordx4 v[{g}:{g+3}], v{192+i}, s[{ES}:{ES+3}], 0 offen offset:{cb*256} sc1")
    lb_loads()
    k("s_waitcnt lgkmcnt(0)\nv_readfirstlane_b32 s44, v30")
    for tp in range(1, 8):
        for ri_first in (0,):
            for cb in range(2): k(pk("fma", U(cb,0,tp), LR, U(cb,0,tp-1), U(cb,0,tp), sa=cb))
            for cb in range(2): k(pk("fma", U(cb,1,tp), LR, U(cb,1,tp-1), U(cb,1,tp), sa=cb))
            for cb in range(2): k(pk("fma", U(cb,0,tp), LI, U(cb,1,tp-1), U(cb,0,tp), sa=cb, na=3))
            for cb in range(2): k(pk("fma", U(cb,1,tp), LI, U(cb,0,tp-1), U(cb,1,tp), sa=cb))
    for cb in range(2):
        e = T1 + 2*cb; r0, i0 = U(cb,0,7), U(cb,1,7)
        k(f"""
        v_fma_f32 v{e}, v{L8R+cb}, v{r0}, v{r0+1}
        v_fma_f32 v{e+1}, v{L8R+cb}, v{i0}, v{i0+1}
        v_fma_f32 v{e}, -v{L8I+cb}, v{i0}, v{e}
        v_fma_f32 v{e+1}, v{L8I+cb}, v{r0}, v{e+1}
        """)
    k(f"""
    s_lshl_b32 s33, s31, 8
    s_add_u32 s33, s33, {L_EX}
    v_lshl_add_u32 v30, v6, 3, s33          ; e[0][ch]
    s_lshl_b32 s33, s30, 11
    v_lshl_add_u32 v31, v7, 9, s33
    v_add_u32 v31, v31, v30                 ; e[seg][ch]
    ds_write_b64 v31, v[{T1}:{T1+1}]
    ds_write_b64 v31, v[{T1+2}:{T1+3}] offset:128
    s_lshl_b32 s33, s29, 2
    v_add_u32 v31, s33, v9
    s_xor_b32 s33, s33, 8
    v_add_u32 v9, s33, v9                   ; partner's flag
    v_mov_b32 v8, 1
    ds_write_b32 v31, v8
    s_mov_b32 s45, {SPIN}
    Lc_expoll:
    ds_read_b32 v8, v9
    """)
    EV = lambda s, cb: FR + (s*2+cb)*2
    for s in range(8):
        for cb in range(2): k(f"ds_read_b64 v[{EV(s,cb)}:{EV(s,cb)+1}], v30 offset:{s*512+cb*128}")
    k(f"""
    s_waitcnt lgkmcnt(0)
    v_readfirstlane_b32 s33, v8
    s_sub_u32 s45, s45, 1
    s_cbranch_scc1 Lc_exok
    s_cmp_eq_u32 s33, 0
    s_cbranch_scc1 Lc_expoll
    Lc_exok:
    """)
    for s in range(1, 8):
        for cb in range(2): cfma_ri(k, EV(s,cb), L16R, L16I, cb, EV(s-1,cb), EV(s,cb), EV(s,cb))
    k(f"""
    s_cmp_eq_u32 s30, 0
    s_cbranch_scc1 Lc_nopub
    s_cmp_eq_u32 s26, 15
    s_cbranch_scc1 Lc_nopub
    v_mov_b32 v{T1}, v{EV(7,0)}
    v_mov_b32 v{T1+1}, v{EV(7,0)+1}
    v_mov_b32 v{T1+2}, s44
    v_mov_b32 v{T1+3}, s44
    s_lshl_b32 s33, s26, 10
    s_lshl_b32 s34, s31, 9
    s_add_u32 s33, s33, s34
    v_lshlrev_b32 v8, 4, v1
    s_mov_b64 exec, 0xffff0000
    v_mov_b32 v{T1}, v{EV(7,1)}
    v_mov_b32 v{T1+1}, v{EV(7,1)+1}
    s_mov_b64 exec, 0xffffffff
    buffer_store_dwordx4 v[{T1}:{T1+3}], v8, s[{ES}:{ES+3}], s33 offen sc1
    s_mov_b64 exec, -1
    Lc_nopub:
    """)
    stamp(k, cfg, 2)
    PL = FR + 28
    k(f"v_mov_b32 v{PL}, 0\nv_mov_b32 v{PL+1}, 0\nv_mov_b32 v{PL+2}, 0\nv_mov_b32 v{PL+3}, 0")
    k("s_lshl_b32 s33, s30, 2\nv_add_u32 v8, s33, v7")
    for s in range(1, 8):
        k(f"v_cmp_eq_u32 vcc, {s}, v8")
        for x in range(4): k(f"v_cndmask_b32 v{PL+x}, v{PL+x}, v{EV(s-1,0)+x}, vcc")
    PRs = lambda cb: FR + 4*cb
    PIs = lambda cb: FR + 4*cb + 2
    for cb in range(2):
        p = PL + 2*cb; r0, i0 = U(cb,0,7), U(cb,1,7)
        k(f"""
        v_fma_f32 v{PRs(cb)+1}, v{L8R+cb}, v{p}, v{r0}
        v_fma_f32 v{PIs(cb)+1}, v{L8R+cb}, v{p+1}, v{i0}
        v_mov_b32 v{PRs(cb)}, v{p}
        v_mov_b32 v{PIs(cb)}, v{p+1}
        v_fma_f32 v{PRs(cb)+1}, -v{L8I+cb}, v{p+1}, v{PRs(cb)+1}
        v_fma_f32 v{PIs(cb)+1}, v{L8I+cb}, v{p}, v{PIs(cb)+1}
        """)
    for tp in range(8):
        for cb in range(2):
            t = T1 + 2*cb; R, I = U(cb,0,tp), U(cb,1,tp)
            k(pk("mul", t, SI_, R, sa=cb, na=3)); k(pk("mul", R, SR_, R, sa=cb))
            k(pk("fma", R, SI_, I, R, sa=cb, na=3)); k(pk("fma", I, SR_, I, t, sa=cb, na=3))
    k(f"v_mov_b32 v9, s44")
    for i in range(4):
        k(f"v_cmp_le_i32 vcc, 0, v{192+i}\nv_cndmask_b32 v{EXP[i]}, 0, v9, vcc\nv_cndmask_b32 v{EXP[i]+1}, 0, v9, vcc")
    k(f"""
    s_lshl_b32 s33, s29, 12
    s_add_u32 s33, s33, {L_TR}
    v_lshrrev_b32 v8, 1, v6
    v_and_b32 v8, 4, v8
    v_and_b32 v9, 7, v6
    v_xor_b32 v8, v8, v9                    ; g(j)
    v_lshlrev_b32 v9, 1, v7
    v_xor_b32 v8, v8, v9
    v_lshlrev_b32 v8, 4, v8
    v_lshl_add_u32 v8, v6, 7, v8
    v_add_u32 v2, s33, v8
    v_xor_b32 v3, 16, v2
    v_bfe_u32 v8, v1, 2, 2                  ; r
    v_bfe_u32 v9, v1, 1, 1
    v_xor_b32 v9, v9, v8
    v_and_b32 v4, 1, v7
    v_lshlrev_b32 v4, 2, v4
    v_xor_b32 v9, v9, v4
    v_lshlrev_b32 v9, 4, v9
    v_lshl_add_u32 v8, v7, 3, v8
    v_lshl_add_u32 v9, v8, 7, v9
    v_and_b32 v8, 1, v1
    v_lshl_add_u32 v9, v8, 3, v9
    v_add_u32 v4, s33, v9
    v_xor_b32 v5, 32, v4
    v_xor_b32 v30, 64, v4
    v_xor_b32 v31, 96, v4
    s_mov_b32 s45, {SPIN}
    """)
    if cfg.get("dbgregs"):
        k(f"s_mov_b32 s{WS+2}, {SZ['ws']}\ns_mov_b32 s{WS+3}, 0x20000\ns_lshl_b32 s34, s2, 2\ns_add_u32 s34, s34, s29\ns_lshl_b32 s34, s34, 14\ns_add_u32 s34, s34, {WS_STAMP}\nv_lshlrev_b32 v197, 2, v1")
        for i, r in enumerate(cfg["dbgregs"]):
            if i and i % 16 == 0: k("s_add_u32 s34, s34, 4096")
            k(f"buffer_store_dword v{r}, v197, s[{WS}:{WS+3}], s34 offen offset:{(i%16)*256}")
    stamp(k, cfg, 3)
    k("Lc_lbpoll:\ns_waitcnt vmcnt(0)")
    for i in range(4):
        for cb in range(2):
            g = GR + (i*2+cb)*4
            k(f"v_cmp_ne_u64 s[{46+2*(i*2+cb)}:{47+2*(i*2+cb)}], v[{g+2}:{g+3}], v[{EXP[i]}:{EXP[i]+1}]")
    k("""
    s_or_b64 s[46:47], s[46:47], s[48:49]
    s_or_b64 s[50:51], s[50:51], s[52:53]
    s_or_b64 s[54:55], s[54:55], s[56:57]
    s_or_b64 s[58:59], s[58:59], s[60:61]
    s_or_b64 s[46:47], s[46:47], s[50:51]
    s_or_b64 s[54:55], s[54:55], s[58:59]
    s_or_b64 s[46:47], s[46:47], s[54:55]
    s_cbranch_scc0 Lc_lbok
    s_sub_u32 s45, s45, 1
    s_cbranch_scc1 Lc_lbok
    """)
    lb_loads()
    k("s_branch Lc_lbpoll\nLc_lbok:")
    stamp(k, cfg, 4)
    G = lambda i, cb: GR + (i*2+cb)*4
    for i in (2, 1, 0):
        for cb in range(2): cfma_ri(k, G(i,cb), L5R, L5I, cb, G(i+1,cb), G(i,cb), G(i,cb))
    H = lambda cb: G(1, cb)
    for cb in range(2): k(pk("mul", H(cb), VR_, G(0,cb), sa=cb))
    for cb in range(2): k(pk("fma", H(cb), VI_, G(0,cb), H(cb), sa=cb, sb='x', nb=1))
    for op in ("v_permlane16_swap_b32", "v_permlane32_swap_b32"):
        for cb in range(2): k(f"v_mov_b32 v{H(cb)+2}, v{H(cb)}\nv_mov_b32 v{H(cb)+3}, v{H(cb)+1}")
        for cb in range(2): k(f"{op} v{H(cb)}, v{H(cb)+2}\n{op} v{H(cb)+1}, v{H(cb)+3}")
        for cb in range(2): k(pk("add", H(cb), H(cb), H(cb)+2))
    for cb in range(2):
        k(pk("fma", PRs(cb), WRs(cb), H(cb), PRs(cb), sb=0)); k(pk("fma", PIs(cb), WRs(cb), H(cb), PIs(cb), sb=1))
    for cb in range(2):
        k(pk("fma", PRs(cb), WIs(cb), H(cb), PRs(cb), sb=1, nb=3)); k(pk("fma", PIs(cb), WIs(cb), H(cb), PIs(cb), sb=0))
    PK = GR
    RA = {0: 4, 2: 5, 4: 30, 6: 31}
    k(f"s_mov_b32 s33, {2*8192}")
    def hstores(ri):
        for qq in range(4):
            b = ACC + 32*ri + 4*qq
            k(f"s_waitcnt lgkmcnt({2*(1-ri) + 2*(3-qq)})")
            k(f"buffer_store_dwordx4 v[{b}:{b+3}], v196, s[{HS}:{HS+3}], {'s33' if ri else '0'} offen offset:{qq*1024} sc1")
    for ri in range(2):
        for cb in range(2):
            for tp in range(8):
                R, I, T = U(cb,0,tp), U(cb,1,tp), TB(tp,cb)
                if ri == 0: k(pk("fma", R, T, PRs(cb), R, sa=0)); k(pk("fma", R, T, PIs(cb), R, sa=1, na=3))
                else: k(pk("fma", I, T, PIs(cb), I, sa=0, na=3)); k(pk("fma", I, T, PRs(cb), I, sa=1, na=3))
            for sub in range(2):
                b = PK + ((ri*2+cb)*2+sub)*4
                for x in range(4): k(f"v_cvt_pk_bf16_f32 v{b+x}, v{U(cb,ri,2*x)+sub}, v{U(cb,ri,2*x+1)+sub}")
                k(f"ds_write_b128 v{2+sub}, v[{b}:{b+3}] offset:{cb*16*128}")
            if ri == 1 and cb == 0: hstores(0)
        for qq in range(4):
            b = ACC + 32*ri + 4*qq
            for hh in range(2): k(f"ds_read_b64_tr_b16 v[{b+2*hh}:{b+2*hh+1}], v{RA[(2*qq) ^ (4*hh)]} offset:{4*hh*128}")
    hstores(1)
    stamp(k, cfg, 5)
    CF, HR, AC2 = 8, 40, 104
    FS = 44
    k(f"""
    s_lshl_b32 s33, s26, 13
    s_add_u32 s33, s33, {WS_HF}
    s_add_u32 s{ES}, s{WS}, s33
    s_addc_u32 s{ES+1}, s{WS+1}, 0
    s_mov_b32 s{ES+2}, 8192
    s_lshl_b32 s46, s30, 12
    s_lshl_b32 s47, s27, 8
    s_add_u32 s47, s47, s46
    s_lshl_b32 s33, s31, 7
    s_add_u32 s47, s47, s33      ; own flag offset ; s46 = offset of the flags this wave waits for
    v_mov_b32 v190, s44
    v_lshlrev_b32 v191, 2, v1
    v_and_b32 v192, 31, v1
    v_lshlrev_b32 v192, 7, v192
    v_lshrrev_b32 v2, 1, v6
    v_xor_b32 v2, v2, v7
    v_lshlrev_b32 v2, 4, v2
    v_lshl_add_u32 v2, v6, 7, v2
    v_add_u32 v2, {L_C}, v2
    v_xor_b32 v3, 64, v2
    v_and_b32 v5, 7, v6
    v_xor_b32 v5, v5, v7
    v_lshlrev_b32 v5, 4, v5
    v_lshl_add_u32 v5, v6, 8, v5
    s_lshl_b32 s33, s29, 13
    s_add_u32 s33, s33, {L_STG}
    v_add_u32 v186, s33, v5
    v_xor_b32 v187, 64, v186
    v_xor_b32 v188, 128, v186
    v_xor_b32 v189, 192, v186
    """)
    k(ROT[cfg.get("rot2", "cn")])
    k(f"""
    s_and_b32 s61, s61, 15
    s_add_u32 s62, s61, s26
    s_and_b32 s62, s62, 15
    s_lshl_b32 s62, s62, 15      ; h byte offset of the next substep to load
    s_lshl_b32 s32, s29, 11
    s_lshl_b32 s33, s26, 19
    s_add_u32 s33, s33, s32
    s_add_u32 s33, s33, {WS_H}
    v_lshrrev_b32 v8, 3, v1
    v_and_b32 v9, 7, v1
    v_lshrrev_b32 v10, 1, v8
    v_xor_b32 v9, v9, v10
    v_lshlrev_b32 v9, 4, v9
    v_lshl_add_u32 v10, v8, 11, v9
    v_xor_b32 v11, 64, v10
    v_add_u32 v12, {2*15360}, v10
    v_add_u32 v13, {3*15360}, v11
    v_add_u32 v11, {15360}, v11
    s_lshl_b32 s48, s31, 13
    s_lshl_b32 s49, s30, 12
    s_add_u32 s48, s48, s49
    s_add_u32 s48, s48, {L_C}
    s_lshl_b32 s49, s61, 7
    s_add_u32 s50, s49, 128
    s_and_b32 s50, s50, 2047
    s_mov_b32 m0, s48
    s_waitcnt vmcnt(0)
    """)
    stamp(k, cfg, 20)
    k(f"""
    s_mov_b64 exec, 0xffffffff
    buffer_store_dword v190, v191, s[{ES}:{ES+3}], s47 offen sc1
    s_mov_b64 exec, -1
    """)
    def c01():
        for st_ in range(2):
            if st_: k("s_add_u32 m0, s48, 16384")
            for j in range(4): k(f"buffer_load_dwordx4 v{10+j}, s[{CS}:{CS+3}], s{49+st_} offen offset:{j*1024} lds")
    if cfg.get("c_at", "flag") == "flag": c01()
    k(f"""
    s_add_u32 s{HS}, s{WS}, s33
    s_addc_u32 s{HS+1}, s{WS+1}, 0
    s_sub_u32 s{HS+2}, {64*8192}, s32
    """)
    stamp(k, cfg, 6)
    k(f"buffer_load_dword v193, v192, s[{ES}:{ES+3}], s46 offen sc1")
    for r in range(32): k(f"v_mov_b32 v{AC2+r}, 0")
    k(f"""
    s_mov_b32 s45, {SPIN}
    Lc_hpoll:
    s_waitcnt vmcnt(0)
    v_cmp_ne_u32 vcc, s44, v193
    s_cbranch_vccz Lc_hok
    s_sub_u32 s45, s45, 1
    s_cbranch_scc1 Lc_hok
    s_sleep {cfg.get('hsleep', 2)}
    buffer_load_dword v193, v192, s[{ES}:{ES+3}], s46 offen sc1
    s_branch Lc_hpoll
    Lc_hok:
    """)
    stamp(k, cfg, 7)
    def hload(u, tb):
        r = HR + 8*(u % 8) + 4*tb
        k(f"buffer_load_dwordx4 v[{r}:{r+3}], v196, s[{HS}:{HS+3}], s62 offen offset:{tb*1024} {cfg.get('hld', 'sc1')}")
    def hadv(): k(f"s_add_u32 s62, s62, 8192\ns_and_b32 s62, s62, {64*8192-1}")
    HD = cfg.get("hd", 8)
    if cfg.get("c_at", "flag") == "late": c01()
    for u in range(HD):
        hload(u, 0); hload(u, 1); hadv()
    if cfg.get("c_at", "flag") == "late": k(f"s_waitcnt vmcnt({2*HD})")
    k("s_barrier")
    stamp(k, cfg, 8)
    def rd2(sub, fs, slot):
        b = CF + 16*fs; ri, s = sub >> 1, sub & 1
        return [f"ds_read_b128 v[{b+4*d}:{b+4*d+3}], v{2+s} offset:{slot*16384 + ri*8192 + d*2048}" for d in range(4)]
    def mm2(u, fs):
        b = CF + 16*fs; out = []
        for tb in range(2):
            h = HR + 8*(u % 8) + 4*tb
            for d in (range(4) if tb == 0 else range(3, -1, -1)):
                a = AC2 + (tb*4+d)*4
                out.append(f"v_mfma_f32_16x16x32_bf16 v[{a}:{a+3}], v[{b+4*d}:{b+4*d+3}], v[{h}:{h+3}], v[{a}:{a+3}]")
        return out
    for l in rd2(0, 0, 0): k(l)
    k("s_mov_b32 s35, 0\nLc2_loop:")
    for u in range(8):
        if u == 8 - HD: k(f"s_cmp_eq_u32 s35, 7\ns_cselect_b32 s{HS+2}, 0, s{HS+2}")
        half, sub = u >> 2, u & 3
        m = mm2(u, u & 1)
        r = rd2(sub+1, (u+1) & 1, half) if sub < 3 else rd2(0, 0, 1 - half)
        k(f"s_waitcnt vmcnt({2*HD-1}) lgkmcnt(0)")
        for i in range(8):
            if i == 4: k(f"s_waitcnt vmcnt({2*HD-1})")
            k(m[i])
            if sub == 3 and i == 0:
                if half == 1: k("v_xor_b32 v2, 0x8000, v2\nv_xor_b32 v3, 0x8000, v3\ns_cbranch_scc1 Lc2_nobar\ns_barrier\nLc2_nobar:")
                else: k("s_barrier")
            o = 1 if sub == 3 else 0
            if o <= i < o + 4: k(r[i - o])
            if i == 3: hload(u + HD, 0)
            if i == 7:
                hload(u + HD, 1)
                if u == 6: k(f"s_add_u32 s62, s62, 8192\ns_and_b32 s62, s62, {64*8192-1}\ns_cmp_eq_u32 s35, 7")
                else: hadv()
    stamp_loop(k, dict(lstamps=cfg.get('lstamps2')), 12, 35)
    k("s_add_u32 s35, s35, 1\ns_cmp_lt_u32 s35, 8\ns_cbranch_scc1 Lc2_loop")
    stamp(k, cfg, 9)
    for tb in range(2):
        for d in range(4):
            a = AC2 + (tb*4+d)*4
            k(f"ds_write_b128 v{186+d}, v[{a}:{a+3}] offset:{tb*4096}")
    k("s_waitcnt lgkmcnt(0)\ns_barrier")
    stamp(k, cfg, 10)
    stamp_flush(k, cfg, 0)
```

```python
WS_G     = 0x0
WS_SEL   = 0x100
WS_GATE  = 0x2000
WS_RKEY  = 0x8000
WS_E     = 0x10000
WS_ACT   = 0x60000
WS_GU    = 0x80000
WS_YP    = 0x280000
WS_HF    = 0x3C0000
WS_H     = 0x400000
WS_STAMP = 0x1000000
```

```python
NAME = "gated_mix__ssm_conv_s5__moe_arch_mod__prompt"
KA = dict(x=0, lam_re=8, lam_im=16, b_re=24, b_im=32, c_re=40, c_im=48, log_dt=56, dskip=64,
          bx=72, w_r=80, w_gate=88, w_up=96, w_down=104, gate_w=112, out=120, dbg=128, ws=136)
SZ = dict(x=2048*1024*2, lam_re=2048, lam_im=2048, b_re=1024*1024*2, b_im=1024*1024*2, c_re=1024*1024*2,
          c_im=1024*1024*2, log_dt=2048, dskip=2048, bx=2048*1024*2, w_r=2048, w_gate=1024*3584*2,
          w_up=1024*3584*2, w_down=1024*3584*2, gate_w=2048, out=2048*1024*4, dbg=256, ws=268435456)

HEADER = """; Kernarg layout for this problem (144 bytes, ptrs only, base s[0:1]):
"""

class Kern:
    def __init__(self, name, grid, block, lds, vgpr, sgpr=102, agpr=0):
        self.name, self.grid, self.block, self.lds = name, grid, block, lds
        self.vgpr, self.sgpr, self.agpr = vgpr, sgpr, agpr
        self.lines = []
        self.nlab = 0
    def __call__(self, s=""):
        for l in s.split("\n"):
            l = l.strip()
            if not l: continue
            if l.endswith(":"): self.lines.append(l)
            else: self.lines.append("    " + l)
    def label(self, base):
        self.nlab += 1
        return f"L_{self.name[:2]}{self.name[-9:-7]}_{base}_{self.nlab}"
    def text(self):
        return f".globl {self.name}\n.p2align 8\n.type {self.name},@function\n{self.name}:\n" + "\n".join(self.lines) + "\n"
    def desc(self):
        acc = (self.vgpr + 3) // 4 * 4
        nfv = acc + self.agpr if self.agpr else self.vgpr
        return f""".p2align 6
.amdhsa_kernel {self.name}
  .amdhsa_next_free_vgpr {nfv}
  .amdhsa_next_free_sgpr {self.sgpr}
  .amdhsa_accum_offset {acc}
  .amdhsa_group_segment_fixed_size 0
  .amdhsa_kernarg_size 144
  .amdhsa_user_sgpr_count 2
  .amdhsa_user_sgpr_kernarg_segment_ptr 1
  .amdhsa_system_sgpr_workgroup_id_x 1
  .amdhsa_float_denorm_mode_32 3
.end_amdhsa_kernel
"""
    def launch_line(self):
        g, b = self.grid, self.block
        return f"; @launch kernel={self.name} grid=({g},1,1) block=({b},1,1) lds={self.lds}\n"

def make_file(kerns, order=None, notes=""):
    order = order or kerns
    s = HEADER + notes
    if len(order) == 1 and order[0].name == NAME + "_kernel":
        k = order[0]; s += f"; @launch grid=({k.grid},1,1) block=({k.block},1,1) lds={k.lds}\n"
    else:
        for k in order: s += k.launch_line()
    s += '.amdgcn_target "amdgcn-amd-amdhsa--gfx950"\n.text\n'
    for k in kerns: s += k.text()
    s += '.section .rodata,"a"\n'
    for k in kerns: s += k.desc()
    return s

def srd(k, s, ptr_s, size):
    if ptr_s != s:
        k(f"s_mov_b32 s{s}, s{ptr_s}\ns_mov_b32 s{s+1}, s{ptr_s+1}")
    k(f"s_mov_b32 s{s+2}, {size}\ns_mov_b32 s{s+3}, 0x20000")

def load_srd(k, s, name):
    k(f"s_load_dwordx2 s[{s}:{s+1}], s[0:1], {KA[name]}")
    k(f"s_mov_b32 s{s+2}, {SZ[name]}\ns_mov_b32 s{s+3}, 0x20000")

import re as _re
_TRANS = ("v_exp_f32", "v_log_f32", "v_rcp_f32", "v_rsq_f32", "v_sqrt_f32", "v_sin_f32", "v_cos_f32", "v_rcp_iflag_f32")
def _regs(tok):
    tok = tok.strip().lstrip("-").replace("abs(", "").replace(")", "").replace("|", "")
    m = _re.fullmatch(r"([vas])(\d+)", tok)
    if m: return {(m.group(1), int(m.group(2)))}
    m = _re.fullmatch(r"([vas])\[(\d+):(\d+)\]", tok)
    if m: return {(m.group(1), i) for i in range(int(m.group(2)), int(m.group(3)) + 1)}
    if tok == "vcc": return {("s", 106), ("s", 107)}
    if tok == "vcc_lo": return {("s", 106)}
    if tok == "vcc_hi": return {("s", 107)}
    if tok == "m0": return {("s", 124)}
    if tok == "exec": return {("s", 126), ("s", 127)}
    return set()
class _I:
    def __init__(self, line):
        s = line.split(";")[0].strip()
        self.label = s.endswith(":") or not s or s.startswith(".")
        self.mn = ""; self.d = set(); self.r = set(); self.ops = []
        if self.label: return
        parts = s.split(None, 1); mn = self.mn = parts[0]
        ops = [o.strip() for o in parts[1].split(",")] if len(parts) > 1 else []
        if ops:
            last = ops[-1].split()
            ops[-1] = last[0]; self.mods = " ".join(last[1:])
        else: self.mods = ""
        self.mods_all = s
        self.ops = ops
        R = [_regs(o) for o in ops]
        self.valu = mn.startswith("v_") and not mn.startswith("v_mfma")
        self.mfma = mn.startswith("v_mfma")
        self.vmem = mn.startswith(("buffer_", "global_"))
        self.ds = mn.startswith("ds_")
        self.salu = mn.startswith("s_")
        self.trans = mn.startswith(_TRANS)
        self.dpp = "row_" in s or "quad_perm" in s or "wave_" in s or mn.endswith("_dpp")
        self.perm = mn.startswith("v_permlane")
        self.lds_dma = self.vmem and (" lds" in s or "load_lds" in mn)
        if self.mfma:
            self.d = R[0]; self.a = R[1] | R[2]; self.c = R[3]; self.r = self.a | self.c
            self.passes = 8 if "32x32" in mn else 4
        elif self.valu:
            nd = 1
            if mn.startswith(("v_add_co", "v_sub_co", "v_addc_co", "v_subb_co", "v_subrev_co", "v_div_scale", "v_mad_u64")): nd = 2
            for x in R[:nd]: self.d |= x
            for x in R[nd:]: self.r |= x
            if mn.startswith(("v_fmac", "v_dot2c", "v_writelane", "v_pk_fmac")) or self.dpp: self.r |= R[0]
            if self.perm: self.d |= R[1]; self.r |= R[0]
            if mn.startswith("v_cmpx"): self.d |= _regs("exec")
            if mn.startswith("v_div_fmas"): self.r |= _regs("vcc")
        elif self.vmem:
            st = "store" in mn or "atomic" in mn
            if self.lds_dma:
                for x in R: self.r |= x
                self.r |= _regs("m0")
            elif mn.startswith("buffer_"):
                if mn.startswith(("buffer_wbl2", "buffer_inv")): pass
                elif st:
                    for x in R: self.r |= x
                    self.data = R[0]
                    if "atomic" in mn and "sc0" in s: self.d |= R[0]
                else:
                    self.d = R[0]
                    for x in R[1:]: self.r |= x
            else:
                if st:
                    for x in R: self.r |= x
                    self.data = R[1]
                else:
                    self.d = R[0]
                    for x in R[1:]: self.r |= x
            self.wide_store = st and ("x4" in mn or "x3" in mn)
        elif self.ds:
            if mn.startswith(("ds_read", "ds_bpermute", "ds_permute", "ds_swizzle")) or "_rtn" in mn:
                self.d = R[0]
                for x in R[1:]: self.r |= x
            else:
                for x in R: self.r |= x
        elif self.salu:
            if mn.startswith(("s_cmp", "s_cbranch", "s_branch", "s_waitcnt", "s_nop", "s_barrier", "s_endpgm", "s_setprio", "s_sleep", "s_bitcmp")):
                for x in R: self.r |= x
            else:
                self.d = R[0] if R else set()
                for x in R[1:]: self.r |= x
                if "saveexec" in mn: self.d |= _regs("exec")
    def states(self):
        if self.label: return 0
        if self.mn == "s_nop": return int(self.ops[0], 0) + 1
        return 1
def _need(p, c):
    n = 0
    vd = {x for x in p.d if x[0] != "s"}; sd = {x for x in p.d if x[0] == "s"}
    if p.valu:
        if vd & c.r:
            if c.mn.startswith(("v_readlane", "v_readfirstlane")): n = max(n, 1)
            if c.valu and (c.dpp or c.perm): n = max(n, 2)
            if c.mfma: n = max(n, 2)
            if p.trans and c.valu and not c.trans: n = max(n, 1)
        if sd & c.r:
            if c.valu: n = max(n, 4 if c.mn.startswith(("v_readlane", "v_writelane", "v_div_fmas")) else 2)
            if c.vmem: n = max(n, 5)
        if sd & _regs("exec"):
            if c.valu and (c.dpp or c.perm): n = max(n, 5)
            if c.mfma or c.mn.startswith(("v_readlane", "v_readfirstlane", "v_writelane")): n = max(n, 4)
    if p.mn.startswith("v_dot") and (vd & (c.r | c.d)):
        acc_only = c.mn == p.mn and not (vd & (_regs(c.ops[1]) | _regs(c.ops[2])))
        if not acc_only: n = max(n, 3)
    if p.mfma:
        big = 12 if p.passes == 8 else 8
        if c.mfma:
            if p.d & c.a: n = max(n, big)
            elif p.d & c.c and not (p.d == c.c and p.passes == c.passes): n = max(n, big - 2)
        elif (c.valu or c.vmem or c.ds) and (p.d & (c.r | c.d)): n = max(n, big)
        if c.valu and (p.c & c.d): n = max(n, 7 if p.passes == 8 else 3)
    if p.vmem and getattr(p, "wide_store", False) and (p.data & c.d): n = max(n, 2 if c.valu else 1)
    if p.salu and ("s", 124) in p.d and c.lds_dma: n = max(n, 1)
    return n
def fix_hazards(lines, verbose=False):
    out = []; hist = []
    for line in lines:
        i = _I(line)
        if not i.label:
            dist = 0; pad = 0
            for p in reversed(hist):
                if dist >= 12: break
                nd = _need(p, i)
                if nd > dist: pad = max(pad, nd - dist)
                dist += p.states()
            if pad:
                l = f"    s_nop {pad-1}"
                out.append(l); hist.append(_I(l))
                if verbose: print("pad", pad, "before", line.strip())
            hist.append(i)
            if len(hist) > 40: hist = hist[-20:]
        out.append(line)
    return out

class VM:
    def __init__(self, k): self.k = k; self.q = []; self.total = 0
    def issue(self, tag, text=None):
        if text: self.k(text)
        self.q.append(tag); self.total += 1
    def count_after(self, tag):
        idx = max(i for i, t in enumerate(self.q) if t == tag)
        return len(self.q) - 1 - idx
    def wait(self, tag, extra=""):
        if tag not in self.q:
            if extra: self.k(f"s_waitcnt {extra}")
            return
        n = self.count_after(tag)
        assert n <= 63, n
        self.k(f"s_waitcnt vmcnt({n}) {extra}".strip())
        self.q = self.q[len(self.q) - n:] if n else []
```

```python
import sys, os, json
ROOT = os.path.dirname(os.path.dirname(os.path.abspath(__file__)))
sys.path.insert(0, ROOT + "/tools"); sys.path.insert(0, ROOT + "/src")
from asmgen import *
from fused import gen_fused
DEFAULTS = dict(wd_at='loop', ntw=1)
def build(cfg):
    cfg = dict(DEFAULTS, **cfg)
    ks = [gen_fused(cfg)]
    order = list(ks)
    if cfg.get("empty"):
        e = Kern("e0_kernel", cfg.get("empty_grid", 1), 64, 0, 8, 16); e("s_endpgm")
        ks.append(e)
        for pos in cfg["empty"]: order.insert(pos, e)
    return make_file(ks, order)
if __name__ == "__main__":
    out = sys.argv[1]
    cfg = json.loads(sys.argv[2]) if len(sys.argv) > 2 else {}
    open(out, "w").write(build(cfg))
```

```python
from asmgen import *
from layout import *

LOG2E = 0x3fb8aa3b
INV2PI = 0x3e22f983
SPIN = 1 << 15

def pk(op, d, a, b, c=None, sa=None, sb=None, sc=None, na=0, nb=0, nc=0):
    srcs = [(a, sa, na), (b, sb, nb)] + ([(c, sc, nc)] if c is not None else [])
    if sa not in (1, 'x') and sb in (1, 'x'): srcs[0], srcs[1] = srcs[1], srcs[0]
    lo = [{None: 0, 0: 0, 1: 1, 'x': 1}[s] for _, s, _ in srcs]
    hi = [{None: 1, 0: 0, 1: 1, 'x': 0}[s] for _, s, _ in srcs]
    nl = [n & 1 for _, _, n in srcs]; nh = [n >> 1 for _, _, n in srcs]
    t = f"v_pk_{op}_f32 v[{d}:{d+1}], " + ", ".join(f"v[{r}:{r+1}]" for r, _, _ in srcs)
    f = lambda x: "[" + ",".join(map(str, x)) + "]"
    if any(lo): t += f" op_sel:{f(lo)}"
    if not all(hi): t += f" op_sel_hi:{f(hi)}"
    if any(nl): t += f" neg_lo:{f(nl)}"
    if any(nh): t += f" neg_hi:{f(nh)}"
    return t

def csq(k, dr, di, ar, ai, t):
    k(pk("mul", t, ar, ai)); k(pk("mul", dr, ar, ar)); k(pk("fma", dr, ai, ai, dr, na=3)); k(pk("add", di, t, t))
def cmul_cb(k, dr, di, ar, ai, br, bi):
    k(pk("mul", dr, ar, br)); k(pk("mul", di, ar, bi)); k(pk("fma", dr, ai, bi, dr, na=3)); k(pk("fma", di, ai, br, di))
def cfma_ri(k, d, cr, ci, cb, h, g, t):
    k(pk("fma", t, cr, h, g, sa=cb)); k(pk("fma", d, ci, h, t, sa=cb, sb='x', nb=1))

def wg_coords(k, band=False):
    if band:
        k("""
        s_and_b32 s24, s2, 7
        s_lshr_b32 s25, s2, 3
        s_lshr_b32 s26, s25, 4
        s_lshl_b32 s26, s26, 3
        s_add_u32 s26, s26, s24      ; s26 = c (time chunk): the 16 tiles of a chunk share blockIdx % 8
        s_and_b32 s27, s25, 15
        """)
        return
    k("""
    s_and_b32 s24, s2, 7
    s_lshr_b32 s25, s2, 3
    s_lshr_b32 s26, s25, 3
    s_lshl_b32 s26, s26, 2
    s_lshr_b32 s27, s24, 1
    s_add_u32 s26, s26, s27
    s_and_b32 s27, s24, 1
    s_lshl_b32 s27, s27, 3
    s_and_b32 s28, s25, 7
    s_add_u32 s27, s27, s28
    """)

ROT = {
    "none": "s_mov_b32 s61, 0",
    "cn": "s_add_u32 s61, s26, s27",
    "q": "s_lshr_b32 s61, s25, 3\ns_lshl_b32 s61, s61, 1\ns_add_u32 s61, s61, s28\ns_lshl_b32 s61, s61, 1",
    "x": "s_lshl_b32 s61, s24, 1",
    "qx": "s_lshr_b32 s61, s25, 3\ns_lshl_b32 s61, s61, 1\ns_add_u32 s61, s61, s28\ns_lshl_b32 s61, s61, 1\ns_lshr_b32 s62, s24, 1\ns_add_u32 s61, s61, s62\ns_and_b32 s62, s24, 1\ns_add_u32 s61, s61, s62",
    "c4": "s_lshr_b32 s61, s25, 3\ns_lshl_b32 s61, s61, 2",
    "n2": "s_lshl_b32 s61, s28, 1",
    "c": "s_mov_b32 s61, s26",
    "n": "s_mov_b32 s61, s27",
    "h8": "s_and_b32 s61, s25, 1\ns_lshl_b32 s61, s61, 3",
}

def add_base(k, s, off):
    k(f"s_add_u32 s{s}, s{s}, {off}\ns_addc_u32 s{s+1}, s{s+1}, 0")

def wave_max(k, v, t, sdst):
    k(f"v_mov_b32 v{t}, v{v}")
    for m in ("row_shr:1", "row_shr:2", "row_shr:4", "row_shr:8"):
        k(f"v_max_u32_dpp v{t}, v{t}, v{t} {m} row_mask:0xf bank_mask:0xf")
    k(f"v_max_u32_dpp v{t}, v{t}, v{t} row_bcast:15 row_mask:0xa bank_mask:0xf")
    k(f"v_max_u32_dpp v{t}, v{t}, v{t} row_bcast:31 row_mask:0xc bank_mask:0xf")
    k(f"v_readlane_b32 s{sdst}, v{t}, 63")

def wave_sum(k, regs):
    for m, rm in (("row_shr:1", 0xf), ("row_shr:2", 0xf), ("row_shr:4", 0xf), ("row_shr:8", 0xf), ("row_bcast:15", 0xa), ("row_bcast:31", 0xc)):
        for v in regs:
            k(f"v_add_f32_dpp v{v}, v{v}, v{v} {m} row_mask:{rm:#x} bank_mask:0xf")

def sigmoid_bf16(k, d, x, t):
    k(f"""
    v_mul_f32 v{t}, {LOG2E ^ 0x80000000:#x}, v{x}
    v_exp_f32 v{t}, v{t}
    v_add_f32 v{t}, 1.0, v{t}
    v_rcp_f32 v{t}, v{t}
    v_cvt_pk_bf16_f32 v{d}, v{t}, v{t}
    v_lshlrev_b32 v{d}, 16, v{d}
    """)

def stamp(k, cfg, i, cond="s_waitcnt lgkmcnt(0)"):
    if cfg.get("dbgt"):
        slot = cfg["dbgt"].get(cfg.get("_role", "") + str(i))
        if slot is not None:
            k(f"""s_memrealtime s[92:93]
            s_load_dwordx2 s[96:97], s[0:1], {KA['dbg']}
            s_mov_b32 s98, 256
            s_mov_b32 s99, 0x20000
            s_mov_b64 s[100:101], exec
            s_mov_b64 exec, 1
            s_waitcnt lgkmcnt(0)
            v_mov_b32 v197, s92
            v_mov_b32 v198, 0
            buffer_atomic_umax v197, v198, s[96:99], 0 offen offset:{4*slot}""")
            if i == 0: k(f"s_not_b32 s92, s90\nv_mov_b32 v199, s92\nbuffer_atomic_umax v199, v198, s[96:99], 0 offen")
            k("s_mov_b64 exec, s[100:101]")
        return
    if not cfg.get("stamps"): return
    k(f"s_memrealtime s[92:93]\ns_memtime s[94:95]\ns_waitcnt lgkmcnt(0)\nv_writelane_b32 v199, s92, {i}\nv_writelane_b32 v199, s94, {32+i}")
def stamp_loop(k, cfg, base, sreg):
    if not cfg.get("lstamps"): return
    k(f"""s_memrealtime s[92:93]
    s_memtime s[94:95]
    s_add_u32 s96, s{sreg}, {base}
    s_add_u32 s97, s96, 32
    v_cmp_eq_u32 s[98:99], s96, v1
    v_cmp_eq_u32 s[100:101], s97, v1
    s_waitcnt lgkmcnt(0)
    v_mov_b32 v197, s92
    v_mov_b32 v198, s94
    v_cndmask_b32 v199, v199, v197, s[98:99]
    v_cndmask_b32 v199, v199, v198, s[100:101]""")
def stamp_flush(k, cfg, which):
    if not cfg.get("stamps"): return
    k(f"""
    s_load_dwordx2 s[92:93], s[0:1], {KA['ws']}
    s_mov_b32 s94, {SZ['ws']}
    s_mov_b32 s95, 0x20000
    v_writelane_b32 v199, s90, 31
    v_writelane_b32 v199, s88, 63
    s_lshl_b32 s96, s2, 11
    s_lshl_b32 s97, s29, 8
    s_add_u32 s96, s96, s97
    s_add_u32 s96, s96, {WS_STAMP + which * 0x80000}
    s_mov_b64 exec, -1
    v_mbcnt_lo_u32_b32 v198, -1, 0
    v_mbcnt_hi_u32_b32 v198, -1, v198
    v_lshlrev_b32 v198, 2, v198
    s_waitcnt lgkmcnt(0)
    buffer_store_dword v199, v198, s[92:95], s96 offen
    """)
```

```python
from common import *

S0 = 147456
L_FLAG, L_RT, L_CAND, L_SORT, L_EX, L_ACT = S0, S0 + 64, S0 + 256, S0 + 512, S0 + 1024, S0 + 5120
ACT_ROW = 464
L_TR = 131072
L_WG, L_WU = 0, 32768
L_C = 65536
L_WD = 0
L_STG = 32768

def gen_fused(cfg):
    k = Kern(NAME + "_kernel", 256, 512, 163840, 256)
    if cfg.get("dbgt"): k("s_memrealtime s[90:91]\nv_mov_b32 v199, 0")
    if cfg.get("stamps"): k("s_memrealtime s[90:91]\ns_memtime s[88:89]\nv_mov_b32 v199, 0")
    k("s_cmp_ge_u32 s2, 256\ns_cbranch_scc1 L_end")
    k("v_lshrrev_b32 v2, 6, v0\nv_and_b32 v1, 63, v0\ns_nop 0\nv_readfirstlane_b32 s29, v2")
    wg_coords(k, cfg.get('band', 0))
    k("s_cmp_lt_u32 s29, 4\ns_cbranch_scc1 L_compute")
    loader(k, dict(cfg, _role="L"))
    k("L_compute:")
    compute(k, dict(cfg, _role="C"))
    k("L_end:\ns_endpgm")
    k.lines = fix_hazards(k.lines)
    return k

def spin_tail(k, cnt, ok, again):
    k(f"s_sub_u32 s{cnt}, s{cnt}, 1\ns_cbranch_scc1 {ok}\ns_sleep 1")

def loader(k, cfg):
    vm = VM(k)
    if cfg.get("lprio", 0): k(f"s_setprio {cfg.get('lprio', 0)}")
    XS, BS, WS, RS, GS, DS, WGS, WUS, XF = 8, 12, 16, 36, 40, 44, 48, 52, 56
    TAG = 65
    k(f"""
    s_load_dwordx2 s[{XF}:{XF+1}], s[0:1], {KA['x']}
    s_load_dwordx4 s[{BS}:{BS+3}], s[0:1], {KA['b_re']}
    s_load_dwordx2 s[{RS}:{RS+1}], s[0:1], {KA['dskip']}
    s_load_dwordx2 s[{GS}:{GS+1}], s[0:1], {KA['out']}
    s_load_dwordx2 s[{WS}:{WS+1}], s[0:1], {KA['ws']}
    s_load_dwordx2 s[{DS}:{DS+1}], s[0:1], {KA['w_down']}
    s_load_dwordx2 s[{WGS}:{WGS+1}], s[0:1], {KA['w_gate']}
    s_load_dwordx2 s[{WUS}:{WUS+1}], s[0:1], {KA['w_up']}
    s_and_b32 s30, s29, 3
    v_lshrrev_b32 v3, 3, v1      ; r3
    v_and_b32 v4, 7, v1
    v_lshrrev_b32 v5, 1, v3
    v_xor_b32 v2, v4, v5
    v_lshlrev_b32 v2, 4, v2
    v_lshl_add_u32 v14, v3, 11, v2   ; B piece 0
    v_xor_b32 v15, 64, v14
    v_add_u32 v16, {2*15360}, v14
    v_add_u32 v17, {3*15360}, v15
    v_add_u32 v15, {15360}, v15
    v_lshrrev_b32 v6, 2, v3
    v_lshlrev_b32 v6, 4, v6
    v_and_b32 v7, 1, v3
    v_lshl_add_u32 v6, v7, 3, v6
    v_and_b32 v7, 1, v5
    v_add_u32 v6, v6, v7         ; tl
    v_lshl_add_u32 v10, v6, 11, v2   ; A piece 0
    v_xor_b32 v11, 64, v10
    v_add_u32 v12, {2*2048-2048}, v10
    v_add_u32 v13, {34*2048-3072}, v11
    v_add_u32 v11, {32*2048-1024}, v11
    s_lshr_b32 s31, s30, 1       ; w>>1
    s_and_b32 s32, s30, 1        ; w&1
    s_lshl_b32 s33, s26, 7
    s_lshl_b32 s34, s31, 6
    s_add_u32 s33, s33, s34
    s_lshl_b32 s34, s32, 2
    s_add_u32 s33, s33, s34
    s_lshl_b32 s33, s33, 11
    s_lshl_b32 s34, s27, 6
    s_lshl_b32 s35, s31, 5
    s_add_u32 s34, s34, s35
    s_lshl_b32 s64, s34, 11
    s_lshl_b32 s60, s30, 12
    """)
    k(ROT[cfg.get("rot1", "cn")])
    k(f"""
    s_and_b32 s61, s61, 15
    s_lshl_b32 s61, s61, 7
    s_cmp_eq_u32 s32, 1
    s_waitcnt lgkmcnt(0)
    s_cselect_b32 s{BS}, s{BS+2}, s{BS}
    s_cselect_b32 s{BS+1}, s{BS+3}, s{BS+1}
    s_add_u32 s{BS}, s{BS}, s64
    s_addc_u32 s{BS+1}, s{BS+1}, 0
    s_sub_u32 s{BS+2}, {SZ['b_re']}, s64
    s_mov_b32 s{BS+3}, 0x20000
    s_add_u32 s{XS}, s{XF}, s33
    s_addc_u32 s{XS+1}, s{XF+1}, 0
    s_sub_u32 s{XS+2}, {SZ['x']}, s33
    s_mov_b32 s{XS+3}, 0x20000
    """)
    def stage(i):
        slot = (i % 4) * 32768
        k(f"s_add_u32 m0, s60, {slot}")
        for j in range(4): vm.issue(f"st{i}", f"buffer_load_dwordx4 v{10+j}, s[{XS}:{XS+3}], s61 offen offset:{j*1024} lds")
        k(f"s_add_u32 m0, s60, {slot + 16384}")
        for j in range(4): vm.issue(f"st{i}", f"buffer_load_dwordx4 v{14+j}, s[{BS}:{BS+3}], s61 offen offset:{j*1024} lds")
        if i < 15: k("s_add_u32 s61, s61, 128\ns_and_b32 s61, s61, 2047")
    stamp(k, cfg, 10)
    stage(0)
    stage(1)
    k(f"""
    v_mov_b32 v9, 0
    v_mov_b32 v8, 0
    v_mov_b32 v7, {L_FLAG}
    ds_write_b64 v7, v[8:9]
    ds_write_b64 v7, v[8:9] offset:8
    ds_write_b32 v7, v9 offset:16
    """)
    for s, nm in ((XF, 'x'), (RS, 'dskip'), (GS, 'out'), (WS, 'ws'), (DS, 'w_down'), (WGS, 'w_gate'), (WUS, 'w_up')):
        k(f"s_mov_b32 s{s+2}, {SZ[nm]}\ns_mov_b32 s{s+3}, 0x20000")
    k(f"""
    s_lshl_b32 s62, s26, 7
    s_lshl_b32 s63, s27, 3
    s_add_u32 s62, s62, s63
    s_lshl_b32 s62, s62, 3
    v_lshlrev_b32 v18, 4, v1
    v_lshlrev_b32 v19, 3, v4
    """)
    k(f"s_load_dword s{TAG}, s[{WS}:{WS+1}], {WS_G}")
    vm.wait("st0", "lgkmcnt(0)")
    stamp(k, cfg, 0)
    k("s_barrier")
    T0 = 72
    KEY = 80
    def key_loads(tag):
        for q in range(4):
            t = f"buffer_load_dwordx4 v[{KEY+4*q}:{KEY+4*q+3}], v18, s[{WS}:{WS+3}], s69 offen offset:{q*1024} sc1"
            vm.issue(tag, t) if tag else k(t)
    def top_round(j):
        for i in range(8): k(f"v_subrev_u32 v{22+i}, s76, v{KEY+2*i}")
        k("v_max3_u32 v22, v22, v23, v24\nv_max3_u32 v25, v25, v26, v27\nv_max3_u32 v22, v22, v28, v29\nv_max_u32 v22, v22, v25")
        for m, rm in (("row_shr:1", 0xf), ("row_shr:2", 0xf), ("row_shr:4", 0xf), ("row_shr:8", 0xf), ("row_bcast:15", 0xa), ("row_bcast:31", 0xc)):
            k(f"v_max_u32_dpp v22, v22, v22 {m} row_mask:{rm:#x} bank_mask:0xf")
        k(f"v_readlane_b32 s77, v22, 63\ns_add_u32 s76, s76, s77\nv_writelane_b32 v30, s76, {j}")
    NT = " nt" if cfg.get("ntw") else ""
    def wdma(tag, srd, base):
        for j in range(8):
            k(f"s_add_u32 m0, s75, {base + j*1024}\ns_add_u32 s74, s73, {j*8*7168}")
            vm.issue(tag, f"buffer_load_dwordx4 v10, s[{srd}:{srd+3}], s74 offen{NT} lds")
    CS, WD, DK, OS = XS, DS, RS, GS
    KS = cfg.get("kslot", 4)
    PUBS = 0
    WUV = 128
    WUS0, WUSTEP = cfg.get("wu0", 3), cfg.get("wustep", 2)
    XA = 36
    for i in range(15):
        lg = ""
        if i == 0:
            stage(2)
        if i < 13: stage(i + 3)
        if i == 0:
            k(f"""
            v_add_u32 v21, {L_RT}, v19
            ds_read_b64 v[{T0}:{T0+1}], v21
            s_load_dwordx4 s[84:87], s[0:1], {KA['c_re']}
            s_mul_hi_u32 s70, s2, {(2**32 + 55) // 56}     ; kq
            s_mul_i32 s71, s70, 56
            s_sub_u32 s71, s2, s71                        ; cg
            s_lshl_b32 s72, s70, 8
            s_lshl_b32 s73, s30, 6
            s_add_u32 s72, s72, s73                       ; k0 = 256 kq + 64 w
            s_mul_i32 s73, s72, 7168
            s_lshl_b32 s74, s71, 7
            s_add_u32 s73, s73, s74
            s_cmp_ge_u32 s2, 224
            s_cselect_b32 s{WGS+2}, 0, s{WGS+2}
            s_cselect_b32 s{WUS+2}, 0, s{WUS+2}
            s_lshl_b32 s75, s30, 13
            s_lshl_b32 s69, s30, 12
            s_add_u32 s69, s69, {WS_RKEY}
            s_mov_b32 s76, 0
            v_mul_u32_u24 v31, 7168, v3
            v_lshl_add_u32 v31, v4, 4, v31
            s_and_b32 s63, s25, 3
            s_mul_i32 s{TAG}, s{TAG}, 1664525
            s_add_u32 s{TAG}, s{TAG}, 1013904223
            """)
        if i == PUBS:
            k(f"""
            s_waitcnt lgkmcnt(0)
            v_mov_b32 v{T0+2}, v{T0+1}
            v_mov_b32 v{T0+1}, s{TAG}
            v_mov_b32 v{T0+3}, s{TAG}
            s_add_u32 s66, s62, {WS_RKEY}
            s_add_u32 s67, s62, {WS_GATE}
            s_cmp_lg_u32 s30, 0
            s_cbranch_scc1 L_nopub
            s_mov_b64 exec, 0xff
            buffer_store_dwordx2 v[{T0}:{T0+1}], v19, s[{WS}:{WS+3}], s66 offen sc1
            buffer_store_dwordx2 v[{T0+2}:{T0+3}], v19, s[{WS}:{WS+3}], s67 offen sc1
            s_mov_b64 exec, -1
            L_nopub:
            s_cmp_eq_u32 s32, 1
            s_cselect_b32 s84, s86, s84
            s_cselect_b32 s85, s87, s85
            s_add_u32 s84, s84, s64
            s_addc_u32 s85, s85, 0
            """)
        if cfg.get("wu_at", "loop") == "loop" and i >= WUS0 and (i - WUS0) % WUSTEP == 0 and (i - WUS0) // WUSTEP < 4:
            L = k.label("wu")
            k(f"s_cmp_lg_u32 s63, {(i - WUS0) // WUSTEP}\ns_cbranch_scc1 {L}")
            for j in range(8):
                k(f"s_add_u32 s74, s73, {j*8*7168}\nbuffer_load_dwordx4 v[{WUV+4*j}:{WUV+4*j+3}], v31, s[{WUS}:{WUS+3}], s74 offen{NT}")
            k(f"{L}:")
        if i == KS: key_loads("keys")
        if i == 13:
            k("v_mov_b32 v10, v31")
            if cfg.get("cpf"):
                k(f"""
                s_load_dwordx4 s[{XS}:{XS+3}], s[0:1], {KA['c_re']}
                s_lshl_b32 s33, s2, 13
                s_lshl_b32 s34, s31, 12
                s_add_u32 s33, s33, s34
                s_cmp_eq_u32 s32, 1
                s_waitcnt lgkmcnt(0)
                s_cselect_b32 s{XS}, s{XS+2}, s{XS}
                s_cselect_b32 s{XS+1}, s{XS+3}, s{XS+1}
                s_mov_b32 s{XS+2}, {SZ['c_re']}
                s_mov_b32 s{XS+3}, 0x20000
                """)
                for j in range(4): vm.issue("cpf", f"buffer_load_dwordx4 v[60:63], v18, s[{XS}:{XS+3}], s33 offen offset:{j*1024}")
            wdma("wg", WGS, L_WG)
        if i == KS + 1:
            vm.wait("keys")
            k(f"s_mov_b32 s68, {SPIN}\nL_keypoll:")
            k(f"v_xor_b32 v20, s{TAG}, v{KEY+1}")
            for q in range(1, 8): k(f"v_xor_b32 v21, s{TAG}, v{KEY+2*q+1}\nv_or_b32 v20, v20, v21")
            k("v_cmp_ne_u32 vcc, 0, v20\ns_cbranch_vccz L_keyok\ns_sub_u32 s68, s68, 1\ns_cbranch_scc1 L_keyok")
            key_loads(None)
            k("s_waitcnt vmcnt(0)\ns_branch L_keypoll\nL_keyok:")
            k(f"""
            s_or_b32 s66, s2, s30
            s_cmp_lg_u32 s66, 0
            s_cbranch_scc1 L_nogen
            v_mov_b32 v20, s{TAG}
            s_mov_b64 exec, 1
            buffer_store_dword v20, v9, s[{WS}:{WS+3}], 0 offen offset:{WS_G} sc1
            s_mov_b64 exec, -1
            L_nogen:
            """)
        if KS < i <= KS + 8 and not cfg.get('noaux1'): top_round(i - KS - 1)
        if i == KS + 8:
            k(f"s_lshl_b32 s76, s30, 5\nv_lshl_add_u32 v32, v1, 2, s76\nv_add_u32 v32, {L_CAND}, v32\ns_mov_b64 exec, 0xff\nds_write_b32 v32, v30\ns_mov_b64 exec, -1")
            lg = "lgkmcnt(0)"
        if i == 13:
            k(f"""
            v_and_b32 v32, 31, v1
            v_lshlrev_b32 v32, 2, v32
            v_add_u32 v32, {L_CAND}, v32
            v_lshrrev_b32 v33, 5, v1
            v_lshlrev_b32 v33, 6, v33
            v_add_u32 v33, {L_CAND}, v33
            ds_read_b32 v34, v32
            """)
            for q in range(4): k(f"ds_read_b128 v[{36+4*q}:{39+4*q}], v33 offset:{16*q}")
            k(f"v_mov_b32 v35, 0\ns_lshl_b32 s76, s30, 5\ns_add_u32 s76, s76, {L_SORT}\ns_waitcnt lgkmcnt(0)")
            for q in range(16):
                sp = 78 + 2*(q % 3)
                k(f"v_cmp_gt_u32 s[{sp}:{sp+1}], v{36+q}, v34")
                if q >= 2: k(f"v_addc_co_u32 v35, vcc, 0, v35, s[{78+2*((q-2)%3)}:{79+2*((q-2)%3)}]")
            for q in (14, 15): k(f"v_addc_co_u32 v35, vcc, 0, v35, s[{78+2*(q%3)}:{79+2*(q%3)}]")
        if i == 14:
            k(f"""
            v_mov_b32 v36, v35
            v_lshrrev_b32 v6, 4, v1                  ; q / rg
            v_lshlrev_b32 v32, 4, v6
            v_permlane32_swap_b32 v35, v36
            v_add_u32 v35, v35, v36
            v_cmp_gt_u32 vcc, 8, v35
            v_lshl_add_u32 v35, v35, 2, s76
            v_lshl_add_u32 v36, v4, 2, s76
            s_and_saveexec_b64 s[66:67], vcc
            ds_write_b32 v35, v34
            s_mov_b64 exec, -1
            ds_read_b32 v30, v36
            v_add_u32 v33, s75, v18
            s_lshl_b32 s76, s72, 1
            s_waitcnt lgkmcnt(0)
            v_and_b32 v31, 0x7ff, v30
            v_sub_u32 v31, 2047, v31
            v_lshl_add_u32 v32, v31, 11, v32
            """)
            for s_ in range(2):
                vm.issue("xs", f"buffer_load_dwordx4 v[{XA+4*s_}:{XA+4*s_+3}], v32, s[{XF}:{XF+3}], s76 offen offset:{s_*64}")
        if cfg.get("lstamps"): stamp(k, cfg, 12 + i)
        vm.wait(f"st{i+1}", lg)
        k("s_barrier")
    if cfg.get("wu_at", "loop") == "loop":
        for j in range(8): k(f"ds_write_b128 v33, v[{WUV+4*j}:{WUV+4*j+3}] offset:{L_WU + j*1024}")
    else: wdma("wu", WUS, L_WU)
    k(f"""
    s_mov_b32 s{CS}, s84
    s_mov_b32 s{CS+1}, s85
    s_sub_u32 s{CS+2}, {SZ['c_re']}, s64
    s_lshl_b32 s60, s32, 13
    s_lshl_b32 s35, s31, 12
    s_add_u32 s60, s60, s35
    s_add_u32 s60, s60, {L_C}
    """)
    k(ROT[cfg.get("rot2", "cn")])
    k("s_add_u32 s61, s61, 2\ns_and_b32 s61, s61, 15\ns_lshl_b32 s61, s61, 7")
    def stage2(i):
        k(f"s_add_u32 m0, s60, {(i % 4) * 16384}")
        for j in range(4): vm.issue(f"c{i}", f"buffer_load_dwordx4 v{14+j}, s[{CS}:{CS+3}], s61 offen offset:{j*1024} lds")
        if i < 15: k("s_add_u32 s61, s61, 128\ns_and_b32 s61, s61, 2047")
    stamp(k, cfg, 1)
    k("""
    v_ashrrev_i32 v33, 31, v30
    v_not_b32 v33, v33
    v_or_b32 v33, 0x80000000, v33
    v_xor_b32 v33, v33, v30
    v_and_b32 v33, 0xffff0000, v33
    """)
    sigmoid_bf16(k, 30, 33, 35)
    k(f"""
    v_bfe_u32 v34, v1, 2, 2
    v_lshl_add_u32 v33, v6, 3, v34
    v_lshlrev_b32 v33, 7, v33
    v_and_b32 v34, 3, v1
    v_lshl_add_u32 v5, v34, 3, v33
    v_add_u32 v33, s75, v5
    s_cmp_ge_u32 s2, 224
    s_cbranch_scc1 L_gudone
    """)
    D = 96; FB = 160
    q0 = list(vm.q)
    for mat, tag, base in ((1, "wu", L_WU), (0, "wg", L_WG)) if cfg.get("wu_at", "loop") == "loop" else ((0, "wg", L_WG), (1, "wu", L_WU)):
        vm.wait(tag)
        for s in range(2):
            for cb in range(4):
                for hh in range(2):
                    b = FB + (s*4+cb)*4 + 2*hh
                    k(f"ds_read_b64_tr_b16 v[{b}:{b+1}], v33 offset:{base + (32*s+4*hh)*128 + cb*32}")
        vm.wait("xs")
        for s in range(2):
            k(f"s_waitcnt lgkmcnt({8*(1-s)})")
            for cb in range(4):
                b = FB + (s*4+cb)*4; d = D + (mat*4+cb)*4
                k(f"v_mfma_f32_16x16x32_bf16 v[{d}:{d+3}], v[{XA+4*s}:{XA+4*s+3}], v[{b}:{b+3}], {'0' if s == 0 else f'v[{d}:{d+3}]'}")
    k(f"v_lshl_add_u32 v34, v1, 4, s75\ns_mov_b64 exec, 0xffffffff")
    for b in range(8): k(f"ds_write_b128 v34, v[{D+4*b}:{D+4*b+3}] offset:{L_WG + b*512}")
    k(f"""
    s_mov_b64 exec, 1
    v_mov_b32 v35, 1
    ds_add_rtn_u32 v35, v7, v35 offset:16
    s_mov_b64 exec, -1
    s_waitcnt lgkmcnt(0)
    v_readfirstlane_b32 s76, v35
    s_cmp_lg_u32 s76, 3
    s_cbranch_scc1 L_gudone
    """)
    for w in range(4):
        for i in range(4): k(f"ds_read_b128 v[{D+16*w+4*i}:{D+16*w+4*i+3}], v18 offset:{L_WG + w*8192 + i*1024}")
    k(f"""
    v_lshrrev_b32 v35, 5, v1
    v_lshlrev_b32 v35, 13, v35
    v_and_b32 v36, 31, v1
    v_lshl_add_u32 v35, v36, 4, v35
    s_lshl_b32 s76, s71, 15
    s_lshl_b32 s77, s70, 11
    s_add_u32 s76, s76, s77
    s_add_u32 s76, s76, {WS_GU}
    s_add_u32 s77, s76, 16384
    v_mov_b32 v42, s{TAG}
    v_mov_b32 v43, s{TAG}
    v_mov_b32 v46, s{TAG}
    v_mov_b32 v47, s{TAG}
    s_waitcnt lgkmcnt(0)
    """)
    for i in range(4):
        for ab in range(2):
            a = D + 4*i + 2*ab; o = 40 + 4*ab
            k(pk("add", a, a, a+16)); k(pk("add", a+32, a+32, a+48)); k(pk("add", o, a, a+32))
            k(f"buffer_store_dwordx4 v[{o}:{o+3}], v35, s[{WS}:{WS+3}], s{76 + (i&1)} offen offset:{ab*1024 + (i>>1)*512} sc1")
    k("L_gudone:")
    vm.q = q0
    stamp(k, cfg, 2)
    XR, GR, DR, E1 = 84, 100, 116, 120
    AF, BF, DD = 20, 48, 76
    T = 152
    IDX, RSG = 178, 179
    k(f"""
    v_mov_b32 v{IDX}, v31
    v_mov_b32 v{RSG}, v30
    v_bfrev_b32 v2, 1
    v_and_b32 v7, 15, v1         ; cl
    v_lshlrev_b32 v11, 4, v4
    v_lshl_add_u32 v11, v3, 11, v11
    s_mul_i32 s50, s26, 28
    s_mul_i32 s51, s30, 7
    s_add_u32 s50, s50, s51
    s_lshl_b32 s50, s50, 14
    s_lshl_b32 s55, s27, 7
    s_add_u32 s50, s50, s55
    s_lshl_b32 s51, s51, 10
    s_lshl_b32 s48, s26, 7
    s_lshl_b32 s49, s30, 5
    s_add_u32 s49, s48, s49      ; R0
    v_lshlrev_b32 v12, 3, v7
    v_lshl_add_u32 v19, v6, 11, v12
    v_lshlrev_b32 v9, 3, v1
    """)
    stamp(k, cfg, 3)
    k("s_barrier")
    def e1_group(x, gp, e, b=None):
        for h in range(2):
            k(f"v_lshlrev_b32 v{T}, 16, v{x+h}\nv_and_b32 v{T+1}, 0xffff0000, v{x+h}")
            k(pk("mul", T+2, T, DR+2*h))
            k(pk("mul", T, gp, T if b is None else b+2*h, sa=1))
            k(f"""
            v_cvt_pk_bf16_f32 v{T+2}, v{T+2}, v{T+3}
            v_cvt_pk_bf16_f32 v{T}, v{T}, v{T+1}
            v_and_b32 v{T+3}, 0xffff0000, v{T+2}
            v_lshlrev_b32 v{T+2}, 16, v{T+2}
            v_and_b32 v{T+1}, 0xffff0000, v{T}
            v_lshlrev_b32 v{T}, 16, v{T}
            """)
            k(pk("fma", e+2*h, gp, T+2, T, sa=0))
    YP = 20
    TX, TG, TE, TR_, GG = 160, 162, 164, 168, 156
    GQ = 20
    def gu_loads():
        for kq in range(4):
            for ab in range(2):
                r = GQ + (kq*2+ab)*4
                k(f"buffer_load_dwordx4 v[{r}:{r+3}], v18, s[{WS}:{WS+3}], s{70 + (kq>>1)} offen offset:{(kq&1)*2048 + ab*1024} sc1")
    AG = 52
    def act_loads(tag):
        for r in range(2):
            t = f"buffer_load_dwordx4 v[{AG+4*r}:{AG+4*r+3}], v{(18, 13)[r]}, s[{WS}:{WS+3}], s72 offen offset:{r*1024} sc1"
            vm.issue(tag, t) if tag else k(t)
    mark = 0
    AUX = cfg.get('aux2', 'wd,gu,ep,act,e1,down,y').split(',')
    for i in range(13):
        if i == 0: stage2(2)
        stage2(i + 3)
        lg = ""
        WD0 = cfg.get("wd0", 1)
        if WD0 <= i < WD0 + 4 and 'wd' in AUX:
            L = k.label("wd")
            k(f"s_cmp_lg_u32 s63, {i - WD0}\ns_cbranch_scc1 {L}")
            for j in range(7):
                k(f"s_add_u32 m0, s51, {L_WD + j*1024}")
                if j: k("s_add_u32 s50, s50, 16384")
                k(f"buffer_load_dwordx4 v11, s[{WD}:{WD+3}], s50 offen{NT} lds")
            k(f"{L}:")
        if i == 1 and 'gu' in AUX:
            k(f"""
            s_lshl_b32 s70, s2, 13
            s_add_u32 s70, s70, {WS_GU}
            s_add_u32 s71, s70, 4096
            s_cmp_lt_u32 s2, 224
            s_cselect_b32 s73, s30, 1
            s_cmp_lg_u32 s73, 0
            s_cbranch_scc1 L_nogu1
            """)
            gu_loads()
            k("L_nogu1:")
            mark = vm.total
        if i == 2 and 'ep' in AUX:
            k(f"s_lshl_b32 s33, s49, 11\ns_add_u32 s33, s33, s55\ns_lshl_b32 s74, s49, 3\ns_add_u32 s74, s74, {WS_GATE}")
            vm.issue("g", f"buffer_load_dwordx2 v[{GG}:{GG+1}], v9, s[{WS}:{WS+3}], s74 offen sc1")
            vm.issue("ep", f"buffer_load_dwordx2 v[{DR}:{DR+1}], v12, s[{DK}:{DK+3}], s55 offen")
            for g_ in range(8):
                vm.issue("ep", f"buffer_load_dwordx2 v[{XR+2*g_}:{XR+2*g_+1}], v19, s[{XF}:{XF+3}], s33 offen")
                if g_ < 7: k("s_add_u32 s33, s33, 8192")
        if i == 3 and 'gu' in AUX:
            k(f"""
            s_cmp_lg_u32 s73, 0
            s_cbranch_scc1 L_nogu2
            v_mov_b32 v{T}, s{TAG}
            v_mov_b32 v{T+1}, s{TAG}
            s_mov_b32 s68, {SPIN}
            s_waitcnt vmcnt({vm.total - mark})
            L_gupoll:
            """)
            for q in range(8):
                k(f"v_cmp_ne_u64 {'vcc' if q == 0 else 's[66:67]'}, v[{GQ+4*q+2}:{GQ+4*q+3}], v[{T}:{T+1}]")
                if q: k("s_or_b64 vcc, vcc, s[66:67]")
            k("s_cbranch_vccz L_guok\ns_sub_u32 s68, s68, 1\ns_cbranch_scc1 L_guok")
            gu_loads()
            k("s_waitcnt vmcnt(0)\ns_branch L_gupoll\nL_guok:")
            for ab in range(2):
                a = GQ + 4*ab
                k(pk("add", a, a, a+8)); k(pk("add", a+16, a+16, a+24)); k(pk("add", a, a, a+16))
            for ab in range(2):
                g, u = GQ + 4*ab, GQ + 4*ab + 2
                k(f"v_cvt_pk_bf16_f32 v{g}, v{g}, v{g+1}\nv_mov_b32 v{u}, v{g}\nv_permlane32_swap_b32 v{g}, v{u}")
                k(f"""
                v_and_b32 v{g+1}, 0xffff0000, v{g}
                v_lshlrev_b32 v{g}, 16, v{g}
                v_and_b32 v{u+1}, 0xffff0000, v{u}
                v_lshlrev_b32 v{u}, 16, v{u}
                v_mul_f32 v{T+2}, {LOG2E ^ 0x80000000:#x}, v{g}
                v_mul_f32 v{T+3}, {LOG2E ^ 0x80000000:#x}, v{g+1}
                v_exp_f32 v{T+2}, v{T+2}
                v_exp_f32 v{T+3}, v{T+3}
                v_add_f32 v{T+2}, 1.0, v{T+2}
                v_add_f32 v{T+3}, 1.0, v{T+3}
                v_rcp_f32 v{T+2}, v{T+2}
                v_rcp_f32 v{T+3}, v{T+3}
                """)
                k(pk("mul", g, g, T+2))
                k(f"v_cvt_pk_bf16_f32 v{g}, v{g}, v{g+1}\nv_and_b32 v{g+1}, 0xffff0000, v{g}\nv_lshlrev_b32 v{g}, 16, v{g}")
                k(pk("mul", g, g, u))
                k(f"v_cvt_pk_bf16_f32 v{T-2+ab}, v{g}, v{g+1}")
            k(f"""
            s_lshl_b32 s33, s2, 9
            s_add_u32 s33, s33, {WS_ACT}
            s_mov_b64 exec, 0xffffffff
            buffer_store_dwordx4 v[{T-2}:{T+1}], v18, s[{WS}:{WS+3}], s33 offen sc1
            s_mov_b64 exec, -1
            L_nogu2:
            """)
        if i == 4 and 'ep' in AUX:
            vm.wait("ep")
            k(f"""
            s_mov_b32 s68, {SPIN}
            L_gpoll:
            v_cmp_ne_u32 vcc, s{TAG}, v{GG+1}
            s_and_b32 vcc_hi, vcc_hi, 0
            s_cbranch_vccz L_gok
            s_sub_u32 s68, s68, 1
            s_cbranch_scc1 L_gok
            buffer_load_dwordx2 v[{GG}:{GG+1}], v9, s[{WS}:{WS+3}], s74 offen sc1
            s_waitcnt vmcnt(0)
            s_branch L_gpoll
            L_gok:
            v_lshlrev_b32 v8, 2, v6
            """)
            for g_ in range(8): k(f"ds_bpermute_b32 v{GR+2*g_}, v8, v{GG} offset:{16*g_}")
            k(f"""
            v_and_b32 v{DR+3}, 0xffff0000, v{DR+1}
            v_lshlrev_b32 v{DR+2}, 16, v{DR+1}
            v_and_b32 v{DR+1}, 0xffff0000, v{DR}
            v_lshlrev_b32 v{DR}, 16, v{DR}
            s_mul_i32 s72, s26, 7168
            s_mul_i32 s33, s30, 1792
            s_add_u32 s72, s72, s33
            s_add_u32 s72, s72, {WS_ACT}
            v_cmp_gt_u32 vcc, 48, v1
            v_cndmask_b32 v13, v2, v18, vcc
            s_waitcnt lgkmcnt(0)
            """)
            for g_ in range(8): k(f"v_and_b32 v{GR+2*g_+1}, 0xffff0000, v{GR+2*g_}\nv_lshlrev_b32 v{GR+2*g_}, 16, v{GR+2*g_}")
        if i == 6 and 'act' in AUX: act_loads("act")
        for g_ in {5: (0, 1), 6: (2,), 7: (3, 4), 8: (5,), 10: (6,), 12: (7,)}.get(i, ()):
            if 'e1' in AUX: e1_group(XR + 2*g_, GR + 2*g_, E1 + 4*g_)
        if i == 8 and 'act' in AUX:
            vm.wait("act")
            k(f"""
            v_mov_b32 v{T}, s{TAG}
            v_mov_b32 v{T+1}, s{TAG}
            s_mov_b32 s68, {SPIN}
            L_actpoll:
            v_cmp_ne_u64 vcc, v[{AG+2}:{AG+3}], v[{T}:{T+1}]
            v_cmp_ne_u64 s[66:67], v[{AG+6}:{AG+7}], v[{T}:{T+1}]
            s_and_b32 s67, s67, 0xffff
            s_or_b64 vcc, vcc, s[66:67]
            s_cbranch_vccz L_actok
            s_sub_u32 s68, s68, 1
            s_cbranch_scc1 L_actok
            """)
            act_loads(None)
            k(f"""
            s_waitcnt vmcnt(0)
            s_branch L_actpoll
            L_actok:
            s_mul_i32 s33, s30, 112
            v_add_u32 v8, s33, v1
            v_bfe_u32 v{T}, v8, 4, 1
            v_mul_u32_u24 v{T}, {4*ACT_ROW}, v{T}
            v_and_b32 v{T+1}, 15, v8
            v_lshl_add_u32 v{T}, v{T+1}, 1, v{T}
            v_and_b32 v8, 0x1e0, v8
            v_add_u32 v8, v8, v{T}
            v_add_u32 v8, {L_ACT}, v8
            """)
            for r in range(2):
                if r: k("s_mov_b32 exec_hi, 0xffff")
                for h in range(2): k(f"ds_write_b16 v8, v{AG+4*r+h} offset:{r*64 + 2*h*ACT_ROW}\nds_write_b16_d16_hi v8, v{AG+4*r+h} offset:{r*64 + (2*h+1)*ACT_ROW}")
            k("s_mov_b32 exec_hi, -1")
            lg = "lgkmcnt(0)"
        if i == 9 and 'down' in AUX:
            k(f"""
            v_mul_u32_u24 v8, {ACT_ROW}, v4
            v_lshl_add_u32 v8, v6, 4, v8
            v_add_u32 v8, {L_ACT}, v8
            s_lshl_b32 s33, s30, 5
            v_add_u32 v5, s33, v5
            """)
            for s in range(7):
                k(f"ds_read_b128 v[{BF+4*s}:{BF+4*s+3}], v8 offset:{64*s}")
                for hh in range(2): k(f"ds_read_b64_tr_b16 v[{AF+4*s+2*hh}:{AF+4*s+2*hh+1}], v5 offset:{L_WD + (32*s+4*hh)*128}")
            for s in range(7):
                k(f"s_waitcnt lgkmcnt({min(15, 3*(6-s))})")
                k(f"v_mfma_f32_16x16x32_bf16 v[{DD}:{DD+3}], v[{BF+4*s}:{BF+4*s+3}], v[{AF+4*s}:{AF+4*s+3}], {'0' if s == 0 else f'v[{DD}:{DD+3}]'}")
            k(f"""
            v_and_b32 v8, 1, v6
            v_lshlrev_b32 v8, 1, v8
            v_lshrrev_b32 v20, 1, v6
            v_add_u32 v8, v8, v20
            v_lshlrev_b32 v8, 18, v8
            v_lshl_add_u32 v8, v7, 3, v8
            s_lshl_b32 s33, s27, 13
            s_lshl_b32 s34, s26, 9
            s_add_u32 s33, s33, s34
            s_lshl_b32 s34, s30, 7
            s_add_u32 s33, s33, s34
            s_add_u32 s33, s33, {WS_YP}
            s_add_u32 s34, s33, 131072
            v_mov_b32 v21, s{TAG}
            v_mov_b32 v23, s{TAG}
            v_mov_b32 v20, v{DD}
            v_mov_b32 v22, v{DD+1}
            s_mov_b32 exec_lo, 0
            v_mov_b32 v20, v{DD+2}
            v_mov_b32 v22, v{DD+3}
            s_mov_b32 exec_lo, -1
            """)
            vm.issue("yp", f"buffer_store_dwordx2 v[20:21], v8, s[{WS}:{WS+3}], s33 offen sc1")
            vm.issue("yp", f"buffer_store_dwordx2 v[22:23], v8, s[{WS}:{WS+3}], s34 offen sc1")
        if i == 10:
            k(f"""
            v_subrev_u32 v8, s49, v{IDX}
            v_lshlrev_b32 v{T}, v8, 1
            v_cmp_gt_u32 vcc, 32, v8
            v_cndmask_b32 v{T}, 0, v{T}, vcc
            v_or_b32_dpp v{T}, v{T}, v{T} row_shr:1 row_mask:0xf bank_mask:0xf
            v_or_b32_dpp v{T}, v{T}, v{T} row_shr:2 row_mask:0xf bank_mask:0xf
            v_or_b32_dpp v{T}, v{T}, v{T} row_shr:4 row_mask:0xf bank_mask:0xf
            v_lshlrev_b32 v8, v6, 1
            v_readlane_b32 s33, v{T}, 7
            """)
            for g_ in range(8): k(f"s_lshr_b32 s34, s33, {4*g_}\nv_and_b32 v{170+g_}, s34, v8")
        if i == 11:
            k(f"""
            s_add_u32 s33, s30, 4
            v_readlane_b32 s66, v{IDX}, s30
            v_readlane_b32 s67, v{RSG}, s30
            v_readlane_b32 s68, v{IDX}, s33
            v_readlane_b32 s69, v{RSG}, s33
            v_mov_b32 v10, s66
            v_mov_b32 v{TR_}, s67
            s_mov_b32 exec_lo, 0
            v_mov_b32 v10, s68
            v_mov_b32 v{TR_}, s69
            s_mov_b32 exec_lo, -1
            v_subrev_u32 v3, s48, v10
            v_cmp_gt_u32 vcc, 0x80, v3
            v_lshrrev_b32 v11, 5, v1
            v_lshlrev_b32 v11, 19, v11
            v_and_b32 v13, 1, v6
            v_lshl_add_u32 v11, v13, 12, v11
            v_lshl_add_u32 v11, v7, 5, v11
            s_mov_b64 s[52:53], vcc
            v_cndmask_b32 v11, v2, v11, vcc
            v_lshl_add_u32 v13, v10, 11, v12
            v_cndmask_b32 v13, v2, v13, vcc          ; x address
            v_lshlrev_b32 v12, 3, v10
            v_cndmask_b32 v12, v2, v12, vcc
            v_mov_b32 v9, s{TAG}
            v_cndmask_b32 v9, 0, v9, vcc
            s_lshl_b32 s54, s30, 17
            s_lshl_b32 s66, s27, 13
            s_add_u32 s54, s54, s66
            s_add_u32 s54, s54, {WS_YP}
            s_mov_b32 s66, {WS_GATE}
            """)
        if cfg.get("lstamps2"): stamp(k, cfg, 12 + i)
        vm.wait(f"c{i+1}", lg)
        k("s_barrier")
    def yloads(tag):
        for q in range(8):
            for h in range(2):
                r = YP + 8*q + 4*h
                t = f"buffer_load_dwordx4 v[{r}:{r+3}], v11, s[{WS}:{WS+3}], s54 offen offset:{q*512+h*16} sc1"
                vm.issue(tag, t) if tag else k(t)
    if 'y' not in AUX: k("s_mov_b64 s[52:53], 0")
    k("s_cmp_eq_u64 s[52:53], 0\ns_cbranch_scc1 L_noy")
    yloads(None)
    k(f"buffer_load_dwordx2 v[{TX}:{TX+1}], v13, s[{XF}:{XF+3}], s55 offen")
    k(f"buffer_load_dword v{TG}, v12, s[{WS}:{WS+3}], s66 offen sc1")
    k(f"""
    s_waitcnt vmcnt({vm.count_after('c14') + 18})
    s_barrier
    s_waitcnt vmcnt(18)
    s_barrier
    s_branch L_yjoin
    L_noy:
    """)
    vm.wait("c14"); k("s_barrier")
    vm.wait("c15"); k("s_barrier")
    k("L_yjoin:")
    k(f"""
    v_lshlrev_b32 v14, 4, v7
    v_lshl_add_u32 v15, v10, 12, v14
    v_lshl_add_u32 v14, v6, 12, v14
    v_xor_b32 v16, v7, v6
    v_lshlrev_b32 v16, 4, v16
    v_lshl_add_u32 v16, v6, 8, v16
    s_lshl_b32 s33, s30, 13
    s_add_u32 s33, s33, {L_STG}
    v_add_u32 v16, s33, v16
    v_xor_b32 v17, 64, v16
    v_and_b32 v8, 7, v3
    v_xor_b32 v8, v8, v7
    v_lshlrev_b32 v8, 4, v8
    v_and_b32 v5, 0x7f, v3
    v_lshl_add_u32 v8, v5, 8, v8
    s_lshl_b32 s67, s27, 8
    s_lshl_b32 s69, s49, 12
    s_add_u32 s69, s69, s67
    """)
    stamp(k, cfg, 4)
    k(f"s_cmp_eq_u64 s[52:53], 0\ns_cbranch_scc1 L_notok\ns_mov_b32 s68, {SPIN}\nL_ypoll:\ns_waitcnt vmcnt(0)")
    k(f"v_xor_b32 v{T}, v9, v{YP+1}")
    for q in range(1, 32): k(f"v_xor_b32 v{T+1}, v9, v{YP+2*q+1}\nv_or_b32 v{T}, v{T}, v{T+1}")
    k(f"v_cmp_ne_u32 vcc, 0, v{T}\ns_cbranch_vccz L_yok\ns_sub_u32 s68, s68, 1\ns_cbranch_scc1 L_yok")
    yloads(None)
    k("s_branch L_ypoll\nL_yok:")
    for q in range(1, 8):
        for x in range(4): k(f"v_add_f32 v{YP+2*x}, v{YP+2*x}, v{YP+8*q+2*x}")
    for x in range(4): k(f"v_mov_b32 v{YP+2*x+1}, v{YP+2*x}")
    for x in range(4): k(f"v_permlane16_swap_b32 v{YP+2*x}, v{YP+2*x+1}")
    for x in range(4): k(f"v_add_f32 v{YP+8+x}, v{YP+2*x}, v{YP+2*x+1}")
    Y = YP + 8
    k(f"v_and_b32 v{TG+1}, 0xffff0000, v{TG}\nv_lshlrev_b32 v{TG}, 16, v{TG}")
    for h in range(2):
        y = Y + 2*h
        k(f"""
        v_cvt_pk_bf16_f32 v{y}, v{y}, v{y+1}
        v_and_b32 v{y+1}, 0xffff0000, v{y}
        v_lshlrev_b32 v{y}, 16, v{y}
        v_mul_f32 v{y}, v{y}, v{TR_}
        v_mul_f32 v{y+1}, v{y+1}, v{TR_}
        v_cvt_pk_bf16_f32 v{y}, v{y}, v{y+1}
        v_and_b32 v{y+1}, 0xffff0000, v{y}
        v_lshlrev_b32 v{y}, 16, v{y}
        v_lshlrev_b32 v{T}, 16, v{TX+h}
        v_and_b32 v{T+1}, 0xffff0000, v{TX+h}
        """)
        k(pk("add", y, y, T))
        k(f"v_cvt_pk_bf16_f32 v{y}, v{y}, v{y+1}\nv_and_b32 v{y+1}, 0xffff0000, v{y}\nv_lshlrev_b32 v{y}, 16, v{y}")
    e1_group(TX, TG, TE, b=Y)
    k("L_notok:")
    stamp(k, cfg, 5)
    k("s_barrier")
    A = 20
    for g_ in range(8): k(f"ds_read_b128 v[{A+4*g_}:{A+4*g_+3}], v{16 + (g_ & 1)} offset:{g_*1024}")
    k(f"ds_read_b128 v[{A+32}:{A+35}], v8 offset:{L_STG}")
    ONT = " nt" if cfg.get("nto") else ""
    for g_ in range(8):
        k(f"v_cmp_eq_u32 vcc, 0, v{170+g_}\ns_waitcnt lgkmcnt({8-g_})")
        for h in range(2): k(pk("fma", A+4*g_+2*h, GR+2*g_, A+4*g_+2*h, E1+4*g_+2*h, sa=0))
        k(f"s_mov_b64 exec, vcc\nbuffer_store_dwordx4 v[{A+4*g_}:{A+4*g_+3}], v14, s[{OS}:{OS+3}], s69 offen{ONT}\ns_mov_b64 exec, -1\ns_add_u32 s69, s69, 16384")
    k(f"s_waitcnt lgkmcnt(0)")
    for h in range(2): k(pk("fma", A+32+2*h, TG, A+32+2*h, TE+2*h, sa=0))
    k(f"""
    s_and_b32 exec_lo, s52, 0xffff
    s_and_b32 exec_hi, s53, 0xffff
    s_cbranch_execz L_aend
    buffer_store_dwordx4 v[{A+32}:{A+35}], v15, s[{OS}:{OS+3}], s67 offen{ONT}
    L_aend:
    """)
    stamp(k, cfg, 6)
    if cfg.get("stamps") or cfg.get("dbgt"): k("s_waitcnt vmcnt(0)"); stamp(k, cfg, 7)
    stamp_flush(k, cfg, 0)
    k("s_endpgm")

def compute(k, cfg):
    LRS, LIS, DTS, WS, ES, HS, XS, RS, GS, CS = 8, 12, 16, 20, 36, 40, 64, 68, 72, 76
    LR, LI, L8R, L8I, L16R, L16I, SR_, SI_, T1, T2 = 10, 12, 14, 16, 18, 20, 22, 24, 26, 28
    FR, ACC, GR = 32, 96, 160
    TB = lambda tp, cb: 200 + (tp*2+cb)*2
    WRs = lambda cb: 232 + 2*cb
    WIs = lambda cb: 236 + 2*cb
    VR_, VI_, L5R, L5I = 240, 242, 244, 246
    EXP = [248, 250, 252, 254]
    X0, WR, GW, GL, GH, AR, AZ, T0, ONE = 160, 176, 184, 64, 72, 80, 82, 84, 92
    RAWR, RAWI = 32, 34
    k(f"""
    s_load_dwordx2 s[{XS}:{XS+1}], s[0:1], {KA['x']}
    s_load_dwordx2 s[{RS}:{RS+1}], s[0:1], {KA['w_r']}
    s_load_dwordx2 s[{GS}:{GS+1}], s[0:1], {KA['gate_w']}
    s_load_dwordx2 s[{LRS}:{LRS+1}], s[0:1], {KA['lam_re']}
    s_load_dwordx2 s[{LIS}:{LIS+1}], s[0:1], {KA['lam_im']}
    s_load_dwordx2 s[{DTS}:{DTS+1}], s[0:1], {KA['log_dt']}
    s_load_dwordx2 s[{WS}:{WS+1}], s[0:1], {KA['ws']}
    s_load_dwordx4 s[{CS}:{CS+3}], s[0:1], {KA['c_re']}
    s_lshr_b32 s30, s29, 1       ; wm
    s_and_b32 s31, s29, 1        ; wn
    v_and_b32 v6, 15, v1         ; j
    v_lshrrev_b32 v7, 4, v1      ; q
    s_lshl_b32 s32, s27, 6
    s_lshl_b32 s33, s31, 5
    s_add_u32 s32, s32, s33
    s_lshl_b32 s32, s32, 1
    v_lshlrev_b32 v8, 1, v6
    v_lshlrev_b32 v196, 4, v1
    s_lshl_b32 s46, s26, 7
    s_lshl_b32 s47, s27, 3
    s_add_u32 s46, s46, s47
    s_lshl_b32 s47, s29, 1
    s_add_u32 s46, s46, s47
    s_lshl_b32 s48, s46, 11
    s_mov_b32 s{XS+2}, {SZ['x']}
    s_mov_b32 s{XS+3}, 0x20000
    """)
    for s in (LRS, LIS, DTS, RS, GS): k(f"s_mov_b32 s{s+2}, 2048\ns_mov_b32 s{s+3}, 0x20000")
    k("s_waitcnt lgkmcnt(0)")
    k(f"s_load_dword s44, s[{WS}:{WS+1}], {WS_G}")
    for cb in range(2):
        k(f"buffer_load_ushort v{T1+cb}, v8, s[{DTS}:{DTS+3}], s32 offen offset:{cb*32}")
        k(f"buffer_load_ushort v{RAWR+cb}, v8, s[{LRS}:{LRS+3}], s32 offen offset:{cb*32}")
        k(f"buffer_load_ushort v{RAWI+cb}, v8, s[{LIS}:{LIS+3}], s32 offen offset:{cb*32}")
    for h in range(2):
        k(f"buffer_load_dwordx4 v[{GW+4*h}:{GW+4*h+3}], v196, s[{GS}:{GS+3}], 0 offen offset:{h*1024}")
        k(f"buffer_load_dwordx4 v[{WR+4*h}:{WR+4*h+3}], v196, s[{RS}:{RS+3}], 0 offen offset:{h*1024}")
    for r in range(2):
        for h in range(2):
            k(f"buffer_load_dwordx4 v[{X0+8*r+4*h}:{X0+8*r+4*h+3}], v196, s[{XS}:{XS+3}], s48 offen offset:{r*2048+h*1024}")
    if cfg.get("codepf", 1):
        k(f"""
        s_getpc_b64 s[{LRS}:{LRS+1}]
        Lc_pc:
        s_sub_u32 s{LRS}, s{LRS}, Lc_pc - {NAME}_kernel
        s_subb_u32 s{LRS+1}, s{LRS+1}, 0
        s_mov_b32 s{LRS+2}, L_end - {NAME}_kernel
        s_lshl_b32 s33, s25, 10
        s_cmp_lg_u32 s29, 0
        s_cbranch_scc1 Lc_nopf
        buffer_load_dwordx4 v[192:195], v196, s[{LRS}:{LRS+3}], s33 offen
        Lc_nopf:
        """)
    k(f"""
    v_lshrrev_b32 v8, 1, v6
    v_xor_b32 v8, v8, v7
    v_lshlrev_b32 v8, 4, v8
    v_lshl_add_u32 v8, v6, 7, v8
    s_lshl_b32 s33, s30, 13
    s_lshl_b32 s34, s31, 13
    s_add_u32 s34, s34, 16384
    v_add_u32 v2, s33, v8
    v_add_u32 v4, s34, v8
    v_xor_b32 v3, 64, v2
    v_xor_b32 v5, 64, v4
    s_lshl_b32 s33, s27, 14
    s_add_u32 s33, s33, {WS_E}
    s_add_u32 s{ES}, s{WS}, s33
    s_addc_u32 s{ES+1}, s{WS+1}, 0
    s_mov_b32 s{ES+2}, 16384
    s_mov_b32 s{ES+3}, 0x20000
    s_add_u32 s33, s27, s26
    s_and_b32 s33, s33, 15
    s_lshl_b32 s33, s33, 2
    s_add_u32 s33, s33, s31
    s_lshl_b32 s33, s33, 3
    s_lshl_b32 s34, s26, 9
    s_add_u32 s33, s33, s34
    s_lshl_b32 s34, s30, 2
    s_add_u32 s33, s33, s34
    s_lshl_b32 s33, s33, 10
    s_add_u32 s33, s33, {WS_H}
    s_add_u32 s{HS}, s{WS}, s33
    s_addc_u32 s{HS+1}, s{WS+1}, 0
    s_mov_b32 s{HS+2}, {2*8192 + 4096}
    s_mov_b32 s{HS+3}, 0x20000
    s_lshl_b32 s33, s27, 6
    s_lshl_b32 s34, s30, 5
    s_add_u32 s33, s33, s34
    s_lshl_b32 s33, s33, 11
    s_cmp_eq_u32 s31, 1
    s_cselect_b32 s{CS}, s{CS+2}, s{CS}
    s_cselect_b32 s{CS+1}, s{CS+3}, s{CS+1}
    s_add_u32 s{CS}, s{CS}, s33
    s_addc_u32 s{CS+1}, s{CS+1}, 0
    s_sub_u32 s{CS+2}, {SZ['c_re']}, s33
    s_mov_b32 s{CS+3}, 0x20000
    """)
    for r in range(64): k(f"v_mov_b32 v{ACC+r}, 0")
    k("s_waitcnt vmcnt(8)")
    for cb in range(2):
        k(f"""
        v_lshlrev_b32 v{T1+cb}, 16, v{T1+cb}
        v_lshlrev_b32 v{RAWR+cb}, 16, v{RAWR+cb}
        v_lshlrev_b32 v{RAWI+cb}, 16, v{RAWI+cb}
        v_mul_f32 v{T1+cb}, {LOG2E:#x}, v{T1+cb}
        v_exp_f32 v{T1+cb}, v{T1+cb}
        """)
    k(f"v_cvt_pk_bf16_f32 v{T1}, v{T1}, v{T1+1}\nv_and_b32 v{T1+1}, 0xffff0000, v{T1}\nv_lshlrev_b32 v{T1}, 16, v{T1}")
    k(pk("mul", T2, T1, RAWI)); k(pk("mul", T1, T1, RAWR))
    for cb in range(2):
        k(f"""
        v_mul_f32 v{T1+cb}, {LOG2E:#x}, v{T1+cb}
        v_mul_f32 v{T2+cb}, {INV2PI:#x}, v{T2+cb}
        v_exp_f32 v{T1+cb}, v{T1+cb}
        v_rndne_f32 v{LR+cb}, v{T2+cb}
        v_sub_f32 v{T2+cb}, v{T2+cb}, v{LR+cb}
        v_cos_f32 v{LR+cb}, v{T2+cb}
        v_sin_f32 v{LI+cb}, v{T2+cb}
        """)
    k(pk("mul", LR, LR, T1)); k(pk("mul", LI, LI, T1))
    csq(k, L8R, L8I, LR, LI, T1); csq(k, L16R, L16I, L8R, L8I, T1); csq(k, L8R, L8I, L16R, L16I, T1); csq(k, L16R, L16I, L8R, L8I, T1)
    A_R, A_I, B_R, B_I, WR_, WI_, S2R, S2I, TT = 36, 38, 40, 42, 44, 46, 48, 50, 52
    k("s_lshl_b32 s33, s30, 2\nv_add_u32 v8, s33, v7")
    def sel_one(dr, di, sr, si, bit, v):
        k(f"v_and_b32 v9, {bit}, v{v}\nv_cmp_ne_u32 vcc, 0, v9")
        for cb in range(2): k(f"v_cndmask_b32 v{dr+cb}, 1.0, v{sr+cb}, vcc\nv_cndmask_b32 v{di+cb}, 0, v{si+cb}, vcc")
    sel_one(WR_, WI_, L16R, L16I, 1, 8)
    csq(k, A_R, A_I, L16R, L16I, TT)
    sel_one(SR_, SI_, A_R, A_I, 2, 8)
    cmul_cb(k, VR_, VI_, WR_, WI_, SR_, SI_)
    csq(k, B_R, B_I, A_R, A_I, TT)
    sel_one(SR_, SI_, B_R, B_I, 4, 8)
    cmul_cb(k, WR_, WI_, VR_, VI_, SR_, SI_)
    csq(k, A_R, A_I, B_R, B_I, TT)
    sel_one(S2R, S2I, A_R, A_I, 1, 7)
    csq(k, B_R, B_I, A_R, A_I, TT)
    sel_one(SR_, SI_, B_R, B_I, 2, 7)
    cmul_cb(k, VR_, VI_, S2R, S2I, SR_, SI_)
    csq(k, L5R, L5I, B_R, B_I, TT)
    cmul_cb(k, A_R, A_I, WR_, WI_, L8R, L8I)
    for cb in range(2):
        k(f"v_mov_b32 v{WRs(cb)}, v{WR_+cb}\nv_mov_b32 v{WRs(cb)+1}, v{A_R+cb}\nv_mov_b32 v{WIs(cb)}, v{WI_+cb}\nv_mov_b32 v{WIs(cb)+1}, v{A_I+cb}")
    for cb in range(2):
        k(f"v_max_f32 v{T1+cb}, |v{RAWR+cb}|, |v{RAWI+cb}|\nv_rcp_f32 v{T2+cb}, v{T1+cb}")
    k(pk("mul", RAWR, RAWR, T2)); k(pk("mul", RAWI, RAWI, T2))
    k(pk("mul", T2, RAWR, RAWR)); k(pk("fma", T2, RAWI, RAWI, T2)); k(pk("mul", T2, T2, T1))
    for cb in range(2): k(f"v_rcp_f32 v{T2+cb}, v{T2+cb}\nv_add_f32 v{T1+cb}, -1.0, v{LR+cb}")
    k(pk("add", T2, T2, T2))
    k(pk("mul", SR_, T1, RAWR)); k(pk("mul", SI_, LI, RAWR)); k(pk("fma", SR_, LI, RAWI, SR_)); k(pk("fma", SI_, T1, RAWI, SI_, na=3))
    k(pk("mul", SR_, SR_, T2)); k(pk("mul", SI_, SI_, T2))
    for cb in range(2):
        k(f"v_mov_b32 v{T1+2*cb}, v{SR_+cb}\nv_mov_b32 v{T1+2*cb+1}, v{SI_+cb}")
    for tp in range(8):
        for cb in range(2):
            src = T1 + 2*cb if tp == 0 else TB(tp-1, cb)
            k(pk("mul", TB(tp,cb), LR, src, sa=cb))
        for cb in range(2):
            src = T1 + 2*cb if tp == 0 else TB(tp-1, cb)
            k(pk("fma", TB(tp,cb), LI, src, TB(tp,cb), sa=cb, sb='x', nb=1))
    k(f"v_mov_b32 v{ONE}, 0x3f803f80\nv_mov_b32 v{AR}, 0\nv_mov_b32 v{AR+1}, 0\nv_mov_b32 v{AZ}, 0\nv_mov_b32 v{AZ+1}, 0\ns_waitcnt vmcnt(0)")
    for q in range(8): k(f"v_and_b32 v{GL+q}, 0xffff, v{GW+q}\nv_and_b32 v{GH+q}, 0xffff0000, v{GW+q}")
    for i in range(8):
        t = T0 + 4*(i & 1)
        for r in range(2):
            k(f"v_dot2_f32_bf16 v{t+2*r}, v{X0+8*r+i}, v{GL+i}, 0\nv_dot2_f32_bf16 v{t+2*r+1}, v{X0+8*r+i}, v{GH+i}, 0")
        for r in range(2): k(f"v_dot2c_f32_bf16 v{AR+r}, v{X0+8*r+i}, v{WR+i}")
        if i:
            for r in range(2): k(f"v_dot2c_f32_bf16 v{AZ+r}, v{T0+4*((i-1)&1)+2*r}, v{ONE}")
        for r in range(2): k(f"v_cvt_pk_bf16_f32 v{t+2*r}, v{t+2*r}, v{t+2*r+1}")
    for r in range(2): k(f"v_dot2c_f32_bf16 v{AZ+r}, v{T0+4+2*r}, v{ONE}")
    wave_sum(k, [AR, AR+1, AZ, AZ+1])
    k(f"""
    v_readlane_b32 s33, v{AR+1}, 63
    v_readlane_b32 s34, v{AZ+1}, 63
    v_sub_u32 v{T0+2}, 63, v1
    v_add_u32 v{T0+3}, s46, v{T0+2}
    v_sub_u32 v{T0+3}, 2047, v{T0+3}
    v_add_u32 v{T0+2}, s47, v{T0+2}
    v_lshlrev_b32 v{T0+2}, 3, v{T0+2}
    v_add_u32 v{T0+2}, {L_RT}, v{T0+2}
    v_writelane_b32 v{AR}, s33, 62
    v_writelane_b32 v{AZ}, s34, 62
    v_cvt_pk_bf16_f32 v{AR}, v{AR}, v{AZ}
    v_and_b32 v{AZ}, 0xffff0000, v{AR}
    v_lshlrev_b32 v{AR}, 16, v{AR}
    v_ashrrev_i32 v{T0}, 31, v{AR}
    v_or_b32 v{T0}, 0x80000000, v{T0}
    v_xor_b32 v{T0}, v{T0}, v{AR}
    v_and_b32 v{T0}, 0xffff0000, v{T0}
    v_or_b32 v{T0}, v{T0}, v{T0+3}           ; key
    """)
    sigmoid_bf16(k, T0+4, AZ, T0+3)
    k(f"""
    v_sub_f32 v{T0+5}, 1.0, v{T0+4}
    v_cvt_pk_bf16_f32 v{T0+1}, v{T0+4}, v{T0+5}
    s_mov_b32 exec_lo, 0
    s_mov_b32 exec_hi, 0xc0000000
    ds_write_b64 v{T0+2}, v[{T0}:{T0+1}]
    s_mov_b64 exec, -1
    s_waitcnt lgkmcnt(0)
    s_mul_i32 s44, s44, 1664525
    s_add_u32 s44, s44, 1013904223
    """)
    stamp(k, cfg, 11)
    if cfg.get("prio"): k(f"s_setprio {cfg['prio']}")
    k("s_barrier")
    stamp(k, cfg, 0)
    def rd(sub, fs, slot):
        b = FR + 32*fs; o = slot*32768
        A = [f"ds_read_b128 v[{b+4*m}:{b+4*m+3}], v{2+sub} offset:{o+m*2048}" for m in range(4)]
        B = [f"ds_read_b128 v[{b+16+4*m}:{b+16+4*m+3}], v{4+sub} offset:{o+m*2048}" for m in range(4)]
        return [A[0], B[0], B[1], B[2], B[3], A[1], A[2], A[3]]
    def mm(fs):
        b = FR + 32*fs; out = []
        for mb in range(4):
            for x in (range(4) if mb % 2 == 0 else range(3, -1, -1)):
                ri, cb = x >> 1, x & 1
                a = ACC + (cb*2+ri)*16 + mb*4
                out.append(f"v_mfma_f32_16x16x32_bf16 v[{a}:{a+3}], v[{b+4*mb}:{b+4*mb+3}], v[{b+16+4*x}:{b+16+4*x+3}], v[{a}:{a+3}]")
        return out
    for l in rd(0, 0, 0): k(l)
    k("s_mov_b32 s35, 0\nLc_loop:")
    BAR = cfg.get("bar1", 1)
    for half in range(2):
        m = mm(0); r = rd(1, 1, half)
        k("s_waitcnt lgkmcnt(0)")
        for i in range(16):
            k(m[i])
            if i < 8: k(r[i])
        m = mm(1)
        if half == 0: r = rd(0, 0, 1)
        else: r = rd(0, 0, 0)
        k("s_waitcnt lgkmcnt(0)")
        for i in range(16):
            k(m[i])
            if half == 1 and i == 0:
                for a in range(2, 6): k(f"v_xor_b32 v{a}, 0x10000, v{a}")
            if i == BAR - 1:
                if half == 0: k("s_barrier")
                else: k("s_cmp_eq_u32 s35, 7\ns_cbranch_scc1 Lc_nobar\ns_barrier\nLc_nobar:")
            if BAR <= i < BAR + 8: k(r[i - BAR])
    stamp_loop(k, cfg, 12, 35)
    k("s_add_u32 s35, s35, 1\ns_cmp_lt_u32 s35, 8\ns_cbranch_scc1 Lc_loop")
    stamp(k, cfg, 1)
    U = lambda cb, ri, tp: ACC + (cb*2+ri)*16 + 2*tp
    k(f"""
    s_sub_u32 s33, s26, 1
    v_sub_u32 v8, s33, v7
    v_lshlrev_b32 v8, 10, v8
    v_lshl_add_u32 v8, v6, 4, v8
    s_lshl_b32 s33, s31, 9
    v_add_u32 v192, s33, v8
    v_add_u32 v193, -4096, v192
    v_add_u32 v194, -8192, v192
    v_add_u32 v195, -12288, v192
    v_mov_b32 v9, {L_FLAG}
    """)
    def lb_loads():
        for i in range(4):
            for cb in range(2):
                g = GR + (i*2+cb)*4
                k(f"buffer_load_dwordx4 v[{g}:{g+3}], v{192+i}, s[{ES}:{ES+3}], 0 offen offset:{cb*256} sc1")
    lb_loads()
    k("s_waitcnt lgkmcnt(0)")
    for tp in range(1, 8):
        for ri_first in (0,):
            for cb in range(2): k(pk("fma", U(cb,0,tp), LR, U(cb,0,tp-1), U(cb,0,tp), sa=cb))
            for cb in range(2): k(pk("fma", U(cb,1,tp), LR, U(cb,1,tp-1), U(cb,1,tp), sa=cb))
            for cb in range(2): k(pk("fma", U(cb,0,tp), LI, U(cb,1,tp-1), U(cb,0,tp), sa=cb, na=3))
            for cb in range(2): k(pk("fma", U(cb,1,tp), LI, U(cb,0,tp-1), U(cb,1,tp), sa=cb))
    for cb in range(2):
        e = T1 + 2*cb; r0, i0 = U(cb,0,7), U(cb,1,7)
        k(f"""
        v_fma_f32 v{e}, v{L8R+cb}, v{r0}, v{r0+1}
        v_fma_f32 v{e+1}, v{L8R+cb}, v{i0}, v{i0+1}
        v_fma_f32 v{e}, -v{L8I+cb}, v{i0}, v{e}
        v_fma_f32 v{e+1}, v{L8I+cb}, v{r0}, v{e+1}
        """)
    k(f"""
    s_lshl_b32 s33, s31, 8
    s_add_u32 s33, s33, {L_EX}
    v_lshl_add_u32 v30, v6, 3, s33          ; e[0][ch]
    s_lshl_b32 s33, s30, 11
    v_lshl_add_u32 v31, v7, 9, s33
    v_add_u32 v31, v31, v30                 ; e[seg][ch]
    ds_write_b64 v31, v[{T1}:{T1+1}]
    ds_write_b64 v31, v[{T1+2}:{T1+3}] offset:128
    s_lshl_b32 s33, s29, 2
    v_add_u32 v31, s33, v9
    s_xor_b32 s33, s33, 8
    v_add_u32 v9, s33, v9                   ; partner's flag
    v_mov_b32 v8, 1
    ds_write_b32 v31, v8
    s_mov_b32 s45, {SPIN}
    Lc_expoll:
    ds_read_b32 v8, v9
    """)
    EV = lambda s, cb: FR + (s*2+cb)*2
    for s in range(8):
        for cb in range(2): k(f"ds_read_b64 v[{EV(s,cb)}:{EV(s,cb)+1}], v30 offset:{s*512+cb*128}")
    k(f"""
    s_waitcnt lgkmcnt(0)
    v_readfirstlane_b32 s33, v8
    s_sub_u32 s45, s45, 1
    s_cbranch_scc1 Lc_exok
    s_cmp_eq_u32 s33, 0
    s_cbranch_scc1 Lc_expoll
    Lc_exok:
    """)
    for s in range(1, 8):
        for cb in range(2): cfma_ri(k, EV(s,cb), L16R, L16I, cb, EV(s-1,cb), EV(s,cb), EV(s,cb))
    k(f"""
    s_cmp_eq_u32 s30, 0
    s_cbranch_scc1 Lc_nopub
    s_cmp_eq_u32 s26, 15
    s_cbranch_scc1 Lc_nopub
    v_mov_b32 v{T1}, v{EV(7,0)}
    v_mov_b32 v{T1+1}, v{EV(7,0)+1}
    v_mov_b32 v{T1+2}, s44
    v_mov_b32 v{T1+3}, s44
    s_lshl_b32 s33, s26, 10
    s_lshl_b32 s34, s31, 9
    s_add_u32 s33, s33, s34
    v_lshlrev_b32 v8, 4, v1
    s_mov_b64 exec, 0xffff0000
    v_mov_b32 v{T1}, v{EV(7,1)}
    v_mov_b32 v{T1+1}, v{EV(7,1)+1}
    s_mov_b64 exec, 0xffffffff
    buffer_store_dwordx4 v[{T1}:{T1+3}], v8, s[{ES}:{ES+3}], s33 offen sc1
    s_mov_b64 exec, -1
    Lc_nopub:
    """)
    stamp(k, cfg, 2)
    PL = FR + 28
    k(f"v_mov_b32 v{PL}, 0\nv_mov_b32 v{PL+1}, 0\nv_mov_b32 v{PL+2}, 0\nv_mov_b32 v{PL+3}, 0")
    k("s_lshl_b32 s33, s30, 2\nv_add_u32 v8, s33, v7")
    for s in range(1, 8):
        k(f"v_cmp_eq_u32 vcc, {s}, v8")
        for x in range(4): k(f"v_cndmask_b32 v{PL+x}, v{PL+x}, v{EV(s-1,0)+x}, vcc")
    PRs = lambda cb: FR + 4*cb
    PIs = lambda cb: FR + 4*cb + 2
    for cb in range(2):
        p = PL + 2*cb; r0, i0 = U(cb,0,7), U(cb,1,7)
        k(f"""
        v_fma_f32 v{PRs(cb)+1}, v{L8R+cb}, v{p}, v{r0}
        v_fma_f32 v{PIs(cb)+1}, v{L8R+cb}, v{p+1}, v{i0}
        v_mov_b32 v{PRs(cb)}, v{p}
        v_mov_b32 v{PIs(cb)}, v{p+1}
        v_fma_f32 v{PRs(cb)+1}, -v{L8I+cb}, v{p+1}, v{PRs(cb)+1}
        v_fma_f32 v{PIs(cb)+1}, v{L8I+cb}, v{p}, v{PIs(cb)+1}
        """)
    for tp in range(8):
        for cb in range(2):
            t = T1 + 2*cb; R, I = U(cb,0,tp), U(cb,1,tp)
            k(pk("mul", t, SI_, R, sa=cb, na=3)); k(pk("mul", R, SR_, R, sa=cb))
            k(pk("fma", R, SI_, I, R, sa=cb, na=3)); k(pk("fma", I, SR_, I, t, sa=cb, na=3))
    k(f"v_mov_b32 v9, s44")
    for i in range(4):
        k(f"v_cmp_le_i32 vcc, 0, v{192+i}\nv_cndmask_b32 v{EXP[i]}, 0, v9, vcc\nv_cndmask_b32 v{EXP[i]+1}, 0, v9, vcc")
    k(f"""
    s_lshl_b32 s33, s29, 12
    s_add_u32 s33, s33, {L_TR}
    v_lshrrev_b32 v8, 1, v6
    v_and_b32 v8, 4, v8
    v_and_b32 v9, 7, v6
    v_xor_b32 v8, v8, v9                    ; g(j)
    v_lshlrev_b32 v9, 1, v7
    v_xor_b32 v8, v8, v9
    v_lshlrev_b32 v8, 4, v8
    v_lshl_add_u32 v8, v6, 7, v8
    v_add_u32 v2, s33, v8
    v_xor_b32 v3, 16, v2
    v_bfe_u32 v8, v1, 2, 2                  ; r
    v_bfe_u32 v9, v1, 1, 1
    v_xor_b32 v9, v9, v8
    v_and_b32 v4, 1, v7
    v_lshlrev_b32 v4, 2, v4
    v_xor_b32 v9, v9, v4
    v_lshlrev_b32 v9, 4, v9
    v_lshl_add_u32 v8, v7, 3, v8
    v_lshl_add_u32 v9, v8, 7, v9
    v_and_b32 v8, 1, v1
    v_lshl_add_u32 v9, v8, 3, v9
    v_add_u32 v4, s33, v9
    v_xor_b32 v5, 32, v4
    v_xor_b32 v30, 64, v4
    v_xor_b32 v31, 96, v4
    s_mov_b32 s45, {SPIN}
    """)
    if cfg.get("dbgregs"):
        k(f"s_mov_b32 s{WS+2}, {SZ['ws']}\ns_mov_b32 s{WS+3}, 0x20000\ns_lshl_b32 s34, s2, 2\ns_add_u32 s34, s34, s29\ns_lshl_b32 s34, s34, 14\ns_add_u32 s34, s34, {WS_STAMP}\nv_lshlrev_b32 v197, 2, v1")
        for i, r in enumerate(cfg["dbgregs"]):
            if i and i % 16 == 0: k("s_add_u32 s34, s34, 4096")
            k(f"buffer_store_dword v{r}, v197, s[{WS}:{WS+3}], s34 offen offset:{(i%16)*256}")
    stamp(k, cfg, 3)
    k("Lc_lbpoll:\ns_waitcnt vmcnt(0)")
    for i in range(4):
        for cb in range(2):
            g = GR + (i*2+cb)*4
            k(f"v_cmp_ne_u64 s[{46+2*(i*2+cb)}:{47+2*(i*2+cb)}], v[{g+2}:{g+3}], v[{EXP[i]}:{EXP[i]+1}]")
    k("""
    s_or_b64 s[46:47], s[46:47], s[48:49]
    s_or_b64 s[50:51], s[50:51], s[52:53]
    s_or_b64 s[54:55], s[54:55], s[56:57]
    s_or_b64 s[58:59], s[58:59], s[60:61]
    s_or_b64 s[46:47], s[46:47], s[50:51]
    s_or_b64 s[54:55], s[54:55], s[58:59]
    s_or_b64 s[46:47], s[46:47], s[54:55]
    s_cbranch_scc0 Lc_lbok
    s_sub_u32 s45, s45, 1
    s_cbranch_scc1 Lc_lbok
    """)
    lb_loads()
    k("s_branch Lc_lbpoll\nLc_lbok:")
    stamp(k, cfg, 4)
    G = lambda i, cb: GR + (i*2+cb)*4
    for i in (2, 1, 0):
        for cb in range(2): cfma_ri(k, G(i,cb), L5R, L5I, cb, G(i+1,cb), G(i,cb), G(i,cb))
    H = lambda cb: G(1, cb)
    for cb in range(2): k(pk("mul", H(cb), VR_, G(0,cb), sa=cb))
    for cb in range(2): k(pk("fma", H(cb), VI_, G(0,cb), H(cb), sa=cb, sb='x', nb=1))
    for op in ("v_permlane16_swap_b32", "v_permlane32_swap_b32"):
        for cb in range(2): k(f"v_mov_b32 v{H(cb)+2}, v{H(cb)}\nv_mov_b32 v{H(cb)+3}, v{H(cb)+1}")
        for cb in range(2): k(f"{op} v{H(cb)}, v{H(cb)+2}\n{op} v{H(cb)+1}, v{H(cb)+3}")
        for cb in range(2): k(pk("add", H(cb), H(cb), H(cb)+2))
    for cb in range(2):
        k(pk("fma", PRs(cb), WRs(cb), H(cb), PRs(cb), sb=0)); k(pk("fma", PIs(cb), WRs(cb), H(cb), PIs(cb), sb=1))
    for cb in range(2):
        k(pk("fma", PRs(cb), WIs(cb), H(cb), PRs(cb), sb=1, nb=3)); k(pk("fma", PIs(cb), WIs(cb), H(cb), PIs(cb), sb=0))
    PK = GR
    RA = {0: 4, 2: 5, 4: 30, 6: 31}
    k(f"s_mov_b32 s33, {2*8192}")
    def hstores(ri):
        for qq in range(4):
            b = ACC + 32*ri + 4*qq
            k(f"s_waitcnt lgkmcnt({2*(1-ri) + 2*(3-qq)})")
            k(f"buffer_store_dwordx4 v[{b}:{b+3}], v196, s[{HS}:{HS+3}], {'s33' if ri else '0'} offen offset:{qq*1024} sc1")
    for ri in range(2):
        for cb in range(2):
            for tp in range(8):
                R, I, T = U(cb,0,tp), U(cb,1,tp), TB(tp,cb)
                if ri == 0: k(pk("fma", R, T, PRs(cb), R, sa=0)); k(pk("fma", R, T, PIs(cb), R, sa=1, na=3))
                else: k(pk("fma", I, T, PIs(cb), I, sa=0, na=3)); k(pk("fma", I, T, PRs(cb), I, sa=1, na=3))
            for sub in range(2):
                b = PK + ((ri*2+cb)*2+sub)*4
                for x in range(4): k(f"v_cvt_pk_bf16_f32 v{b+x}, v{U(cb,ri,2*x)+sub}, v{U(cb,ri,2*x+1)+sub}")
                k(f"ds_write_b128 v{2+sub}, v[{b}:{b+3}] offset:{cb*16*128}")
            if ri == 1 and cb == 0: hstores(0)
        for qq in range(4):
            b = ACC + 32*ri + 4*qq
            for hh in range(2): k(f"ds_read_b64_tr_b16 v[{b+2*hh}:{b+2*hh+1}], v{RA[(2*qq) ^ (4*hh)]} offset:{4*hh*128}")
    hstores(1)
    stamp(k, cfg, 5)
    CF, HR, AC2 = 8, 40, 104
    FS = 44
    k(f"""
    s_lshl_b32 s33, s26, 13
    s_add_u32 s33, s33, {WS_HF}
    s_add_u32 s{ES}, s{WS}, s33
    s_addc_u32 s{ES+1}, s{WS+1}, 0
    s_mov_b32 s{ES+2}, 8192
    s_lshl_b32 s46, s30, 12
    s_lshl_b32 s47, s27, 8
    s_add_u32 s47, s47, s46
    s_lshl_b32 s33, s31, 7
    s_add_u32 s47, s47, s33      ; own flag offset ; s46 = offset of the flags this wave waits for
    v_mov_b32 v190, s44
    v_lshlrev_b32 v191, 2, v1
    v_and_b32 v192, 31, v1
    v_lshlrev_b32 v192, 7, v192
    v_lshrrev_b32 v2, 1, v6
    v_xor_b32 v2, v2, v7
    v_lshlrev_b32 v2, 4, v2
    v_lshl_add_u32 v2, v6, 7, v2
    v_add_u32 v2, {L_C}, v2
    v_xor_b32 v3, 64, v2
    v_and_b32 v5, 7, v6
    v_xor_b32 v5, v5, v7
    v_lshlrev_b32 v5, 4, v5
    v_lshl_add_u32 v5, v6, 8, v5
    s_lshl_b32 s33, s29, 13
    s_add_u32 s33, s33, {L_STG}
    v_add_u32 v186, s33, v5
    v_xor_b32 v187, 64, v186
    v_xor_b32 v188, 128, v186
    v_xor_b32 v189, 192, v186
    """)
    k(ROT[cfg.get("rot2", "cn")])
    k(f"""
    s_and_b32 s61, s61, 15
    s_add_u32 s62, s61, s26
    s_and_b32 s62, s62, 15
    s_lshl_b32 s62, s62, 15      ; h byte offset of the next substep to load
    s_lshl_b32 s32, s29, 11
    s_lshl_b32 s33, s26, 19
    s_add_u32 s33, s33, s32
    s_add_u32 s33, s33, {WS_H}
    v_lshrrev_b32 v8, 3, v1
    v_and_b32 v9, 7, v1
    v_lshrrev_b32 v10, 1, v8
    v_xor_b32 v9, v9, v10
    v_lshlrev_b32 v9, 4, v9
    v_lshl_add_u32 v10, v8, 11, v9
    v_xor_b32 v11, 64, v10
    v_add_u32 v12, {2*15360}, v10
    v_add_u32 v13, {3*15360}, v11
    v_add_u32 v11, {15360}, v11
    s_lshl_b32 s48, s31, 13
    s_lshl_b32 s49, s30, 12
    s_add_u32 s48, s48, s49
    s_add_u32 s48, s48, {L_C}
    s_lshl_b32 s49, s61, 7
    s_add_u32 s50, s49, 128
    s_and_b32 s50, s50, 2047
    s_mov_b32 m0, s48
    s_waitcnt vmcnt(0)
    """)
    stamp(k, cfg, 20)
    k(f"""
    s_mov_b64 exec, 0xffffffff
    buffer_store_dword v190, v191, s[{ES}:{ES+3}], s47 offen sc1
    s_mov_b64 exec, -1
    """)
    def c01():
        for st_ in range(2):
            if st_: k("s_add_u32 m0, s48, 16384")
            for j in range(4): k(f"buffer_load_dwordx4 v{10+j}, s[{CS}:{CS+3}], s{49+st_} offen offset:{j*1024} lds")
    if cfg.get("c_at", "flag") == "flag": c01()
    k(f"""
    s_add_u32 s{HS}, s{WS}, s33
    s_addc_u32 s{HS+1}, s{WS+1}, 0
    s_sub_u32 s{HS+2}, {64*8192}, s32
    """)
    stamp(k, cfg, 6)
    k(f"buffer_load_dword v193, v192, s[{ES}:{ES+3}], s46 offen sc1")
    for r in range(32): k(f"v_mov_b32 v{AC2+r}, 0")
    k(f"""
    s_mov_b32 s45, {SPIN}
    Lc_hpoll:
    s_waitcnt vmcnt(0)
    v_cmp_ne_u32 vcc, s44, v193
    s_cbranch_vccz Lc_hok
    s_sub_u32 s45, s45, 1
    s_cbranch_scc1 Lc_hok
    s_sleep {cfg.get('hsleep', 2)}
    buffer_load_dword v193, v192, s[{ES}:{ES+3}], s46 offen sc1
    s_branch Lc_hpoll
    Lc_hok:
    """)
    stamp(k, cfg, 7)
    def hload(u, tb):
        r = HR + 8*(u % 8) + 4*tb
        k(f"buffer_load_dwordx4 v[{r}:{r+3}], v196, s[{HS}:{HS+3}], s62 offen offset:{tb*1024} {cfg.get('hld', 'sc1')}")
    def hadv(): k(f"s_add_u32 s62, s62, 8192\ns_and_b32 s62, s62, {64*8192-1}")
    HD = cfg.get("hd", 8)
    if cfg.get("c_at", "flag") == "late": c01()
    for u in range(HD):
        hload(u, 0); hload(u, 1); hadv()
    if cfg.get("c_at", "flag") == "late": k(f"s_waitcnt vmcnt({2*HD})")
    k("s_barrier")
    stamp(k, cfg, 8)
    def rd2(sub, fs, slot):
        b = CF + 16*fs; ri, s = sub >> 1, sub & 1
        return [f"ds_read_b128 v[{b+4*d}:{b+4*d+3}], v{2+s} offset:{slot*16384 + ri*8192 + d*2048}" for d in range(4)]
    def mm2(u, fs):
        b = CF + 16*fs; out = []
        for tb in range(2):
            h = HR + 8*(u % 8) + 4*tb
            for d in (range(4) if tb == 0 else range(3, -1, -1)):
                a = AC2 + (tb*4+d)*4
                out.append(f"v_mfma_f32_16x16x32_bf16 v[{a}:{a+3}], v[{b+4*d}:{b+4*d+3}], v[{h}:{h+3}], v[{a}:{a+3}]")
        return out
    for l in rd2(0, 0, 0): k(l)
    k("s_mov_b32 s35, 0\nLc2_loop:")
    for u in range(8):
        if u == 8 - HD: k(f"s_cmp_eq_u32 s35, 7\ns_cselect_b32 s{HS+2}, 0, s{HS+2}")
        half, sub = u >> 2, u & 3
        m = mm2(u, u & 1)
        r = rd2(sub+1, (u+1) & 1, half) if sub < 3 else rd2(0, 0, 1 - half)
        k(f"s_waitcnt vmcnt({2*HD-1}) lgkmcnt(0)")
        for i in range(8):
            if i == 4: k(f"s_waitcnt vmcnt({2*HD-1})")
            k(m[i])
            if sub == 3 and i == 0:
                if half == 1: k("v_xor_b32 v2, 0x8000, v2\nv_xor_b32 v3, 0x8000, v3\ns_cbranch_scc1 Lc2_nobar\ns_barrier\nLc2_nobar:")
                else: k("s_barrier")
            o = 1 if sub == 3 else 0
            if o <= i < o + 4: k(r[i - o])
            if i == 3: hload(u + HD, 0)
            if i == 7:
                hload(u + HD, 1)
                if u == 6: k(f"s_add_u32 s62, s62, 8192\ns_and_b32 s62, s62, {64*8192-1}\ns_cmp_eq_u32 s35, 7")
                else: hadv()
    stamp_loop(k, dict(lstamps=cfg.get('lstamps2')), 12, 35)
    k("s_add_u32 s35, s35, 1\ns_cmp_lt_u32 s35, 8\ns_cbranch_scc1 Lc2_loop")
    stamp(k, cfg, 9)
    for tb in range(2):
        for d in range(4):
            a = AC2 + (tb*4+d)*4
            k(f"ds_write_b128 v{186+d}, v[{a}:{a+3}] offset:{tb*4096}")
    k("s_waitcnt lgkmcnt(0)\ns_barrier")
    stamp(k, cfg, 10)
    stamp_flush(k, cfg, 0)
```

```python
from asmgen import *
from layout import *

LOG2E = 0x3fb8aa3b
INV2PI = 0x3e22f983
SPIN = 1 << 15

def pk(op, d, a, b, c=None, sa=None, sb=None, sc=None, na=0, nb=0, nc=0):
    srcs = [(a, sa, na), (b, sb, nb)] + ([(c, sc, nc)] if c is not None else [])
    if sa not in (1, 'x') and sb in (1, 'x'): srcs[0], srcs[1] = srcs[1], srcs[0]
    lo = [{None: 0, 0: 0, 1: 1, 'x': 1}[s] for _, s, _ in srcs]
    hi = [{None: 1, 0: 0, 1: 1, 'x': 0}[s] for _, s, _ in srcs]
    nl = [n & 1 for _, _, n in srcs]; nh = [n >> 1 for _, _, n in srcs]
    t = f"v_pk_{op}_f32 v[{d}:{d+1}], " + ", ".join(f"v[{r}:{r+1}]" for r, _, _ in srcs)
    f = lambda x: "[" + ",".join(map(str, x)) + "]"
    if any(lo): t += f" op_sel:{f(lo)}"
    if not all(hi): t += f" op_sel_hi:{f(hi)}"
    if any(nl): t += f" neg_lo:{f(nl)}"
    if any(nh): t += f" neg_hi:{f(nh)}"
    return t

def csq(k, dr, di, ar, ai, t):
    k(pk("mul", t, ar, ai)); k(pk("mul", dr, ar, ar)); k(pk("fma", dr, ai, ai, dr, na=3)); k(pk("add", di, t, t))
def cmul_cb(k, dr, di, ar, ai, br, bi):
    k(pk("mul", dr, ar, br)); k(pk("mul", di, ar, bi)); k(pk("fma", dr, ai, bi, dr, na=3)); k(pk("fma", di, ai, br, di))
def cfma_ri(k, d, cr, ci, cb, h, g, t):
    k(pk("fma", t, cr, h, g, sa=cb)); k(pk("fma", d, ci, h, t, sa=cb, sb='x', nb=1))

def wg_coords(k, band=False):
    if band:
        k("""
        s_and_b32 s24, s2, 7
        s_lshr_b32 s25, s2, 3
        s_lshr_b32 s26, s25, 4
        s_lshl_b32 s26, s26, 3
        s_add_u32 s26, s26, s24      ; s26 = c (time chunk): the 16 tiles of a chunk share blockIdx % 8
        s_and_b32 s27, s25, 15
        """)
        return
    k("""
    s_and_b32 s24, s2, 7
    s_lshr_b32 s25, s2, 3
    s_lshr_b32 s26, s25, 3
    s_lshl_b32 s26, s26, 2
    s_lshr_b32 s27, s24, 1
    s_add_u32 s26, s26, s27
    s_and_b32 s27, s24, 1
    s_lshl_b32 s27, s27, 3
    s_and_b32 s28, s25, 7
    s_add_u32 s27, s27, s28
    """)

ROT = {
    "none": "s_mov_b32 s61, 0",
    "cn": "s_add_u32 s61, s26, s27",
    "q": "s_lshr_b32 s61, s25, 3\ns_lshl_b32 s61, s61, 1\ns_add_u32 s61, s61, s28\ns_lshl_b32 s61, s61, 1",
    "x": "s_lshl_b32 s61, s24, 1",
    "qx": "s_lshr_b32 s61, s25, 3\ns_lshl_b32 s61, s61, 1\ns_add_u32 s61, s61, s28\ns_lshl_b32 s61, s61, 1\ns_lshr_b32 s62, s24, 1\ns_add_u32 s61, s61, s62\ns_and_b32 s62, s24, 1\ns_add_u32 s61, s61, s62",
    "c4": "s_lshr_b32 s61, s25, 3\ns_lshl_b32 s61, s61, 2",
    "n2": "s_lshl_b32 s61, s28, 1",
    "c": "s_mov_b32 s61, s26",
    "n": "s_mov_b32 s61, s27",
    "h8": "s_and_b32 s61, s25, 1\ns_lshl_b32 s61, s61, 3",
}

def add_base(k, s, off):
    k(f"s_add_u32 s{s}, s{s}, {off}\ns_addc_u32 s{s+1}, s{s+1}, 0")

def wave_max(k, v, t, sdst):
    k(f"v_mov_b32 v{t}, v{v}")
    for m in ("row_shr:1", "row_shr:2", "row_shr:4", "row_shr:8"):
        k(f"v_max_u32_dpp v{t}, v{t}, v{t} {m} row_mask:0xf bank_mask:0xf")
    k(f"v_max_u32_dpp v{t}, v{t}, v{t} row_bcast:15 row_mask:0xa bank_mask:0xf")
    k(f"v_max_u32_dpp v{t}, v{t}, v{t} row_bcast:31 row_mask:0xc bank_mask:0xf")
    k(f"v_readlane_b32 s{sdst}, v{t}, 63")

def wave_sum(k, regs):
    for m, rm in (("row_shr:1", 0xf), ("row_shr:2", 0xf), ("row_shr:4", 0xf), ("row_shr:8", 0xf), ("row_bcast:15", 0xa), ("row_bcast:31", 0xc)):
        for v in regs:
            k(f"v_add_f32_dpp v{v}, v{v}, v{v} {m} row_mask:{rm:#x} bank_mask:0xf")

def sigmoid_bf16(k, d, x, t):
    k(f"""
    v_mul_f32 v{t}, {LOG2E ^ 0x80000000:#x}, v{x}
    v_exp_f32 v{t}, v{t}
    v_add_f32 v{t}, 1.0, v{t}
    v_rcp_f32 v{t}, v{t}
    v_cvt_pk_bf16_f32 v{d}, v{t}, v{t}
    v_lshlrev_b32 v{d}, 16, v{d}
    """)

def stamp(k, cfg, i, cond="s_waitcnt lgkmcnt(0)"):
    if cfg.get("dbgt"):
        slot = cfg["dbgt"].get(cfg.get("_role", "") + str(i))
        if slot is not None: k(f"s_memrealtime s[92:93]\ns_waitcnt lgkmcnt(0)\nv_writelane_b32 v199, s92, {slot}")
        return
    if not cfg.get("stamps"): return
    k(f"s_memrealtime s[92:93]\ns_memtime s[94:95]\ns_waitcnt lgkmcnt(0)\nv_writelane_b32 v199, s92, {i}\nv_writelane_b32 v199, s94, {32+i}")
def stamp_loop(k, cfg, base, sreg):
    if not cfg.get("lstamps"): return
    k(f"""s_memrealtime s[92:93]
    s_memtime s[94:95]
    s_add_u32 s96, s{sreg}, {base}
    s_add_u32 s97, s96, 32
    v_cmp_eq_u32 s[98:99], s96, v1
    v_cmp_eq_u32 s[100:101], s97, v1
    s_waitcnt lgkmcnt(0)
    v_mov_b32 v197, s92
    v_mov_b32 v198, s94
    v_cndmask_b32 v199, v199, v197, s[98:99]
    v_cndmask_b32 v199, v199, v198, s[100:101]""")
def stamp_flush(k, cfg, which):
    if cfg.get("dbgt"):
        L = k.label("dbg")
        k(f"""
        s_and_b32 s92, s29, 3
        s_cmp_lg_u32 s92, 0
        s_cbranch_scc1 {L}
        s_and_b32 s92, s2, {cfg.get('dbgmask', 0x18)}
        s_cmp_lg_u32 s92, 0
        s_cbranch_scc1 {L}
        s_load_dwordx2 s[96:97], s[0:1], {KA['dbg']}
        s_mov_b32 s98, 256
        s_mov_b32 s99, 0x20000
        s_not_b32 s92, s90
        v_writelane_b32 v199, s92, 0
        s_mov_b64 exec, -1
        v_mbcnt_lo_u32_b32 v198, -1, 0
        v_lshlrev_b32 v198, 2, v198
        s_mov_b64 exec, 0xffff
        s_waitcnt lgkmcnt(0)
        buffer_atomic_umax v199, v198, s[96:99], 0 offen
        {L}:
        """)
        return
    if not cfg.get("stamps"): return
    k(f"""
    s_load_dwordx2 s[92:93], s[0:1], {KA['ws']}
    s_mov_b32 s94, {SZ['ws']}
    s_mov_b32 s95, 0x20000
    v_writelane_b32 v199, s90, 31
    v_writelane_b32 v199, s88, 63
    s_lshl_b32 s96, s2, 11
    s_lshl_b32 s97, s29, 8
    s_add_u32 s96, s96, s97
    s_add_u32 s96, s96, {WS_STAMP + which * 0x80000}
    s_mov_b64 exec, -1
    v_mbcnt_lo_u32_b32 v198, -1, 0
    v_mbcnt_hi_u32_b32 v198, -1, v198
    v_lshlrev_b32 v198, 2, v198
    s_waitcnt lgkmcnt(0)
    buffer_store_dword v199, v198, s[92:95], s96 offen
    """)
```

```python
from asmgen import *
from layout import *

LOG2E = 0x3fb8aa3b
INV2PI = 0x3e22f983
SPIN = 1 << 15

def pk(op, d, a, b, c=None, sa=None, sb=None, sc=None, na=0, nb=0, nc=0):
    srcs = [(a, sa, na), (b, sb, nb)] + ([(c, sc, nc)] if c is not None else [])
    if sa not in (1, 'x') and sb in (1, 'x'): srcs[0], srcs[1] = srcs[1], srcs[0]
    lo = [{None: 0, 0: 0, 1: 1, 'x': 1}[s] for _, s, _ in srcs]
    hi = [{None: 1, 0: 0, 1: 1, 'x': 0}[s] for _, s, _ in srcs]
    nl = [n & 1 for _, _, n in srcs]; nh = [n >> 1 for _, _, n in srcs]
    t = f"v_pk_{op}_f32 v[{d}:{d+1}], " + ", ".join(f"v[{r}:{r+1}]" for r, _, _ in srcs)
    f = lambda x: "[" + ",".join(map(str, x)) + "]"
    if any(lo): t += f" op_sel:{f(lo)}"
    if not all(hi): t += f" op_sel_hi:{f(hi)}"
    if any(nl): t += f" neg_lo:{f(nl)}"
    if any(nh): t += f" neg_hi:{f(nh)}"
    return t

def csq(k, dr, di, ar, ai, t):
    k(pk("mul", t, ar, ai)); k(pk("mul", dr, ar, ar)); k(pk("fma", dr, ai, ai, dr, na=3)); k(pk("add", di, t, t))
def cmul_cb(k, dr, di, ar, ai, br, bi):
    k(pk("mul", dr, ar, br)); k(pk("mul", di, ar, bi)); k(pk("fma", dr, ai, bi, dr, na=3)); k(pk("fma", di, ai, br, di))
def cfma_ri(k, d, cr, ci, cb, h, g, t):
    k(pk("fma", t, cr, h, g, sa=cb)); k(pk("fma", d, ci, h, t, sa=cb, sb='x', nb=1))

def wg_coords(k, band=False):
    if band:
        k("""
        s_and_b32 s24, s2, 7
        s_lshr_b32 s25, s2, 3
        s_lshr_b32 s26, s25, 4
        s_lshl_b32 s26, s26, 3
        s_add_u32 s26, s26, s24      ; s26 = c (time chunk): the 16 tiles of a chunk share blockIdx % 8
        s_and_b32 s27, s25, 15
        """)
        return
    k("""
    s_and_b32 s24, s2, 7
    s_lshr_b32 s25, s2, 3
    s_lshr_b32 s26, s25, 3
    s_lshl_b32 s26, s26, 2
    s_lshr_b32 s27, s24, 1
    s_add_u32 s26, s26, s27
    s_and_b32 s27, s24, 1
    s_lshl_b32 s27, s27, 3
    s_and_b32 s28, s25, 7
    s_add_u32 s27, s27, s28
    """)

ROT = {
    "none": "s_mov_b32 s61, 0",
    "cn": "s_add_u32 s61, s26, s27",
    "q": "s_lshr_b32 s61, s25, 3\ns_lshl_b32 s61, s61, 1\ns_add_u32 s61, s61, s28\ns_lshl_b32 s61, s61, 1",
    "x": "s_lshl_b32 s61, s24, 1",
    "qx": "s_lshr_b32 s61, s25, 3\ns_lshl_b32 s61, s61, 1\ns_add_u32 s61, s61, s28\ns_lshl_b32 s61, s61, 1\ns_lshr_b32 s62, s24, 1\ns_add_u32 s61, s61, s62\ns_and_b32 s62, s24, 1\ns_add_u32 s61, s61, s62",
    "c4": "s_lshr_b32 s61, s25, 3\ns_lshl_b32 s61, s61, 2",
    "n2": "s_lshl_b32 s61, s28, 1",
    "c": "s_mov_b32 s61, s26",
    "n": "s_mov_b32 s61, s27",
    "xn1": "s_lshl_b32 s61, s24, 1\ns_add_u32 s61, s61, s28",
    "xc1": "s_lshr_b32 s61, s25, 3\ns_lshl_b32 s62, s24, 1\ns_add_u32 s61, s61, s62",
    "xp": "s_and_b32 s61, s25, 1\ns_lshl_b32 s62, s24, 1\ns_add_u32 s61, s61, s62",
    "xp2": "s_lshr_b32 s61, s25, 3\ns_add_u32 s61, s61, s25\ns_and_b32 s61, s61, 1\ns_lshl_b32 s62, s24, 1\ns_add_u32 s61, s61, s62",
    "k8": "s_lshr_b32 s61, s24, 1\ns_lshl_b32 s61, s61, 2\ns_and_b32 s62, s24, 1\ns_lshl_b32 s62, s62, 3\ns_add_u32 s61, s61, s62",
    "k8c1": "s_lshr_b32 s61, s24, 1\ns_lshl_b32 s61, s61, 2\ns_and_b32 s62, s24, 1\ns_lshl_b32 s62, s62, 3\ns_add_u32 s61, s61, s62\ns_lshr_b32 s62, s25, 3\ns_add_u32 s61, s61, s62",
    "k8p": "s_lshr_b32 s61, s24, 1\ns_lshl_b32 s61, s61, 2\ns_and_b32 s62, s24, 1\ns_lshl_b32 s62, s62, 3\ns_add_u32 s61, s61, s62\ns_lshr_b32 s62, s25, 3\ns_add_u32 s62, s62, s25\ns_and_b32 s62, s62, 1\ns_add_u32 s61, s61, s62",
    "h8": "s_and_b32 s61, s25, 1\ns_lshl_b32 s61, s61, 3",
}

def add_base(k, s, off):
    k(f"s_add_u32 s{s}, s{s}, {off}\ns_addc_u32 s{s+1}, s{s+1}, 0")

def wave_max(k, v, t, sdst):
    k(f"v_mov_b32 v{t}, v{v}")
    for m in ("row_shr:1", "row_shr:2", "row_shr:4", "row_shr:8"):
        k(f"v_max_u32_dpp v{t}, v{t}, v{t} {m} row_mask:0xf bank_mask:0xf")
    k(f"v_max_u32_dpp v{t}, v{t}, v{t} row_bcast:15 row_mask:0xa bank_mask:0xf")
    k(f"v_max_u32_dpp v{t}, v{t}, v{t} row_bcast:31 row_mask:0xc bank_mask:0xf")
    k(f"v_readlane_b32 s{sdst}, v{t}, 63")

def wave_sum(k, regs):
    for m, rm in (("row_shr:1", 0xf), ("row_shr:2", 0xf), ("row_shr:4", 0xf), ("row_shr:8", 0xf), ("row_bcast:15", 0xa), ("row_bcast:31", 0xc)):
        for v in regs:
            k(f"v_add_f32_dpp v{v}, v{v}, v{v} {m} row_mask:{rm:#x} bank_mask:0xf")

def sigmoid_bf16(k, d, x, t):
    k(f"""
    v_mul_f32 v{t}, {LOG2E ^ 0x80000000:#x}, v{x}
    v_exp_f32 v{t}, v{t}
    v_add_f32 v{t}, 1.0, v{t}
    v_rcp_f32 v{t}, v{t}
    v_cvt_pk_bf16_f32 v{d}, v{t}, v{t}
    v_lshlrev_b32 v{d}, 16, v{d}
    """)

def stamp(k, cfg, i, cond="s_waitcnt lgkmcnt(0)"):
    if cfg.get("dbgt"):
        slot = cfg["dbgt"].get(cfg.get("_role", "") + str(i))
        if slot is not None: k(f"s_memrealtime s[92:93]\ns_waitcnt lgkmcnt(0)\nv_writelane_b32 v199, s92, {slot}")
        return
    if not cfg.get("stamps"): return
    k(f"s_memrealtime s[92:93]\ns_memtime s[94:95]\ns_waitcnt lgkmcnt(0)\nv_writelane_b32 v199, s92, {i}\nv_writelane_b32 v199, s94, {32+i}")
def stamp_loop(k, cfg, base, sreg):
    if not cfg.get("lstamps"): return
    k(f"""s_memrealtime s[92:93]
    s_memtime s[94:95]
    s_add_u32 s96, s{sreg}, {base}
    s_add_u32 s97, s96, 32
    v_cmp_eq_u32 s[98:99], s96, v1
    v_cmp_eq_u32 s[100:101], s97, v1
    s_waitcnt lgkmcnt(0)
    v_mov_b32 v197, s92
    v_mov_b32 v198, s94
    v_cndmask_b32 v199, v199, v197, s[98:99]
    v_cndmask_b32 v199, v199, v198, s[100:101]""")
def stamp_flush(k, cfg, which):
    if cfg.get("dbgt"):
        L = k.label("dbg")
        k(f"""
        s_and_b32 s92, s29, 3
        s_cmp_lg_u32 s92, 0
        s_cbranch_scc1 {L}
        s_and_b32 s92, s2, {cfg.get('dbgmask', 0x18)}
        s_cmp_lg_u32 s92, 0
        s_cbranch_scc1 {L}
        s_load_dwordx2 s[96:97], s[0:1], {KA['dbg']}
        s_mov_b32 s98, 256
        s_mov_b32 s99, 0x20000
        s_not_b32 s92, s90
        v_writelane_b32 v199, s92, 0
        s_mov_b64 exec, -1
        v_mbcnt_lo_u32_b32 v198, -1, 0
        v_lshlrev_b32 v198, 2, v198
        s_mov_b64 exec, 0xffff
        s_waitcnt lgkmcnt(0)
        buffer_atomic_umax v199, v198, s[96:99], 0 offen
        {L}:
        """)
        return
    if not cfg.get("stamps"): return
    k(f"""
    s_load_dwordx2 s[92:93], s[0:1], {KA['ws']}
    s_mov_b32 s94, {SZ['ws']}
    s_mov_b32 s95, 0x20000
    v_writelane_b32 v199, s90, 31
    v_writelane_b32 v199, s88, 63
    s_lshl_b32 s96, s2, 11
    s_lshl_b32 s97, s29, 8
    s_add_u32 s96, s96, s97
    s_add_u32 s96, s96, {WS_STAMP + which * 0x80000}
    s_mov_b64 exec, -1
    v_mbcnt_lo_u32_b32 v198, -1, 0
    v_mbcnt_hi_u32_b32 v198, -1, v198
    v_lshlrev_b32 v198, 2, v198
    s_waitcnt lgkmcnt(0)
    buffer_store_dword v199, v198, s[92:95], s96 offen
    """)
```

```python
from common import *

S0 = 147456
L_FLAG, L_RT, L_CAND, L_SORT, L_EX, L_ACT = S0, S0 + 64, S0 + 256, S0 + 512, S0 + 1024, S0 + 5120
ACT_ROW = 464
L_TR = 131072
L_WG, L_WU = 0, 32768
L_C = 65536
L_WD = 32768
L_STG = 0

def gen_fused(cfg):
    k = Kern(NAME + "_kernel", 256, 512, 163840, 256)
    if cfg.get("dbgt"): k("s_memrealtime s[90:91]\nv_mov_b32 v199, 0")
    if cfg.get("stamps"): k("s_memrealtime s[90:91]\ns_memtime s[88:89]\nv_mov_b32 v199, 0")
    k("s_cmp_ge_u32 s2, 256\ns_cbranch_scc1 L_end")
    k("v_lshrrev_b32 v2, 6, v0\nv_and_b32 v1, 63, v0\ns_nop 0\nv_readfirstlane_b32 s29, v2")
    wg_coords(k, cfg.get('band', 0))
    k("s_cmp_lt_u32 s29, 4\ns_cbranch_scc1 L_compute")
    loader(k, dict(cfg, _role="L"))
    k("L_compute:")
    compute(k, dict(cfg, _role="C"))
    k("L_end:\ns_endpgm")
    k.lines = fix_hazards(k.lines)
    return k

def spin_tail(k, cnt, ok, again):
    k(f"s_sub_u32 s{cnt}, s{cnt}, 1\ns_cbranch_scc1 {ok}\ns_sleep 1")

def loader(k, cfg):
    vm = VM(k)
    if cfg.get("lprio", 0): k(f"s_setprio {cfg.get('lprio', 0)}")
    XS, BS, WS, RS, GS, DS, WGS, WUS, XF = 8, 12, 16, 36, 40, 44, 48, 52, 56
    TAG = 65
    k(f"""
    s_load_dwordx2 s[{XF}:{XF+1}], s[0:1], {KA['x']}
    s_load_dwordx4 s[{BS}:{BS+3}], s[0:1], {KA['b_re']}
    s_load_dwordx2 s[{RS}:{RS+1}], s[0:1], {KA['dskip']}
    s_load_dwordx2 s[{GS}:{GS+1}], s[0:1], {KA['out']}
    s_load_dwordx2 s[{WS}:{WS+1}], s[0:1], {KA['ws']}
    s_load_dwordx2 s[{DS}:{DS+1}], s[0:1], {KA['w_down']}
    s_load_dwordx2 s[{WGS}:{WGS+1}], s[0:1], {KA['w_gate']}
    s_load_dwordx2 s[{WUS}:{WUS+1}], s[0:1], {KA['w_up']}
    s_and_b32 s30, s29, 3
    v_lshrrev_b32 v3, 3, v1      ; r3
    v_and_b32 v4, 7, v1
    v_lshrrev_b32 v5, 1, v3
    v_xor_b32 v2, v4, v5
    v_lshlrev_b32 v2, 4, v2
    v_lshl_add_u32 v14, v3, 11, v2   ; B piece 0
    v_xor_b32 v15, 64, v14
    v_add_u32 v16, {2*15360}, v14
    v_add_u32 v17, {3*15360}, v15
    v_add_u32 v15, {15360}, v15
    v_lshrrev_b32 v6, 2, v3
    v_lshlrev_b32 v6, 4, v6
    v_and_b32 v7, 1, v3
    v_lshl_add_u32 v6, v7, 3, v6
    v_and_b32 v7, 1, v5
    v_add_u32 v6, v6, v7         ; tl
    v_lshl_add_u32 v10, v6, 11, v2   ; A piece 0
    v_xor_b32 v11, 64, v10
    v_add_u32 v12, {2*2048-2048}, v10
    v_add_u32 v13, {34*2048-3072}, v11
    v_add_u32 v11, {32*2048-1024}, v11
    s_lshr_b32 s31, s30, 1       ; w>>1
    s_and_b32 s32, s30, 1        ; w&1
    s_lshl_b32 s33, s26, 7
    s_lshl_b32 s34, s31, 6
    s_add_u32 s33, s33, s34
    s_lshl_b32 s34, s32, 2
    s_add_u32 s33, s33, s34
    s_lshl_b32 s33, s33, 11
    s_lshl_b32 s34, s27, 6
    s_lshl_b32 s35, s31, 5
    s_add_u32 s34, s34, s35
    s_lshl_b32 s64, s34, 11
    s_lshl_b32 s60, s30, 12
    """)
    k(ROT[cfg.get("rot1", "cn")])
    k(f"""
    s_and_b32 s61, s61, 15
    s_lshl_b32 s61, s61, 7
    s_cmp_eq_u32 s32, 1
    s_waitcnt lgkmcnt(0)
    s_cselect_b32 s{BS}, s{BS+2}, s{BS}
    s_cselect_b32 s{BS+1}, s{BS+3}, s{BS+1}
    s_add_u32 s{BS}, s{BS}, s64
    s_addc_u32 s{BS+1}, s{BS+1}, 0
    s_sub_u32 s{BS+2}, {SZ['b_re']}, s64
    s_mov_b32 s{BS+3}, 0x20000
    s_add_u32 s{XS}, s{XF}, s33
    s_addc_u32 s{XS+1}, s{XF+1}, 0
    s_sub_u32 s{XS+2}, {SZ['x']}, s33
    s_mov_b32 s{XS+3}, 0x20000
    """)
    def stage(i):
        slot = (i % 4) * 32768
        k(f"s_add_u32 m0, s60, {slot}")
        for j in range(4): vm.issue(f"st{i}", f"buffer_load_dwordx4 v{10+j}, s[{XS}:{XS+3}], s61 offen offset:{j*1024} lds")
        k(f"s_add_u32 m0, s60, {slot + 16384}")
        for j in range(4): vm.issue(f"st{i}", f"buffer_load_dwordx4 v{14+j}, s[{BS}:{BS+3}], s61 offen offset:{j*1024} lds")
        if i < 15: k("s_add_u32 s61, s61, 128\ns_and_b32 s61, s61, 2047")
    stamp(k, cfg, 10)
    stage(0)
    stage(1)
    k(f"""
    v_mov_b32 v9, 0
    v_mov_b32 v8, 0
    v_mov_b32 v7, {L_FLAG}
    ds_write_b64 v7, v[8:9]
    ds_write_b64 v7, v[8:9] offset:8
    ds_write_b64 v7, v[8:9] offset:16
    ds_write_b64 v7, v[8:9] offset:24
    """)
    for s, nm in ((XF, 'x'), (RS, 'dskip'), (GS, 'out'), (WS, 'ws'), (DS, 'w_down'), (WGS, 'w_gate'), (WUS, 'w_up')):
        k(f"s_mov_b32 s{s+2}, {SZ[nm]}\ns_mov_b32 s{s+3}, 0x20000")
    k(f"""
    s_lshl_b32 s62, s26, 7
    s_lshl_b32 s63, s27, 3
    s_add_u32 s62, s62, s63
    s_lshl_b32 s62, s62, 3
    v_lshlrev_b32 v18, 4, v1
    v_lshlrev_b32 v19, 3, v4
    """)
    k(f"s_load_dword s{TAG}, s[{WS}:{WS+1}], {WS_G}")
    vm.wait("st0", "lgkmcnt(0)")
    stamp(k, cfg, 0)
    k("s_barrier")
    T0 = 72
    KEY = 80
    def key_loads(tag):
        for q in range(4):
            t = f"buffer_load_dwordx4 v[{KEY+4*q}:{KEY+4*q+3}], v18, s[{WS}:{WS+3}], s69 offen offset:{q*1024} sc1"
            vm.issue(tag, t) if tag else k(t)
    NT = " nt" if cfg.get("ntw") else ""
    def wdma(tag, srd, base):
        for j in range(8):
            k(f"s_add_u32 m0, s75, {base + j*1024}\ns_add_u32 s74, s73, {j*8*7168}")
            vm.issue(tag, f"buffer_load_dwordx4 v10, s[{srd}:{srd+3}], s74 offen{NT} lds")
    CS, WD, DK, OS = XS, DS, RS, GS
    KS = cfg.get("kslot", 4)
    PUBS = 0
    WUV = 128
    NST = cfg.get("nst", 4)
    WUS0, WUSTEP = cfg.get("wu0", 3), cfg.get("wustep", 2)
    XA = 36
    for i in range(1):
        stage(2)
        stage(3)
        if i == 0:
            k(f"""
            v_add_u32 v21, {L_RT}, v19
            ds_read_b64 v[{T0}:{T0+1}], v21
            s_load_dwordx4 s[84:87], s[0:1], {KA['c_re']}
            s_mul_hi_u32 s70, s2, {(2**32 + 55) // 56}     ; kq
            s_mul_i32 s71, s70, 56
            s_sub_u32 s71, s2, s71                        ; cg
            s_lshl_b32 s72, s70, 8
            s_lshl_b32 s73, s30, 6
            s_add_u32 s72, s72, s73                       ; k0 = 256 kq + 64 w
            s_mul_i32 s73, s72, 7168
            s_lshl_b32 s74, s71, 7
            s_add_u32 s73, s73, s74
            s_cmp_ge_u32 s2, 224
            s_cselect_b32 s{WGS+2}, 0, s{WGS+2}
            s_cselect_b32 s{WUS+2}, 0, s{WUS+2}
            s_lshl_b32 s75, s30, 13
            s_lshl_b32 s69, s30, 12
            s_add_u32 s69, s69, {WS_RKEY}
            s_mov_b32 s76, 0
            v_mul_u32_u24 v31, 7168, v3
            v_lshl_add_u32 v31, v4, 4, v31
            s_mul_i32 s63, s25, {(65536 + NST - 1) // NST}
            s_lshr_b32 s63, s63, 16
            s_mul_i32 s63, s63, {NST}
            s_sub_u32 s63, s25, s63
            s_mul_i32 s{TAG}, s{TAG}, 1664525
            s_add_u32 s{TAG}, s{TAG}, 1013904223
            """)
        if i == PUBS:
            k(f"""
            s_waitcnt lgkmcnt(0)
            v_mov_b32 v{T0+2}, v{T0+1}
            v_mov_b32 v{T0+1}, s{TAG}
            v_mov_b32 v{T0+3}, s{TAG}
            s_add_u32 s66, s62, {WS_RKEY}
            s_add_u32 s67, s62, {WS_GATE}
            s_cmp_lg_u32 s30, 0
            s_cbranch_scc1 L_nopub
            s_mov_b64 exec, 0xff
            buffer_store_dwordx2 v[{T0}:{T0+1}], v19, s[{WS}:{WS+3}], s66 offen sc1
            buffer_store_dwordx2 v[{T0+2}:{T0+3}], v19, s[{WS}:{WS+3}], s67 offen sc1
            s_mov_b64 exec, -1
            L_nopub:
            s_cmp_eq_u32 s32, 1
            s_cselect_b32 s84, s86, s84
            s_cselect_b32 s85, s87, s85
            s_mov_b32 s20, s84
            s_mov_b32 s21, s85
            s_mov_b32 s22, {SZ['c_re']}
            s_mov_b32 s23, 0x20000
            s_lshl_b32 s33, s2, 13
            s_lshl_b32 s34, s31, 12
            s_add_u32 s33, s33, s34
            s_add_u32 s84, s84, s64
            s_addc_u32 s85, s85, 0
            """)
        if i == 0:
            vm.wait("st1"); k("s_barrier")
            k(f"""
            s_mul_i32 s80, s63, {WUSTEP}
            s_add_u32 s80, s80, {WUS0}
            s_mov_b32 s81, 1
            s_mov_b32 s82, 0
            L_ld1:
            s_add_u32 m0, s60, s82
            s_add_u32 s83, s60, s82
            """)
            for j in range(4): k(f"buffer_load_dwordx4 v{10+j}, s[{XS}:{XS+3}], s61 offen offset:{j*1024} lds")
            k("s_add_u32 m0, s83, 16384\ns_add_u32 s82, s82, 32768")
            for j in range(4): k(f"buffer_load_dwordx4 v{14+j}, s[{BS}:{BS+3}], s61 offen offset:{j*1024} lds")
            k("s_and_b32 s82, s82, 131071\ns_add_u32 s61, s61, 128\ns_and_b32 s61, s61, 2047")
            if cfg.get("wu_at", "loop") == "loop":
                k("s_cmp_lg_u32 s80, s81\ns_cbranch_scc1 L_nowu")
                for j in range(8):
                    k(f"s_add_u32 s74, s73, {j*8*7168}\nbuffer_load_dwordx4 v[{WUV+4*j}:{WUV+4*j+3}], v31, s[{WUS}:{WUS+3}], s74 offen{NT}")
                if cfg.get("cpf") == 2:
                    for j in range(4): k(f"buffer_load_dwordx4 v[60:63], v18, s[20:23], s33 offen offset:{j*1024}")
                k("L_nowu:")
            stamp_loop(k, cfg, 12, 81)
            k("s_add_u32 s81, s81, 1\ns_cmp_lt_u32 s81, 13\ns_waitcnt vmcnt(16)\ns_barrier\ns_cbranch_scc1 L_ld1")
            vm.q = ["st14"] * 8 + ["st15"] * 8
    key_loads("keys")
    k("v_mov_b32 v10, v31")
    if cfg.get("cpf") == 1:
        for j in range(4): vm.issue("cpf", f"buffer_load_dwordx4 v[60:63], v18, s[20:23], s33 offen offset:{j*1024}")
    wdma("wg", WGS, L_WG)
    vm.wait("st14"); k("s_barrier")
    k("v_add_u32 v33, s75, v18")
    if cfg.get("wu_at", "loop") == "loop":
        for j in range(8): k(f"ds_write_b128 v33, v[{WUV+4*j}:{WUV+4*j+3}] offset:{L_WU + j*1024}")
    vm.wait("st15"); k("s_barrier")
    if cfg.get("wu_at", "loop") != "loop": wdma("wu", WUS, L_WU)
    k(f"""
    s_mov_b32 s{CS}, s84
    s_mov_b32 s{CS+1}, s85
    s_sub_u32 s{CS+2}, {SZ['c_re']}, s64
    s_lshl_b32 s60, s32, 13
    s_lshl_b32 s35, s31, 12
    s_add_u32 s60, s60, s35
    s_add_u32 s60, s60, {L_C}
    """)
    k(ROT[cfg.get("rot2", "xc1")])
    C15 = True
    k(f"s_add_u32 s61, s61, {0 if C15 else 2}\ns_and_b32 s61, s61, 15\ns_lshl_b32 s61, s61, 7")
    def stage2(i):
        k(f"s_add_u32 m0, s60, {(i % 4) * 16384}")
        for j in range(4): vm.issue(f"c{i}", f"buffer_load_dwordx4 v{14+j}, s[{CS}:{CS+3}], s61 offen offset:{j*1024} lds")
        if i < 15: k("s_add_u32 s61, s61, 128\ns_and_b32 s61, s61, 2047")
    if C15: stage2(0); stage2(1)
    vm.wait("keys")
    k(f"s_mov_b32 s68, {SPIN}\nL_keypoll:")
    k(f"v_xor_b32 v20, s{TAG}, v{KEY+1}")
    for q in range(1, 8): k(f"v_xor_b32 v21, s{TAG}, v{KEY+2*q+1}\nv_or_b32 v20, v20, v21")
    k("v_cmp_ne_u32 vcc, 0, v20\ns_cbranch_vccz L_keyok\ns_sub_u32 s68, s68, 1\ns_cbranch_scc1 L_keyok")
    key_loads(None)
    k("s_waitcnt vmcnt(0)\ns_branch L_keypoll\nL_keyok:")
    k(f"""
    s_or_b32 s66, s2, s30
    s_cmp_lg_u32 s66, 0
    s_cbranch_scc1 L_nogen
    v_mov_b32 v20, s{TAG}
    s_mov_b64 exec, 1
    buffer_store_dword v20, v9, s[{WS}:{WS+3}], 0 offen offset:{WS_G} sc1
    s_mov_b64 exec, -1
    L_nogen:
    s_mov_b64 s[78:79], 1
    L_top:
    """)
    for i in range(8): k(f"v_subrev_u32 v{22+i}, s76, v{KEY+2*i}")
    k("v_max3_u32 v22, v22, v23, v24\nv_max3_u32 v25, v25, v26, v27\nv_max3_u32 v22, v22, v28, v29\nv_max_u32 v22, v22, v25")
    for m, rm in (("row_shr:1", 0xf), ("row_shr:2", 0xf), ("row_shr:4", 0xf), ("row_shr:8", 0xf), ("row_bcast:15", 0xa), ("row_bcast:31", 0xc)):
        k(f"v_max_u32_dpp v22, v22, v22 {m} row_mask:{rm:#x} bank_mask:0xf")
    k(f"""
    v_readlane_b32 s77, v22, 63
    s_mov_b64 exec, s[78:79]
    s_add_u32 s76, s76, s77
    v_mov_b32 v30, s76
    s_mov_b64 exec, -1
    s_lshl_b32 s78, s78, 1
    s_cmp_lg_u32 s78, 256
    s_cbranch_scc1 L_top
    s_lshl_b32 s76, s30, 5
    v_lshl_add_u32 v32, v1, 2, s76
    v_add_u32 v32, {L_CAND}, v32
    v_mov_b32 v35, 1
    s_mov_b64 exec, 0xff
    ds_write_b32 v32, v30
    s_mov_b64 exec, 1
    ds_add_u32 v7, v35 offset:20
    s_mov_b64 exec, -1
    v_and_b32 v32, 31, v1
    v_lshlrev_b32 v32, 2, v32
    v_add_u32 v32, {L_CAND}, v32
    v_lshrrev_b32 v33, 5, v1
    v_lshlrev_b32 v33, 6, v33
    v_add_u32 v33, {L_CAND}, v33
    s_add_u32 s76, s76, {L_SORT}
    s_mov_b32 s68, {SPIN}
    L_candpoll:
    ds_read_b32 v35, v7 offset:20
    ds_read_b32 v34, v32
    """)
    for q in range(4): k(f"ds_read_b128 v[{36+4*q}:{39+4*q}], v33 offset:{16*q}")
    k("""
    s_waitcnt lgkmcnt(0)
    v_readfirstlane_b32 s77, v35
    s_sub_u32 s68, s68, 1
    s_cbranch_scc1 L_candok
    s_cmp_lg_u32 s77, 4
    s_cbranch_scc1 L_candpoll
    L_candok:
    v_mov_b32 v35, 0
    """)
    for q in range(16):
        sp = 78 + 2*(q % 3)
        k(f"v_cmp_gt_u32 s[{sp}:{sp+1}], v{36+q}, v34")
        if q >= 2: k(f"v_addc_co_u32 v35, vcc, 0, v35, s[{78+2*((q-2)%3)}:{79+2*((q-2)%3)}]")
    for q in (14, 15): k(f"v_addc_co_u32 v35, vcc, 0, v35, s[{78+2*(q%3)}:{79+2*(q%3)}]")
    k(f"""
    v_mov_b32 v36, v35
    v_lshrrev_b32 v6, 4, v1                  ; q / rg
    v_lshlrev_b32 v32, 4, v6
    v_permlane32_swap_b32 v35, v36
    v_add_u32 v35, v35, v36
    v_cmp_gt_u32 vcc, 8, v35
    v_lshl_add_u32 v35, v35, 2, s76
    v_lshl_add_u32 v36, v4, 2, s76
    s_and_saveexec_b64 s[66:67], vcc
    ds_write_b32 v35, v34
    s_mov_b64 exec, -1
    ds_read_b32 v30, v36
    s_lshl_b32 s76, s72, 1
    s_waitcnt lgkmcnt(0)
    v_and_b32 v31, 0x7ff, v30
    v_sub_u32 v31, 2047, v31
    v_lshl_add_u32 v32, v31, 11, v32
    """)
    for s_ in range(2):
        vm.issue("xs", f"buffer_load_dwordx4 v[{XA+4*s_}:{XA+4*s_+3}], v32, s[{XF}:{XF+3}], s76 offen offset:{s_*64}")
    stamp(k, cfg, 1)
    k("""
    v_ashrrev_i32 v33, 31, v30
    v_not_b32 v33, v33
    v_or_b32 v33, 0x80000000, v33
    v_xor_b32 v33, v33, v30
    v_and_b32 v33, 0xffff0000, v33
    """)
    sigmoid_bf16(k, 30, 33, 35)
    k(f"""
    v_bfe_u32 v34, v1, 2, 2
    v_lshl_add_u32 v33, v6, 3, v34
    v_lshlrev_b32 v33, 7, v33
    v_and_b32 v34, 3, v1
    v_lshl_add_u32 v5, v34, 3, v33
    v_add_u32 v33, s75, v5
    s_cmp_ge_u32 s2, 224
    s_cbranch_scc1 L_gudone
    """)
    D = 96; FB = 160
    q0 = list(vm.q)
    for mat, tag, base in ((1, "wu", L_WU), (0, "wg", L_WG)) if cfg.get("wu_at", "loop") == "loop" else ((0, "wg", L_WG), (1, "wu", L_WU)):
        vm.wait(tag)
        for s in range(2):
            for cb in range(4):
                for hh in range(2):
                    b = FB + (s*4+cb)*4 + 2*hh
                    k(f"ds_read_b64_tr_b16 v[{b}:{b+1}], v33 offset:{base + (32*s+4*hh)*128 + cb*32}")
        vm.wait("xs")
        for s in range(2):
            k(f"s_waitcnt lgkmcnt({8*(1-s)})")
            for cb in range(4):
                b = FB + (s*4+cb)*4; d = D + (mat*4+cb)*4
                k(f"v_mfma_f32_16x16x32_bf16 v[{d}:{d+3}], v[{XA+4*s}:{XA+4*s+3}], v[{b}:{b+3}], {'0' if s == 0 else f'v[{d}:{d+3}]'}")
    k(f"v_lshl_add_u32 v34, v1, 4, s75\ns_mov_b64 exec, 0xffffffff")
    for b in range(8): k(f"ds_write_b128 v34, v[{D+4*b}:{D+4*b+3}] offset:{L_WG + b*512}")
    k(f"""
    s_mov_b64 exec, 1
    v_mov_b32 v35, 1
    ds_add_rtn_u32 v35, v7, v35 offset:16
    s_mov_b64 exec, -1
    s_waitcnt lgkmcnt(0)
    v_readfirstlane_b32 s76, v35
    s_cmp_lg_u32 s76, 3
    s_cbranch_scc1 L_gudone
    """)
    for w in range(4):
        for i in range(4): k(f"ds_read_b128 v[{D+16*w+4*i}:{D+16*w+4*i+3}], v18 offset:{L_WG + w*8192 + i*1024}")
    k(f"""
    v_lshrrev_b32 v35, 5, v1
    v_lshlrev_b32 v35, 13, v35
    v_and_b32 v36, 31, v1
    v_lshl_add_u32 v35, v36, 4, v35
    s_lshl_b32 s76, s71, 15
    s_lshl_b32 s77, s70, 11
    s_add_u32 s76, s76, s77
    s_add_u32 s76, s76, {WS_GU}
    s_add_u32 s77, s76, 16384
    v_mov_b32 v42, s{TAG}
    v_mov_b32 v43, s{TAG}
    v_mov_b32 v46, s{TAG}
    v_mov_b32 v47, s{TAG}
    s_waitcnt lgkmcnt(0)
    """)
    for i in range(4):
        for ab in range(2):
            a = D + 4*i + 2*ab; o = 40 + 4*ab
            k(pk("add", a, a, a+16)); k(pk("add", a+32, a+32, a+48)); k(pk("add", o, a, a+32))
            k(f"buffer_store_dwordx4 v[{o}:{o+3}], v35, s[{WS}:{WS+3}], s{76 + (i&1)} offen offset:{ab*1024 + (i>>1)*512} sc1")
    k("L_gudone:")
    vm.q = q0
    stamp(k, cfg, 2)
    XR, GR, DR, E1 = 84, 100, 116, 120
    AF, BF, DD = 20, 48, 76
    T = 152
    IDX, RSG = 178, 179
    k(f"""
    v_mov_b32 v{IDX}, v31
    v_mov_b32 v{RSG}, v30
    v_bfrev_b32 v2, 1
    v_mov_b32 v8, v7
    v_and_b32 v7, 15, v1         ; cl
    v_lshlrev_b32 v11, 4, v4
    v_lshl_add_u32 v11, v3, 11, v11
    s_mul_i32 s50, s26, 28
    s_mul_i32 s51, s30, 7
    s_add_u32 s50, s50, s51
    s_lshl_b32 s50, s50, 14
    s_lshl_b32 s55, s27, 7
    s_add_u32 s50, s50, s55
    s_lshl_b32 s51, s51, 10
    s_lshl_b32 s48, s26, 7
    s_lshl_b32 s49, s30, 5
    s_add_u32 s49, s48, s49      ; R0
    v_lshlrev_b32 v12, 3, v7
    v_lshl_add_u32 v19, v6, 11, v12
    v_lshlrev_b32 v9, 3, v1
    """)
    AUX = cfg.get('aux2', 'wd,gu,ep,act,e1,down,y').split(',')
    YP = 20
    TX, TG, TE, TR_, GG = 160, 162, 164, 168, 156
    def wd_loads(track):
        for j in range(7):
            k(f"s_add_u32 m0, s51, {L_WD + j*1024}")
            if j: k("s_add_u32 s50, s50, 16384")
            t = f"buffer_load_dwordx4 v11, s[{WD}:{WD+3}], s50 offen{NT} lds"
            vm.issue("wd", t) if track else k(t)
    def ep_loads():
        k(f"s_lshl_b32 s33, s49, 11\ns_add_u32 s33, s33, s55\ns_lshl_b32 s74, s49, 3\ns_add_u32 s74, s74, {WS_GATE}")
        vm.issue("g", f"buffer_load_dwordx2 v[{GG}:{GG+1}], v9, s[{WS}:{WS+3}], s74 offen sc1")
        vm.issue("ep", f"buffer_load_dwordx2 v[{DR}:{DR+1}], v12, s[{DK}:{DK+3}], s55 offen")
        for g_ in range(8):
            vm.issue("ep", f"buffer_load_dwordx2 v[{XR+2*g_}:{XR+2*g_+1}], v19, s[{XF}:{XF+3}], s33 offen")
            if g_ < 7: k("s_add_u32 s33, s33, 8192")
    WIN = cfg.get("win", "ep,wd").split(",")
    if WIN != [""]:
        k(f"""
        s_mov_b32 s68, {SPIN}
        s_cmp_ge_u32 s2, 224
        s_cselect_b32 s67, 0, 4
        L_winpoll:
        ds_read_b32 v20, v8 offset:16
        ds_read_b32 v21, v8 offset:28
        s_waitcnt lgkmcnt(0)
        v_readfirstlane_b32 s33, v20
        v_readfirstlane_b32 s34, v21
        s_sub_u32 s68, s68, 1
        s_cbranch_scc1 L_winok
        s_cmp_lg_u32 s33, s67
        s_cbranch_scc1 L_winpoll
        s_cmp_eq_u32 s34, 0
        s_cbranch_scc1 L_winpoll
        L_winok:
        """)
        if "ep" in WIN: ep_loads()
        if "wd" in WIN: wd_loads(True)
    vm.wait("c0")
    stamp(k, cfg, 3)
    k("s_barrier")
    def e1_group(x, gp, e, b=None):
        for h in range(2):
            k(f"v_lshlrev_b32 v{T}, 16, v{x+h}\nv_and_b32 v{T+1}, 0xffff0000, v{x+h}")
            k(pk("mul", T+2, T, DR+2*h))
            k(pk("mul", T, gp, T if b is None else b+2*h, sa=1))
            k(f"""
            v_cvt_pk_bf16_f32 v{T+2}, v{T+2}, v{T+3}
            v_cvt_pk_bf16_f32 v{T}, v{T}, v{T+1}
            v_and_b32 v{T+3}, 0xffff0000, v{T+2}
            v_lshlrev_b32 v{T+2}, 16, v{T+2}
            v_and_b32 v{T+1}, 0xffff0000, v{T}
            v_lshlrev_b32 v{T}, 16, v{T}
            """)
            k(pk("fma", e+2*h, gp, T+2, T, sa=0))
    GQ = 20
    def gu_loads():
        for kq in range(4):
            for ab in range(2):
                r = GQ + (kq*2+ab)*4
                k(f"buffer_load_dwordx4 v[{r}:{r+3}], v18, s[{WS}:{WS+3}], s{70 + (kq>>1)} offen offset:{(kq&1)*2048 + ab*1024} sc1")
    AG = 52
    def act_loads(tag):
        for r in range(2):
            t = f"buffer_load_dwordx4 v[{AG+4*r}:{AG+4*r+3}], v{(18, 13)[r]}, s[{WS}:{WS+3}], s72 offen offset:{r*1024} sc1"
            vm.issue(tag, t) if tag else k(t)
    mark = 0
    NWD = cfg.get("nwd", 4)
    if 'wd' in AUX and 'wd' not in WIN:
        k(f"""
        s_and_b32 s63, s25, {NWD - 1}
        s_getpc_b64 s[80:81]
        L_wdpc:
        s_add_u32 s80, s80, L_wdsub - L_wdpc
        s_addc_u32 s81, s81, 0
        """)
    for i in range(13):
        if i == 0: stage2(2)
        stage2(i + 3)
        lg = ""
        WD0 = cfg.get("wd0", 1)
        if WD0 <= i < WD0 + NWD and 'wd' in AUX and 'wd' not in WIN:
            L = k.label("wd")
            k(f"s_cmp_lg_u32 s63, {i - WD0}\ns_cbranch_scc1 {L}\ns_swappc_b64 s[82:83], s[80:81]\n{L}:")
        if i == 1 and 'gu' in AUX:
            k(f"""
            s_lshl_b32 s70, s2, 13
            s_add_u32 s70, s70, {WS_GU}
            s_add_u32 s71, s70, 4096
            s_cmp_lt_u32 s2, 224
            s_cselect_b32 s73, s30, 1
            s_cmp_lg_u32 s73, 0
            s_cbranch_scc1 L_nogu1
            """)
            gu_loads()
            k("L_nogu1:")
            mark = vm.total
        if i == 2 and 'ep' in AUX and 'ep' not in WIN: ep_loads()
        if i == 3 and 'gu' in AUX:
            k(f"""
            s_cmp_lg_u32 s73, 0
            s_cbranch_scc1 L_nogu2
            v_mov_b32 v{T}, s{TAG}
            v_mov_b32 v{T+1}, s{TAG}
            s_mov_b32 s68, {SPIN}
            s_waitcnt vmcnt({vm.total - mark})
            L_gupoll:
            """)
            for q in range(8):
                k(f"v_cmp_ne_u64 {'vcc' if q == 0 else 's[66:67]'}, v[{GQ+4*q+2}:{GQ+4*q+3}], v[{T}:{T+1}]")
                if q: k("s_or_b64 vcc, vcc, s[66:67]")
            k("s_cbranch_vccz L_guok\ns_sub_u32 s68, s68, 1\ns_cbranch_scc1 L_guok")
            gu_loads()
            k("s_waitcnt vmcnt(0)\ns_branch L_gupoll\nL_guok:")
            for ab in range(2):
                a = GQ + 4*ab
                k(pk("add", a, a, a+8)); k(pk("add", a+16, a+16, a+24)); k(pk("add", a, a, a+16))
            for ab in range(2):
                g, u = GQ + 4*ab, GQ + 4*ab + 2
                k(f"v_cvt_pk_bf16_f32 v{g}, v{g}, v{g+1}\nv_mov_b32 v{u}, v{g}\nv_permlane32_swap_b32 v{g}, v{u}")
                k(f"""
                v_and_b32 v{g+1}, 0xffff0000, v{g}
                v_lshlrev_b32 v{g}, 16, v{g}
                v_and_b32 v{u+1}, 0xffff0000, v{u}
                v_lshlrev_b32 v{u}, 16, v{u}
                v_mul_f32 v{T+2}, {LOG2E ^ 0x80000000:#x}, v{g}
                v_mul_f32 v{T+3}, {LOG2E ^ 0x80000000:#x}, v{g+1}
                v_exp_f32 v{T+2}, v{T+2}
                v_exp_f32 v{T+3}, v{T+3}
                v_add_f32 v{T+2}, 1.0, v{T+2}
                v_add_f32 v{T+3}, 1.0, v{T+3}
                v_rcp_f32 v{T+2}, v{T+2}
                v_rcp_f32 v{T+3}, v{T+3}
                """)
                k(pk("mul", g, g, T+2))
                k(f"v_cvt_pk_bf16_f32 v{g}, v{g}, v{g+1}\nv_and_b32 v{g+1}, 0xffff0000, v{g}\nv_lshlrev_b32 v{g}, 16, v{g}")
                k(pk("mul", g, g, u))
                k(f"v_cvt_pk_bf16_f32 v{T-2+ab}, v{g}, v{g+1}")
            k(f"""
            s_lshl_b32 s33, s2, 9
            s_add_u32 s33, s33, {WS_ACT}
            s_mov_b64 exec, 0xffffffff
            buffer_store_dwordx4 v[{T-2}:{T+1}], v18, s[{WS}:{WS+3}], s33 offen sc1
            s_mov_b64 exec, -1
            L_nogu2:
            """)
        if i == 4 and 'ep' in AUX:
            vm.wait("ep")
            k(f"""
            s_mov_b32 s68, {SPIN}
            L_gpoll:
            v_cmp_ne_u32 vcc, s{TAG}, v{GG+1}
            s_and_b32 vcc_hi, vcc_hi, 0
            s_cbranch_vccz L_gok
            s_sub_u32 s68, s68, 1
            s_cbranch_scc1 L_gok
            buffer_load_dwordx2 v[{GG}:{GG+1}], v9, s[{WS}:{WS+3}], s74 offen sc1
            s_waitcnt vmcnt(0)
            s_branch L_gpoll
            L_gok:
            v_lshlrev_b32 v8, 2, v6
            """)
            for g_ in range(8): k(f"ds_bpermute_b32 v{GR+2*g_}, v8, v{GG} offset:{16*g_}")
            k(f"""
            v_and_b32 v{DR+3}, 0xffff0000, v{DR+1}
            v_lshlrev_b32 v{DR+2}, 16, v{DR+1}
            v_and_b32 v{DR+1}, 0xffff0000, v{DR}
            v_lshlrev_b32 v{DR}, 16, v{DR}
            s_mul_i32 s72, s26, 7168
            s_mul_i32 s33, s30, 1792
            s_add_u32 s72, s72, s33
            s_add_u32 s72, s72, {WS_ACT}
            v_cmp_gt_u32 vcc, 48, v1
            v_cndmask_b32 v13, v2, v18, vcc
            s_waitcnt lgkmcnt(0)
            """)
            for g_ in range(8): k(f"v_and_b32 v{GR+2*g_+1}, 0xffff0000, v{GR+2*g_}\nv_lshlrev_b32 v{GR+2*g_}, 16, v{GR+2*g_}")
        if i == 6 and 'act' in AUX: act_loads("act")
        for g_ in {5: (0, 1), 6: (2,), 7: (3, 4), 8: (5,), 10: (6,), 12: (7,)}.get(i, ()):
            if 'e1' in AUX: e1_group(XR + 2*g_, GR + 2*g_, E1 + 4*g_)
        if i == 8 and 'act' in AUX:
            vm.wait("act")
            k(f"""
            v_mov_b32 v{T}, s{TAG}
            v_mov_b32 v{T+1}, s{TAG}
            s_mov_b32 s68, {SPIN}
            L_actpoll:
            v_cmp_ne_u64 vcc, v[{AG+2}:{AG+3}], v[{T}:{T+1}]
            v_cmp_ne_u64 s[66:67], v[{AG+6}:{AG+7}], v[{T}:{T+1}]
            s_and_b32 s67, s67, 0xffff
            s_or_b64 vcc, vcc, s[66:67]
            s_cbranch_vccz L_actok
            s_sub_u32 s68, s68, 1
            s_cbranch_scc1 L_actok
            """)
            act_loads(None)
            k(f"""
            s_waitcnt vmcnt(0)
            s_branch L_actpoll
            L_actok:
            s_mul_i32 s33, s30, 112
            v_add_u32 v8, s33, v1
            v_bfe_u32 v{T}, v8, 4, 1
            v_mul_u32_u24 v{T}, {4*ACT_ROW}, v{T}
            v_and_b32 v{T+1}, 15, v8
            v_lshl_add_u32 v{T}, v{T+1}, 1, v{T}
            v_and_b32 v8, 0x1e0, v8
            v_add_u32 v8, v8, v{T}
            v_add_u32 v8, {L_ACT}, v8
            """)
            for r in range(2):
                if r: k("s_mov_b32 exec_hi, 0xffff")
                for h in range(2): k(f"ds_write_b16 v8, v{AG+4*r+h} offset:{r*64 + 2*h*ACT_ROW}\nds_write_b16_d16_hi v8, v{AG+4*r+h} offset:{r*64 + (2*h+1)*ACT_ROW}")
            k("s_mov_b32 exec_hi, -1")
            lg = "lgkmcnt(0)"
        if i == 9 and 'down' in AUX:
            k(f"""
            v_mul_u32_u24 v8, {ACT_ROW}, v4
            v_lshl_add_u32 v8, v6, 4, v8
            v_add_u32 v8, {L_ACT}, v8
            s_lshl_b32 s33, s30, 5
            v_add_u32 v5, s33, v5
            """)
            for s in range(7):
                k(f"ds_read_b128 v[{BF+4*s}:{BF+4*s+3}], v8 offset:{64*s}")
                for hh in range(2): k(f"ds_read_b64_tr_b16 v[{AF+4*s+2*hh}:{AF+4*s+2*hh+1}], v5 offset:{L_WD + (32*s+4*hh)*128}")
            for s in range(7):
                k(f"s_waitcnt lgkmcnt({min(15, 3*(6-s))})")
                k(f"v_mfma_f32_16x16x32_bf16 v[{DD}:{DD+3}], v[{BF+4*s}:{BF+4*s+3}], v[{AF+4*s}:{AF+4*s+3}], {'0' if s == 0 else f'v[{DD}:{DD+3}]'}")
            k(f"""
            v_and_b32 v8, 1, v6
            v_lshlrev_b32 v8, 1, v8
            v_lshrrev_b32 v20, 1, v6
            v_add_u32 v8, v8, v20
            v_lshlrev_b32 v8, 18, v8
            v_lshl_add_u32 v8, v7, 3, v8
            s_lshl_b32 s33, s27, 13
            s_lshl_b32 s34, s26, 9
            s_add_u32 s33, s33, s34
            s_lshl_b32 s34, s30, 7
            s_add_u32 s33, s33, s34
            s_add_u32 s33, s33, {WS_YP}
            s_add_u32 s34, s33, 131072
            v_mov_b32 v21, s{TAG}
            v_mov_b32 v23, s{TAG}
            v_mov_b32 v20, v{DD}
            v_mov_b32 v22, v{DD+1}
            s_mov_b32 exec_lo, 0
            v_mov_b32 v20, v{DD+2}
            v_mov_b32 v22, v{DD+3}
            s_mov_b32 exec_lo, -1
            """)
            vm.issue("yp", f"buffer_store_dwordx2 v[20:21], v8, s[{WS}:{WS+3}], s33 offen sc1")
            vm.issue("yp", f"buffer_store_dwordx2 v[22:23], v8, s[{WS}:{WS+3}], s34 offen sc1")
        if i == 10:
            k(f"""
            v_subrev_u32 v8, s49, v{IDX}
            v_lshlrev_b32 v{T}, v8, 1
            v_cmp_gt_u32 vcc, 32, v8
            v_cndmask_b32 v{T}, 0, v{T}, vcc
            v_or_b32_dpp v{T}, v{T}, v{T} row_shr:1 row_mask:0xf bank_mask:0xf
            v_or_b32_dpp v{T}, v{T}, v{T} row_shr:2 row_mask:0xf bank_mask:0xf
            v_or_b32_dpp v{T}, v{T}, v{T} row_shr:4 row_mask:0xf bank_mask:0xf
            v_lshlrev_b32 v8, v6, 1
            v_readlane_b32 s33, v{T}, 7
            """)
            for g_ in range(8): k(f"s_lshr_b32 s34, s33, {4*g_}\nv_and_b32 v{170+g_}, s34, v8")
        if i == 11:
            k(f"""
            s_add_u32 s33, s30, 4
            v_readlane_b32 s66, v{IDX}, s30
            v_readlane_b32 s67, v{RSG}, s30
            v_readlane_b32 s68, v{IDX}, s33
            v_readlane_b32 s69, v{RSG}, s33
            v_mov_b32 v10, s66
            v_mov_b32 v{TR_}, s67
            s_mov_b32 exec_lo, 0
            v_mov_b32 v10, s68
            v_mov_b32 v{TR_}, s69
            s_mov_b32 exec_lo, -1
            v_subrev_u32 v3, s48, v10
            v_cmp_gt_u32 vcc, 0x80, v3
            v_lshrrev_b32 v11, 5, v1
            v_lshlrev_b32 v11, 19, v11
            v_and_b32 v13, 1, v6
            v_lshl_add_u32 v11, v13, 12, v11
            v_lshl_add_u32 v11, v7, 5, v11
            s_mov_b64 s[52:53], vcc
            v_cndmask_b32 v11, v2, v11, vcc
            v_lshl_add_u32 v13, v10, 11, v12
            v_cndmask_b32 v13, v2, v13, vcc          ; x address
            v_lshlrev_b32 v12, 3, v10
            v_cndmask_b32 v12, v2, v12, vcc
            v_mov_b32 v9, s{TAG}
            v_cndmask_b32 v9, 0, v9, vcc
            s_lshl_b32 s54, s30, 17
            s_lshl_b32 s66, s27, 13
            s_add_u32 s54, s54, s66
            s_add_u32 s54, s54, {WS_YP}
            s_mov_b32 s66, {WS_GATE}
            """)
        if cfg.get("lstamps2"): stamp(k, cfg, 12 + i)
        vm.wait(f"c{i+1}", lg)
        k("s_barrier")
    def yloads(tag):
        for q in range(8):
            for h in range(2):
                r = YP + 8*q + 4*h
                t = f"buffer_load_dwordx4 v[{r}:{r+3}], v11, s[{WS}:{WS+3}], s54 offen offset:{q*512+h*16} sc1"
                vm.issue(tag, t) if tag else k(t)
    if 'y' not in AUX: k("s_mov_b64 s[52:53], 0")
    k("s_cmp_eq_u64 s[52:53], 0\ns_cbranch_scc1 L_noy")
    yloads(None)
    k(f"buffer_load_dwordx2 v[{TX}:{TX+1}], v13, s[{XF}:{XF+3}], s55 offen")
    k(f"buffer_load_dword v{TG}, v12, s[{WS}:{WS+3}], s66 offen sc1")
    k(f"""
    s_waitcnt vmcnt({vm.count_after('c14') + 18})
    s_barrier
    s_waitcnt vmcnt(18)
    s_barrier
    s_branch L_yjoin
    L_noy:
    """)
    vm.wait("c14"); k("s_barrier")
    vm.wait("c15"); k("s_barrier")
    k("L_yjoin:")
    k(f"""
    v_lshlrev_b32 v14, 4, v7
    v_lshl_add_u32 v15, v10, 12, v14
    v_lshl_add_u32 v14, v6, 12, v14
    v_xor_b32 v16, v7, v6
    v_lshlrev_b32 v16, 4, v16
    v_lshl_add_u32 v16, v6, 8, v16
    s_lshl_b32 s33, s30, 13
    s_add_u32 s33, s33, {L_STG}
    v_add_u32 v16, s33, v16
    v_xor_b32 v17, 64, v16
    v_and_b32 v8, 7, v3
    v_xor_b32 v8, v8, v7
    v_lshlrev_b32 v8, 4, v8
    v_and_b32 v5, 0x7f, v3
    v_lshl_add_u32 v8, v5, 8, v8
    s_lshl_b32 s67, s27, 8
    s_lshl_b32 s69, s49, 12
    s_add_u32 s69, s69, s67
    """)
    stamp(k, cfg, 4)
    k(f"s_cmp_eq_u64 s[52:53], 0\ns_cbranch_scc1 L_notok\ns_mov_b32 s68, {SPIN}\nL_ypoll:\ns_waitcnt vmcnt(0)")
    k(f"v_xor_b32 v{T}, v9, v{YP+1}")
    for q in range(1, 32): k(f"v_xor_b32 v{T+1}, v9, v{YP+2*q+1}\nv_or_b32 v{T}, v{T}, v{T+1}")
    k(f"v_cmp_ne_u32 vcc, 0, v{T}\ns_cbranch_vccz L_yok\ns_sub_u32 s68, s68, 1\ns_cbranch_scc1 L_yok")
    yloads(None)
    k("s_branch L_ypoll\nL_yok:")
    for q in range(1, 8):
        for x in range(4): k(f"v_add_f32 v{YP+2*x}, v{YP+2*x}, v{YP+8*q+2*x}")
    for x in range(4): k(f"v_mov_b32 v{YP+2*x+1}, v{YP+2*x}")
    for x in range(4): k(f"v_permlane16_swap_b32 v{YP+2*x}, v{YP+2*x+1}")
    for x in range(4): k(f"v_add_f32 v{YP+8+x}, v{YP+2*x}, v{YP+2*x+1}")
    Y = YP + 8
    k(f"v_and_b32 v{TG+1}, 0xffff0000, v{TG}\nv_lshlrev_b32 v{TG}, 16, v{TG}")
    for h in range(2):
        y = Y + 2*h
        k(f"""
        v_cvt_pk_bf16_f32 v{y}, v{y}, v{y+1}
        v_and_b32 v{y+1}, 0xffff0000, v{y}
        v_lshlrev_b32 v{y}, 16, v{y}
        v_mul_f32 v{y}, v{y}, v{TR_}
        v_mul_f32 v{y+1}, v{y+1}, v{TR_}
        v_cvt_pk_bf16_f32 v{y}, v{y}, v{y+1}
        v_and_b32 v{y+1}, 0xffff0000, v{y}
        v_lshlrev_b32 v{y}, 16, v{y}
        v_lshlrev_b32 v{T}, 16, v{TX+h}
        v_and_b32 v{T+1}, 0xffff0000, v{TX+h}
        """)
        k(pk("add", y, y, T))
        k(f"v_cvt_pk_bf16_f32 v{y}, v{y}, v{y+1}\nv_and_b32 v{y+1}, 0xffff0000, v{y}\nv_lshlrev_b32 v{y}, 16, v{y}")
    e1_group(TX, TG, TE, b=Y)
    k("L_notok:")
    stamp(k, cfg, 5)
    k("s_barrier")
    A = 20
    for g_ in range(8): k(f"ds_read_b128 v[{A+4*g_}:{A+4*g_+3}], v{16 + (g_ & 1)} offset:{g_*1024}")
    k(f"ds_read_b128 v[{A+32}:{A+35}], v8 offset:{L_STG}")
    ONT = " nt" if cfg.get("nto") else ""
    for g_ in range(8):
        k(f"v_cmp_eq_u32 vcc, 0, v{170+g_}\ns_waitcnt lgkmcnt({8-g_})")
        for h in range(2): k(pk("fma", A+4*g_+2*h, GR+2*g_, A+4*g_+2*h, E1+4*g_+2*h, sa=0))
        k(f"s_mov_b64 exec, vcc\nbuffer_store_dwordx4 v[{A+4*g_}:{A+4*g_+3}], v14, s[{OS}:{OS+3}], s69 offen{ONT}\ns_mov_b64 exec, -1\ns_add_u32 s69, s69, 16384")
    k(f"s_waitcnt lgkmcnt(0)")
    for h in range(2): k(pk("fma", A+32+2*h, TG, A+32+2*h, TE+2*h, sa=0))
    k(f"""
    s_and_b32 exec_lo, s52, 0xffff
    s_and_b32 exec_hi, s53, 0xffff
    s_cbranch_execz L_aend
    buffer_store_dwordx4 v[{A+32}:{A+35}], v15, s[{OS}:{OS+3}], s67 offen{ONT}
    L_aend:
    """)
    stamp(k, cfg, 6)
    if cfg.get("stamps") or cfg.get("dbgt"): k("s_waitcnt vmcnt(0)"); stamp(k, cfg, 7)
    stamp_flush(k, cfg, 0)
    k("s_endpgm")
    if 'wd' in AUX and 'wd' not in WIN:
        k("L_wdsub:")
        wd_loads(False)
        k("s_setpc_b64 s[82:83]")

def compute(k, cfg):
    LRS, LIS, DTS, WS, ES, HS, XS, RS, GS, CS = 8, 12, 16, 20, 36, 40, 64, 68, 72, 76
    LR, LI, L8R, L8I, L16R, L16I, SR_, SI_, T1, T2 = 10, 12, 14, 16, 18, 20, 22, 24, 26, 28
    FR, ACC, GR = 32, 96, 160
    TB = lambda tp, cb: 200 + (tp*2+cb)*2
    WRs = lambda cb: 232 + 2*cb
    WIs = lambda cb: 236 + 2*cb
    VR_, VI_, L5R, L5I = 240, 242, 244, 246
    EXP = [248, 250, 252, 254]
    X0, WR, GW, GL, GH, AR, AZ, T0, ONE = 160, 176, 184, 64, 72, 80, 82, 84, 92
    RAWR, RAWI = 32, 34
    k(f"""
    s_load_dwordx2 s[{XS}:{XS+1}], s[0:1], {KA['x']}
    s_load_dwordx2 s[{RS}:{RS+1}], s[0:1], {KA['w_r']}
    s_load_dwordx2 s[{GS}:{GS+1}], s[0:1], {KA['gate_w']}
    s_load_dwordx2 s[{LRS}:{LRS+1}], s[0:1], {KA['lam_re']}
    s_load_dwordx2 s[{LIS}:{LIS+1}], s[0:1], {KA['lam_im']}
    s_load_dwordx2 s[{DTS}:{DTS+1}], s[0:1], {KA['log_dt']}
    s_load_dwordx2 s[{WS}:{WS+1}], s[0:1], {KA['ws']}
    s_lshr_b32 s30, s29, 1       ; wm
    s_and_b32 s31, s29, 1        ; wn
    v_and_b32 v6, 15, v1         ; j
    v_lshrrev_b32 v7, 4, v1      ; q
    s_lshl_b32 s32, s27, 6
    s_lshl_b32 s33, s31, 5
    s_add_u32 s32, s32, s33
    s_lshl_b32 s32, s32, 1
    v_lshlrev_b32 v8, 1, v6
    v_lshlrev_b32 v196, 4, v1
    s_lshl_b32 s46, s26, 7
    s_lshl_b32 s47, s27, 3
    s_add_u32 s46, s46, s47
    s_lshl_b32 s47, s29, 1
    s_add_u32 s46, s46, s47
    s_lshl_b32 s48, s46, 11
    s_mov_b32 s{XS+2}, {SZ['x']}
    s_mov_b32 s{XS+3}, 0x20000
    """)
    for s in (LRS, LIS, DTS, RS, GS): k(f"s_mov_b32 s{s+2}, 2048\ns_mov_b32 s{s+3}, 0x20000")
    k("s_waitcnt lgkmcnt(0)")
    k(f"s_load_dword s44, s[{WS}:{WS+1}], {WS_G}")
    for cb in range(2):
        k(f"buffer_load_ushort v{T1+cb}, v8, s[{DTS}:{DTS+3}], s32 offen offset:{cb*32}")
        k(f"buffer_load_ushort v{RAWR+cb}, v8, s[{LRS}:{LRS+3}], s32 offen offset:{cb*32}")
        k(f"buffer_load_ushort v{RAWI+cb}, v8, s[{LIS}:{LIS+3}], s32 offen offset:{cb*32}")
    for h in range(2):
        k(f"buffer_load_dwordx4 v[{GW+4*h}:{GW+4*h+3}], v196, s[{GS}:{GS+3}], 0 offen offset:{h*1024}")
        k(f"buffer_load_dwordx4 v[{WR+4*h}:{WR+4*h+3}], v196, s[{RS}:{RS+3}], 0 offen offset:{h*1024}")
    for r in range(2):
        for h in range(2):
            k(f"buffer_load_dwordx4 v[{X0+8*r+4*h}:{X0+8*r+4*h+3}], v196, s[{XS}:{XS+3}], s48 offen offset:{r*2048+h*1024}")
    if cfg.get("codepf", 1):
        k(f"""
        s_getpc_b64 s[{LRS}:{LRS+1}]
        Lc_pc:
        s_sub_u32 s{LRS}, s{LRS}, Lc_pc - {NAME}_kernel
        s_subb_u32 s{LRS+1}, s{LRS+1}, 0
        s_mov_b32 s{LRS+2}, L_end - {NAME}_kernel
        s_lshl_b32 s33, s25, 10
        s_cmp_lg_u32 s29, 0
        s_cbranch_scc1 Lc_nopf
        buffer_load_dwordx4 v[192:195], v196, s[{LRS}:{LRS+3}], s33 offen
        Lc_nopf:
        """)
    k(f"""
    v_lshrrev_b32 v8, 1, v6
    v_xor_b32 v8, v8, v7
    v_lshlrev_b32 v8, 4, v8
    v_lshl_add_u32 v8, v6, 7, v8
    s_lshl_b32 s33, s30, 13
    s_lshl_b32 s34, s31, 13
    s_add_u32 s34, s34, 16384
    v_add_u32 v2, s33, v8
    v_add_u32 v4, s34, v8
    v_xor_b32 v3, 64, v2
    v_xor_b32 v5, 64, v4
    s_lshl_b32 s33, s27, 14
    s_add_u32 s33, s33, {WS_E}
    s_add_u32 s{ES}, s{WS}, s33
    s_addc_u32 s{ES+1}, s{WS+1}, 0
    s_mov_b32 s{ES+2}, 16384
    s_mov_b32 s{ES+3}, 0x20000
    s_add_u32 s33, s27, s26
    s_and_b32 s33, s33, 15
    s_lshl_b32 s33, s33, 2
    s_add_u32 s33, s33, s31
    s_lshl_b32 s33, s33, 3
    s_lshl_b32 s34, s26, 9
    s_add_u32 s33, s33, s34
    s_lshl_b32 s34, s30, 2
    s_add_u32 s33, s33, s34
    s_lshl_b32 s33, s33, 10
    s_add_u32 s33, s33, {WS_H}
    s_add_u32 s{HS}, s{WS}, s33
    s_addc_u32 s{HS+1}, s{WS+1}, 0
    s_mov_b32 s{HS+2}, {2*8192 + 4096}
    s_mov_b32 s{HS+3}, 0x20000
    """)
    for r in range(64): k(f"v_mov_b32 v{ACC+r}, 0")
    k("s_waitcnt vmcnt(8)")
    for cb in range(2):
        k(f"""
        v_lshlrev_b32 v{T1+cb}, 16, v{T1+cb}
        v_lshlrev_b32 v{RAWR+cb}, 16, v{RAWR+cb}
        v_lshlrev_b32 v{RAWI+cb}, 16, v{RAWI+cb}
        v_mul_f32 v{T1+cb}, {LOG2E:#x}, v{T1+cb}
        v_exp_f32 v{T1+cb}, v{T1+cb}
        """)
    k(f"v_cvt_pk_bf16_f32 v{T1}, v{T1}, v{T1+1}\nv_and_b32 v{T1+1}, 0xffff0000, v{T1}\nv_lshlrev_b32 v{T1}, 16, v{T1}")
    k(pk("mul", T2, T1, RAWI)); k(pk("mul", T1, T1, RAWR))
    for cb in range(2):
        k(f"""
        v_mul_f32 v{T1+cb}, {LOG2E:#x}, v{T1+cb}
        v_mul_f32 v{T2+cb}, {INV2PI:#x}, v{T2+cb}
        v_exp_f32 v{T1+cb}, v{T1+cb}
        v_rndne_f32 v{LR+cb}, v{T2+cb}
        v_sub_f32 v{T2+cb}, v{T2+cb}, v{LR+cb}
        v_cos_f32 v{LR+cb}, v{T2+cb}
        v_sin_f32 v{LI+cb}, v{T2+cb}
        """)
    k(pk("mul", LR, LR, T1)); k(pk("mul", LI, LI, T1))
    csq(k, L8R, L8I, LR, LI, T1); csq(k, L16R, L16I, L8R, L8I, T1); csq(k, L8R, L8I, L16R, L16I, T1); csq(k, L16R, L16I, L8R, L8I, T1)
    A_R, A_I, B_R, B_I, WR_, WI_, S2R, S2I, TT = 36, 38, 40, 42, 44, 46, 48, 50, 52
    k("s_lshl_b32 s33, s30, 2\nv_add_u32 v8, s33, v7")
    def sel_one(dr, di, sr, si, bit, v):
        k(f"v_and_b32 v9, {bit}, v{v}\nv_cmp_ne_u32 vcc, 0, v9")
        for cb in range(2): k(f"v_cndmask_b32 v{dr+cb}, 1.0, v{sr+cb}, vcc\nv_cndmask_b32 v{di+cb}, 0, v{si+cb}, vcc")
    sel_one(WR_, WI_, L16R, L16I, 1, 8)
    csq(k, A_R, A_I, L16R, L16I, TT)
    sel_one(SR_, SI_, A_R, A_I, 2, 8)
    cmul_cb(k, VR_, VI_, WR_, WI_, SR_, SI_)
    csq(k, B_R, B_I, A_R, A_I, TT)
    sel_one(SR_, SI_, B_R, B_I, 4, 8)
    cmul_cb(k, WR_, WI_, VR_, VI_, SR_, SI_)
    csq(k, A_R, A_I, B_R, B_I, TT)
    sel_one(S2R, S2I, A_R, A_I, 1, 7)
    csq(k, B_R, B_I, A_R, A_I, TT)
    sel_one(SR_, SI_, B_R, B_I, 2, 7)
    cmul_cb(k, VR_, VI_, S2R, S2I, SR_, SI_)
    csq(k, L5R, L5I, B_R, B_I, TT)
    cmul_cb(k, A_R, A_I, WR_, WI_, L8R, L8I)
    for cb in range(2):
        k(f"v_mov_b32 v{WRs(cb)}, v{WR_+cb}\nv_mov_b32 v{WRs(cb)+1}, v{A_R+cb}\nv_mov_b32 v{WIs(cb)}, v{WI_+cb}\nv_mov_b32 v{WIs(cb)+1}, v{A_I+cb}")
    for cb in range(2):
        k(f"v_max_f32 v{T1+cb}, |v{RAWR+cb}|, |v{RAWI+cb}|\nv_rcp_f32 v{T2+cb}, v{T1+cb}")
    k(pk("mul", RAWR, RAWR, T2)); k(pk("mul", RAWI, RAWI, T2))
    k(pk("mul", T2, RAWR, RAWR)); k(pk("fma", T2, RAWI, RAWI, T2)); k(pk("mul", T2, T2, T1))
    for cb in range(2): k(f"v_rcp_f32 v{T2+cb}, v{T2+cb}\nv_add_f32 v{T1+cb}, -1.0, v{LR+cb}")
    k(pk("add", T2, T2, T2))
    k(pk("mul", SR_, T1, RAWR)); k(pk("mul", SI_, LI, RAWR)); k(pk("fma", SR_, LI, RAWI, SR_)); k(pk("fma", SI_, T1, RAWI, SI_, na=3))
    k(pk("mul", SR_, SR_, T2)); k(pk("mul", SI_, SI_, T2))
    for cb in range(2):
        k(f"v_mov_b32 v{T1+2*cb}, v{SR_+cb}\nv_mov_b32 v{T1+2*cb+1}, v{SI_+cb}")
    for tp in range(8):
        for cb in range(2):
            src = T1 + 2*cb if tp == 0 else TB(tp-1, cb)
            k(pk("mul", TB(tp,cb), LR, src, sa=cb))
        for cb in range(2):
            src = T1 + 2*cb if tp == 0 else TB(tp-1, cb)
            k(pk("fma", TB(tp,cb), LI, src, TB(tp,cb), sa=cb, sb='x', nb=1))
    k(f"v_mov_b32 v{ONE}, 0x3f803f80\nv_mov_b32 v{AR}, 0\nv_mov_b32 v{AR+1}, 0\nv_mov_b32 v{AZ}, 0\nv_mov_b32 v{AZ+1}, 0\ns_waitcnt vmcnt(0)")
    for q in range(8): k(f"v_and_b32 v{GL+q}, 0xffff, v{GW+q}\nv_and_b32 v{GH+q}, 0xffff0000, v{GW+q}")
    for i in range(8):
        t = T0 + 4*(i & 1)
        for r in range(2):
            k(f"v_dot2_f32_bf16 v{t+2*r}, v{X0+8*r+i}, v{GL+i}, 0\nv_dot2_f32_bf16 v{t+2*r+1}, v{X0+8*r+i}, v{GH+i}, 0")
        for r in range(2): k(f"v_dot2c_f32_bf16 v{AR+r}, v{X0+8*r+i}, v{WR+i}")
        if i:
            for r in range(2): k(f"v_dot2c_f32_bf16 v{AZ+r}, v{T0+4*((i-1)&1)+2*r}, v{ONE}")
        for r in range(2): k(f"v_cvt_pk_bf16_f32 v{t+2*r}, v{t+2*r}, v{t+2*r+1}")
    for r in range(2): k(f"v_dot2c_f32_bf16 v{AZ+r}, v{T0+4+2*r}, v{ONE}")
    wave_sum(k, [AR, AR+1, AZ, AZ+1])
    k(f"""
    v_readlane_b32 s33, v{AR+1}, 63
    v_readlane_b32 s34, v{AZ+1}, 63
    v_sub_u32 v{T0+2}, 63, v1
    v_add_u32 v{T0+3}, s46, v{T0+2}
    v_sub_u32 v{T0+3}, 2047, v{T0+3}
    v_add_u32 v{T0+2}, s47, v{T0+2}
    v_lshlrev_b32 v{T0+2}, 3, v{T0+2}
    v_add_u32 v{T0+2}, {L_RT}, v{T0+2}
    v_writelane_b32 v{AR}, s33, 62
    v_writelane_b32 v{AZ}, s34, 62
    v_cvt_pk_bf16_f32 v{AR}, v{AR}, v{AZ}
    v_and_b32 v{AZ}, 0xffff0000, v{AR}
    v_lshlrev_b32 v{AR}, 16, v{AR}
    v_ashrrev_i32 v{T0}, 31, v{AR}
    v_or_b32 v{T0}, 0x80000000, v{T0}
    v_xor_b32 v{T0}, v{T0}, v{AR}
    v_and_b32 v{T0}, 0xffff0000, v{T0}
    v_or_b32 v{T0}, v{T0}, v{T0+3}           ; key
    """)
    sigmoid_bf16(k, T0+4, AZ, T0+3)
    k(f"""
    v_sub_f32 v{T0+5}, 1.0, v{T0+4}
    v_cvt_pk_bf16_f32 v{T0+1}, v{T0+4}, v{T0+5}
    s_mov_b32 exec_lo, 0
    s_mov_b32 exec_hi, 0xc0000000
    ds_write_b64 v{T0+2}, v[{T0}:{T0+1}]
    s_mov_b64 exec, -1
    s_waitcnt lgkmcnt(0)
    s_mul_i32 s44, s44, 1664525
    s_add_u32 s44, s44, 1013904223
    """)
    stamp(k, cfg, 11)
    if cfg.get("prio", 1): k(f"s_setprio {cfg.get('prio', 1)}")
    k("s_barrier")
    stamp(k, cfg, 0)
    def rd(sub, fs, slot):
        b = FR + 32*fs; o = slot*32768
        A = [f"ds_read_b128 v[{b+4*m}:{b+4*m+3}], v{2+sub} offset:{o+m*2048}" for m in range(4)]
        B = [f"ds_read_b128 v[{b+16+4*m}:{b+16+4*m+3}], v{4+sub} offset:{o+m*2048}" for m in range(4)]
        return [A[0], B[0], B[1], B[2], B[3], A[1], A[2], A[3]]
    def mm(fs):
        b = FR + 32*fs; out = []
        for mb in range(4):
            for x in (range(4) if mb % 2 == 0 else range(3, -1, -1)):
                ri, cb = x >> 1, x & 1
                a = ACC + (cb*2+ri)*16 + mb*4
                out.append(f"v_mfma_f32_16x16x32_bf16 v[{a}:{a+3}], v[{b+4*mb}:{b+4*mb+3}], v[{b+16+4*x}:{b+16+4*x+3}], v[{a}:{a+3}]")
        return out
    for l in rd(0, 0, 0): k(l)
    k("s_mov_b32 s35, 0\nLc_loop:")
    BAR = cfg.get("bar1", 3)
    for half in range(2):
        m = mm(0); r = rd(1, 1, half)
        k("s_waitcnt lgkmcnt(0)")
        for i in range(16):
            k(m[i])
            if i < 8: k(r[i])
        m = mm(1)
        if half == 0: r = rd(0, 0, 1)
        else: r = rd(0, 0, 0)
        k("s_waitcnt lgkmcnt(0)")
        for i in range(16):
            k(m[i])
            if half == 1 and i == 0:
                for a in range(2, 6): k(f"v_xor_b32 v{a}, 0x10000, v{a}")
            if i == BAR - 1:
                if half == 0: k("s_barrier")
                else: k("s_cmp_eq_u32 s35, 7\ns_cbranch_scc1 Lc_nobar\ns_barrier\nLc_nobar:")
            if BAR <= i < BAR + 8: k(r[i - BAR])
    stamp_loop(k, cfg, 12, 35)
    k("s_add_u32 s35, s35, 1\ns_cmp_lt_u32 s35, 8\ns_cbranch_scc1 Lc_loop")
    stamp(k, cfg, 1)
    U = lambda cb, ri, tp: ACC + (cb*2+ri)*16 + 2*tp
    k(f"""
    s_sub_u32 s33, s26, 1
    v_sub_u32 v8, s33, v7
    v_lshlrev_b32 v8, 10, v8
    v_lshl_add_u32 v8, v6, 4, v8
    s_lshl_b32 s33, s31, 9
    v_add_u32 v192, s33, v8
    v_add_u32 v193, -4096, v192
    v_add_u32 v194, -8192, v192
    v_add_u32 v195, -12288, v192
    v_mov_b32 v9, {L_FLAG}
    """)
    def lb_loads():
        for i in range(4):
            for cb in range(2):
                g = GR + (i*2+cb)*4
                k(f"buffer_load_dwordx4 v[{g}:{g+3}], v{192+i}, s[{ES}:{ES+3}], 0 offen offset:{cb*256} sc1")
    if cfg.get("lbspec"): lb_loads()
    k("s_waitcnt lgkmcnt(0)")
    for tp in range(1, 8):
        for ri_first in (0,):
            for cb in range(2): k(pk("fma", U(cb,0,tp), LR, U(cb,0,tp-1), U(cb,0,tp), sa=cb))
            for cb in range(2): k(pk("fma", U(cb,1,tp), LR, U(cb,1,tp-1), U(cb,1,tp), sa=cb))
            for cb in range(2): k(pk("fma", U(cb,0,tp), LI, U(cb,1,tp-1), U(cb,0,tp), sa=cb, na=3))
            for cb in range(2): k(pk("fma", U(cb,1,tp), LI, U(cb,0,tp-1), U(cb,1,tp), sa=cb))
    for cb in range(2):
        e = T1 + 2*cb; r0, i0 = U(cb,0,7), U(cb,1,7)
        k(f"""
        v_fma_f32 v{e}, v{L8R+cb}, v{r0}, v{r0+1}
        v_fma_f32 v{e+1}, v{L8R+cb}, v{i0}, v{i0+1}
        v_fma_f32 v{e}, -v{L8I+cb}, v{i0}, v{e}
        v_fma_f32 v{e+1}, v{L8I+cb}, v{r0}, v{e+1}
        """)
    k(f"""
    s_lshl_b32 s33, s31, 8
    s_add_u32 s33, s33, {L_EX}
    v_lshl_add_u32 v30, v6, 3, s33          ; e[0][ch]
    s_lshl_b32 s33, s30, 11
    v_lshl_add_u32 v31, v7, 9, s33
    v_add_u32 v31, v31, v30                 ; e[seg][ch]
    ds_write_b64 v31, v[{T1}:{T1+1}]
    ds_write_b64 v31, v[{T1+2}:{T1+3}] offset:128
    s_lshl_b32 s33, s29, 2
    v_add_u32 v31, s33, v9
    s_xor_b32 s33, s33, 8
    v_add_u32 v9, s33, v9
    v_mov_b32 v8, 1
    ds_write_b32 v31, v8
    s_mov_b32 s45, {SPIN}
    Lc_expoll:
    ds_read_b32 v8, v9
    """)
    EV = lambda s, cb: FR + (s*2+cb)*2
    for s in range(8):
        for cb in range(2): k(f"ds_read_b64 v[{EV(s,cb)}:{EV(s,cb)+1}], v30 offset:{s*512+cb*128}")
    k(f"""
    s_waitcnt lgkmcnt(0)
    v_readfirstlane_b32 s33, v8
    s_sub_u32 s45, s45, 1
    s_cbranch_scc1 Lc_exok
    s_cmp_eq_u32 s33, 0
    s_cbranch_scc1 Lc_expoll
    Lc_exok:
    """)
    for s in range(1, 8):
        for cb in range(2): cfma_ri(k, EV(s,cb), L16R, L16I, cb, EV(s-1,cb), EV(s,cb), EV(s,cb))
    k(f"""
    s_cmp_eq_u32 s30, 0
    s_cbranch_scc1 Lc_nopub
    s_cmp_eq_u32 s26, 15
    s_cbranch_scc1 Lc_nopub
    v_mov_b32 v{T1}, v{EV(7,0)}
    v_mov_b32 v{T1+1}, v{EV(7,0)+1}
    v_mov_b32 v{T1+2}, s44
    v_mov_b32 v{T1+3}, s44
    s_lshl_b32 s33, s26, 10
    s_lshl_b32 s34, s31, 9
    s_add_u32 s33, s33, s34
    v_lshlrev_b32 v8, 4, v1
    s_mov_b64 exec, 0xffff0000
    v_mov_b32 v{T1}, v{EV(7,1)}
    v_mov_b32 v{T1+1}, v{EV(7,1)+1}
    s_mov_b64 exec, 0xffffffff
    buffer_store_dwordx4 v[{T1}:{T1+3}], v8, s[{ES}:{ES+3}], s33 offen sc1
    s_mov_b64 exec, -1
    Lc_nopub:
    """)
    stamp(k, cfg, 2)
    PL = FR + 28
    k(f"v_mov_b32 v{PL}, 0\nv_mov_b32 v{PL+1}, 0\nv_mov_b32 v{PL+2}, 0\nv_mov_b32 v{PL+3}, 0")
    k("s_lshl_b32 s33, s30, 2\nv_add_u32 v8, s33, v7")
    for s in range(1, 8):
        k(f"v_cmp_eq_u32 vcc, {s}, v8")
        for x in range(4): k(f"v_cndmask_b32 v{PL+x}, v{PL+x}, v{EV(s-1,0)+x}, vcc")
    PRs = lambda cb: FR + 4*cb
    PIs = lambda cb: FR + 4*cb + 2
    for cb in range(2):
        p = PL + 2*cb; r0, i0 = U(cb,0,7), U(cb,1,7)
        k(f"""
        v_fma_f32 v{PRs(cb)+1}, v{L8R+cb}, v{p}, v{r0}
        v_fma_f32 v{PIs(cb)+1}, v{L8R+cb}, v{p+1}, v{i0}
        v_mov_b32 v{PRs(cb)}, v{p}
        v_mov_b32 v{PIs(cb)}, v{p+1}
        v_fma_f32 v{PRs(cb)+1}, -v{L8I+cb}, v{p+1}, v{PRs(cb)+1}
        v_fma_f32 v{PIs(cb)+1}, v{L8I+cb}, v{p}, v{PIs(cb)+1}
        """)
    for tp in range(8):
        for cb in range(2):
            t = T1 + 2*cb; R, I = U(cb,0,tp), U(cb,1,tp)
            k(pk("mul", t, SI_, R, sa=cb, na=3)); k(pk("mul", R, SR_, R, sa=cb))
            k(pk("fma", R, SI_, I, R, sa=cb, na=3)); k(pk("fma", I, SR_, I, t, sa=cb, na=3))
    k(f"v_mov_b32 v9, s44")
    for i in range(4):
        k(f"v_cmp_le_i32 vcc, 0, v{192+i}\nv_cndmask_b32 v{EXP[i]}, 0, v9, vcc\nv_cndmask_b32 v{EXP[i]+1}, 0, v9, vcc")
    k(f"""
    s_lshl_b32 s33, s29, 12
    s_add_u32 s33, s33, {L_TR}
    v_lshrrev_b32 v8, 1, v6
    v_and_b32 v8, 4, v8
    v_and_b32 v9, 7, v6
    v_xor_b32 v8, v8, v9                    ; g(j)
    v_lshlrev_b32 v9, 1, v7
    v_xor_b32 v8, v8, v9
    v_lshlrev_b32 v8, 4, v8
    v_lshl_add_u32 v8, v6, 7, v8
    v_add_u32 v2, s33, v8
    v_xor_b32 v3, 16, v2
    v_bfe_u32 v8, v1, 2, 2                  ; r
    v_bfe_u32 v9, v1, 1, 1
    v_xor_b32 v9, v9, v8
    v_and_b32 v4, 1, v7
    v_lshlrev_b32 v4, 2, v4
    v_xor_b32 v9, v9, v4
    v_lshlrev_b32 v9, 4, v9
    v_lshl_add_u32 v8, v7, 3, v8
    v_lshl_add_u32 v9, v8, 7, v9
    v_and_b32 v8, 1, v1
    v_lshl_add_u32 v9, v8, 3, v9
    v_add_u32 v4, s33, v9
    v_xor_b32 v5, 32, v4
    v_xor_b32 v30, 64, v4
    v_xor_b32 v31, 96, v4
    s_mov_b32 s45, {SPIN}
    """)
    if cfg.get("dbgregs"):
        k(f"s_mov_b32 s{WS+2}, {SZ['ws']}\ns_mov_b32 s{WS+3}, 0x20000\ns_lshl_b32 s34, s2, 2\ns_add_u32 s34, s34, s29\ns_lshl_b32 s34, s34, 14\ns_add_u32 s34, s34, {WS_STAMP}\nv_lshlrev_b32 v197, 2, v1")
        for i, r in enumerate(cfg["dbgregs"]):
            if i and i % 16 == 0: k("s_add_u32 s34, s34, 4096")
            k(f"buffer_store_dword v{r}, v197, s[{WS}:{WS+3}], s34 offen offset:{(i%16)*256}")
    stamp(k, cfg, 3)
    if not cfg.get("lbspec"):
        if cfg.get("lbpre", 12): k(f"s_sleep {cfg.get('lbpre', 12)}")
        lb_loads()
    k("Lc_lbpoll:\ns_waitcnt vmcnt(0)")
    for i in range(4):
        for cb in range(2):
            g = GR + (i*2+cb)*4
            k(f"v_cmp_ne_u64 s[{46+2*(i*2+cb)}:{47+2*(i*2+cb)}], v[{g+2}:{g+3}], v[{EXP[i]}:{EXP[i]+1}]")
    k("""
    s_or_b64 s[46:47], s[46:47], s[48:49]
    s_or_b64 s[50:51], s[50:51], s[52:53]
    s_or_b64 s[54:55], s[54:55], s[56:57]
    s_or_b64 s[58:59], s[58:59], s[60:61]
    s_or_b64 s[46:47], s[46:47], s[50:51]
    s_or_b64 s[54:55], s[54:55], s[58:59]
    s_or_b64 s[46:47], s[46:47], s[54:55]
    s_cbranch_scc0 Lc_lbok
    s_sub_u32 s45, s45, 1
    s_cbranch_scc1 Lc_lbok
    """)
    if cfg.get("lbsleep"): k(f"s_sleep {cfg['lbsleep']}")
    lb_loads()
    k("s_branch Lc_lbpoll\nLc_lbok:")
    stamp(k, cfg, 4)
    G = lambda i, cb: GR + (i*2+cb)*4
    for i in (2, 1, 0):
        for cb in range(2): cfma_ri(k, G(i,cb), L5R, L5I, cb, G(i+1,cb), G(i,cb), G(i,cb))
    H = lambda cb: G(1, cb)
    for cb in range(2): k(pk("mul", H(cb), VR_, G(0,cb), sa=cb))
    for cb in range(2): k(pk("fma", H(cb), VI_, G(0,cb), H(cb), sa=cb, sb='x', nb=1))
    for op in ("v_permlane16_swap_b32", "v_permlane32_swap_b32"):
        for cb in range(2): k(f"v_mov_b32 v{H(cb)+2}, v{H(cb)}\nv_mov_b32 v{H(cb)+3}, v{H(cb)+1}")
        for cb in range(2): k(f"{op} v{H(cb)}, v{H(cb)+2}\n{op} v{H(cb)+1}, v{H(cb)+3}")
        for cb in range(2): k(pk("add", H(cb), H(cb), H(cb)+2))
    for cb in range(2):
        k(pk("fma", PRs(cb), WRs(cb), H(cb), PRs(cb), sb=0)); k(pk("fma", PIs(cb), WRs(cb), H(cb), PIs(cb), sb=1))
    for cb in range(2):
        k(pk("fma", PRs(cb), WIs(cb), H(cb), PRs(cb), sb=1, nb=3)); k(pk("fma", PIs(cb), WIs(cb), H(cb), PIs(cb), sb=0))
    PK = GR
    RA = {0: 4, 2: 5, 4: 30, 6: 31}
    k(f"s_mov_b32 s33, {2*8192}")
    def hstores(ri):
        for qq in range(4):
            b = ACC + 32*ri + 4*qq
            k(f"s_waitcnt lgkmcnt({2*(1-ri) + 2*(3-qq)})")
            k(f"buffer_store_dwordx4 v[{b}:{b+3}], v196, s[{HS}:{HS+3}], {'s33' if ri else '0'} offen offset:{qq*1024} {cfg.get('hstfl', 'sc1')}")
    for ri in range(2):
        for cb in range(2):
            for tp in range(8):
                R, I, T = U(cb,0,tp), U(cb,1,tp), TB(tp,cb)
                if ri == 0: k(pk("fma", R, T, PRs(cb), R, sa=0)); k(pk("fma", R, T, PIs(cb), R, sa=1, na=3))
                else: k(pk("fma", I, T, PIs(cb), I, sa=0, na=3)); k(pk("fma", I, T, PRs(cb), I, sa=1, na=3))
            for sub in range(2):
                b = PK + ((ri*2+cb)*2+sub)*4
                for x in range(4): k(f"v_cvt_pk_bf16_f32 v{b+x}, v{U(cb,ri,2*x)+sub}, v{U(cb,ri,2*x+1)+sub}")
                k(f"ds_write_b128 v{2+sub}, v[{b}:{b+3}] offset:{cb*16*128}")
            if ri == 1 and cb == 0: hstores(0)
        for qq in range(4):
            b = ACC + 32*ri + 4*qq
            for hh in range(2): k(f"ds_read_b64_tr_b16 v[{b+2*hh}:{b+2*hh+1}], v{RA[(2*qq) ^ (4*hh)]} offset:{4*hh*128}")
    hstores(1)
    stamp(k, cfg, 5)
    CF, HR, AC2 = 8, 40, 200
    FS = 44
    k(f"""
    s_lshl_b32 s33, s26, 11
    s_add_u32 s33, s33, {WS_HF}
    s_add_u32 s{ES}, s{WS}, s33
    s_addc_u32 s{ES+1}, s{WS+1}, 0
    s_mov_b32 s{ES+2}, 2048
    s_lshl_b32 s47, s27, 7
    v_mov_b32 v190, s44
    v_lshlrev_b32 v191, 2, v1
    v_lshlrev_b32 v192, 7, v6
    v_mov_b32 v193, 1
    v_mov_b32 v194, {L_FLAG}
    v_lshrrev_b32 v2, 1, v6
    v_xor_b32 v2, v2, v7
    v_lshlrev_b32 v2, 4, v2
    v_lshl_add_u32 v2, v6, 7, v2
    v_add_u32 v2, {L_C}, v2
    v_xor_b32 v3, 64, v2
    v_and_b32 v5, 7, v6
    v_xor_b32 v5, v5, v7
    v_lshlrev_b32 v5, 4, v5
    v_lshl_add_u32 v5, v6, 8, v5
    s_lshl_b32 s33, s29, 13
    s_add_u32 s33, s33, {L_STG}
    v_add_u32 v186, s33, v5
    v_xor_b32 v187, 64, v186
    v_xor_b32 v188, 128, v186
    v_xor_b32 v189, 192, v186
    """)
    for r in range(32): k(f"v_mov_b32 v{AC2+r}, 0")
    k(ROT[cfg.get("rot2", "xc1")])
    k(f"""
    s_and_b32 s61, s61, 15
    s_add_u32 s62, s61, s26
    s_and_b32 s62, s62, 15
    s_lshl_b32 s62, s62, 15      ; h byte offset of the next substep to load
    s_lshl_b32 s32, s29, 11
    s_lshl_b32 s33, s26, 19
    s_add_u32 s33, s33, s32
    s_add_u32 s33, s33, {WS_H}
    s_waitcnt vmcnt(0)
    s_mov_b64 exec, 1
    ds_add_rtn_u32 v193, v194, v193 offset:24
    s_mov_b64 exec, -1
    """)
    stamp(k, cfg, 20)
    k(f"""
    s_add_u32 s{HS}, s{WS}, s33
    s_addc_u32 s{HS+1}, s{WS+1}, 0
    s_sub_u32 s{HS+2}, {64*8192}, s32
    s_waitcnt lgkmcnt(0)
    v_readfirstlane_b32 s46, v193
    """)
    k(f"""
    s_cmp_lg_u32 s46, 3
    s_cbranch_scc1 Lc_hok
    s_mov_b64 exec, 0xffffffff
    buffer_store_dword v190, v191, s[{ES}:{ES+3}], s47 offen sc1
    ds_write_b32 v194, v194 offset:28
    s_mov_b64 exec, 0xffff
    s_sleep {cfg.get('presleep', 24)}
    s_mov_b32 s45, {SPIN}
    Lc_hpoll:
    buffer_load_dword v193, v192, s[{ES}:{ES+3}], 0 offen sc1
    s_waitcnt vmcnt(0)
    v_cmp_ne_u32 vcc, s44, v193
    s_cbranch_vccz Lc_hdone
    s_sub_u32 s45, s45, 1
    s_cbranch_scc1 Lc_hdone
    s_sleep {cfg.get('hsleep', 4)}
    s_branch Lc_hpoll
    Lc_hdone:
    s_mov_b64 exec, -1
    Lc_hok:
    s_barrier
    """)
    stamp(k, cfg, 7)
    def hload(u, tb):
        r = HR + 8*(u % 8) + 4*tb
        k(f"buffer_load_dwordx4 v[{r}:{r+3}], v196, s[{HS}:{HS+3}], s62 offen offset:{tb*1024} {cfg.get('hld', 'sc1')}")
    def hadv(): k(f"s_add_u32 s62, s62, 8192\ns_and_b32 s62, s62, {64*8192-1}")
    HD = cfg.get("hd", 6)
    for u in range(HD):
        hload(u, 0); hload(u, 1); hadv()
    stamp(k, cfg, 8)
    def rd2(sub, fs, slot):
        b = CF + 16*fs; ri, s = sub >> 1, sub & 1
        return [f"ds_read_b128 v[{b+4*d}:{b+4*d+3}], v{2+s} offset:{slot*16384 + ri*8192 + d*2048}" for d in range(4)]
    def mm2(u, fs):
        b = CF + 16*fs; out = []
        for tb in range(2):
            h = HR + 8*(u % 8) + 4*tb
            for d in (range(4) if tb == 0 else range(3, -1, -1)):
                a = AC2 + (tb*4+d)*4
                out.append(f"v_mfma_f32_16x16x32_bf16 v[{a}:{a+3}], v[{b+4*d}:{b+4*d+3}], v[{h}:{h+3}], v[{a}:{a+3}]")
        return out
    for l in rd2(0, 0, 0): k(l)
    k("s_mov_b32 s35, 0\nLc2_loop:")
    for u in range(8):
        if u == 8 - HD: k(f"s_cmp_eq_u32 s35, 7\ns_cselect_b32 s{HS+2}, 0, s{HS+2}")
        half, sub = u >> 2, u & 3
        m = mm2(u, u & 1)
        r = rd2(sub+1, (u+1) & 1, half) if sub < 3 else rd2(0, 0, 1 - half)
        k(f"s_waitcnt vmcnt({2*HD-1}) lgkmcnt(0)")
        for i in range(8):
            if i == 4: k(f"s_waitcnt vmcnt({2*HD-1})")
            k(m[i])
            if sub == 3 and i == 0:
                if half == 1: k("v_xor_b32 v2, 0x8000, v2\nv_xor_b32 v3, 0x8000, v3\ns_cbranch_scc1 Lc2_nobar\ns_barrier\nLc2_nobar:")
                else: k("s_barrier")
            o = 1 if sub == 3 else 0
            if o <= i < o + 4: k(r[i - o])
            if i == 3: hload(u + HD, 0)
            if i == 7:
                hload(u + HD, 1)
                if u == 6: k(f"s_add_u32 s62, s62, 8192\ns_and_b32 s62, s62, {64*8192-1}\ns_cmp_eq_u32 s35, 7")
                else: hadv()
    stamp_loop(k, dict(lstamps=cfg.get('lstamps2')), 12, 35)
    k("s_add_u32 s35, s35, 1\ns_cmp_lt_u32 s35, 8\ns_cbranch_scc1 Lc2_loop")
    stamp(k, cfg, 9)
    for tb in range(2):
        for d in range(4):
            a = AC2 + (tb*4+d)*4
            k(f"ds_write_b128 v{186+d}, v[{a}:{a+3}] offset:{tb*4096}")
    k("s_waitcnt lgkmcnt(0)\ns_barrier")
    stamp(k, cfg, 10)
    stamp_flush(k, cfg, 0)
```

```python
from common import *

S0 = 147456
L_FLAG, L_RT, L_CAND, L_SORT, L_EX, L_ACT = S0, S0 + 64, S0 + 256, S0 + 512, S0 + 1024, S0 + 5120
ACT_ROW = 464
L_TR = 131072
L_WG, L_WU = 0, 32768
L_C = 65536
L_WD = 32768
L_STG = 0

def gen_fused(cfg):
    k = Kern(NAME + "_kernel", 256, 512, 163840, 256)
    if cfg.get("dbgt"): k("s_memrealtime s[90:91]\nv_mov_b32 v199, 0")
    if cfg.get("stamps"): k("s_memrealtime s[90:91]\ns_memtime s[88:89]\nv_mov_b32 v199, 0")
    k("s_cmp_ge_u32 s2, 256\ns_cbranch_scc1 L_end")
    k("v_lshrrev_b32 v2, 6, v0\nv_and_b32 v1, 63, v0\ns_nop 0\nv_readfirstlane_b32 s29, v2")
    wg_coords(k, cfg.get('band', 0))
    k("s_cmp_lt_u32 s29, 4\ns_cbranch_scc1 L_compute")
    loader(k, dict(cfg, _role="L"))
    k("L_compute:")
    compute(k, dict(cfg, _role="C"))
    k("L_end:\ns_endpgm")
    k.lines = fix_hazards(k.lines)
    return k

def spin_tail(k, cnt, ok, again):
    k(f"s_sub_u32 s{cnt}, s{cnt}, 1\ns_cbranch_scc1 {ok}\ns_sleep 1")

def loader(k, cfg):
    vm = VM(k)
    if cfg.get("lprio", 0): k(f"s_setprio {cfg.get('lprio', 0)}")
    XS, BS, WS, RS, GS, DS, WGS, WUS, XF = 8, 12, 16, 36, 40, 44, 48, 52, 56
    TAG = 65
    k(f"""
    s_load_dwordx2 s[{XF}:{XF+1}], s[0:1], {KA['x']}
    s_load_dwordx4 s[{BS}:{BS+3}], s[0:1], {KA['b_re']}
    s_load_dwordx2 s[{RS}:{RS+1}], s[0:1], {KA['w_r']}
    s_load_dwordx2 s[{GS}:{GS+1}], s[0:1], {KA['gate_w']}
    s_load_dwordx2 s[{WS}:{WS+1}], s[0:1], {KA['ws']}
    s_load_dwordx2 s[{DS}:{DS+1}], s[0:1], {KA['w_down']}
    s_load_dwordx2 s[{WGS}:{WGS+1}], s[0:1], {KA['w_gate']}
    s_load_dwordx2 s[{WUS}:{WUS+1}], s[0:1], {KA['w_up']}
    s_and_b32 s30, s29, 3
    v_lshrrev_b32 v3, 3, v1      ; r3
    v_and_b32 v4, 7, v1
    v_lshrrev_b32 v5, 1, v3
    v_xor_b32 v2, v4, v5
    v_lshlrev_b32 v2, 4, v2
    v_lshl_add_u32 v14, v3, 11, v2   ; B piece 0
    v_xor_b32 v15, 64, v14
    v_add_u32 v16, {2*15360}, v14
    v_add_u32 v17, {3*15360}, v15
    v_add_u32 v15, {15360}, v15
    v_lshrrev_b32 v6, 2, v3
    v_lshlrev_b32 v6, 4, v6
    v_and_b32 v7, 1, v3
    v_lshl_add_u32 v6, v7, 3, v6
    v_and_b32 v7, 1, v5
    v_add_u32 v6, v6, v7         ; tl
    v_lshl_add_u32 v10, v6, 11, v2   ; A piece 0
    v_xor_b32 v11, 64, v10
    v_add_u32 v12, {2*2048-2048}, v10
    v_add_u32 v13, {34*2048-3072}, v11
    v_add_u32 v11, {32*2048-1024}, v11
    s_lshr_b32 s31, s30, 1       ; w>>1
    s_and_b32 s32, s30, 1        ; w&1
    s_lshl_b32 s33, s26, 7
    s_lshl_b32 s34, s31, 6
    s_add_u32 s33, s33, s34
    s_lshl_b32 s34, s32, 2
    s_add_u32 s33, s33, s34
    s_lshl_b32 s33, s33, 11
    s_lshl_b32 s34, s27, 6
    s_lshl_b32 s35, s31, 5
    s_add_u32 s34, s34, s35
    s_lshl_b32 s64, s34, 11
    s_lshl_b32 s60, s30, 12
    """)
    k(ROT[cfg.get("rot1", "cn")])
    k(f"""
    s_and_b32 s61, s61, 15
    s_lshl_b32 s61, s61, 7
    s_cmp_eq_u32 s32, 1
    s_waitcnt lgkmcnt(0)
    s_cselect_b32 s{BS}, s{BS+2}, s{BS}
    s_cselect_b32 s{BS+1}, s{BS+3}, s{BS+1}
    s_add_u32 s{BS}, s{BS}, s64
    s_addc_u32 s{BS+1}, s{BS+1}, 0
    s_sub_u32 s{BS+2}, {SZ['b_re']}, s64
    s_mov_b32 s{BS+3}, 0x20000
    s_add_u32 s{XS}, s{XF}, s33
    s_addc_u32 s{XS+1}, s{XF+1}, 0
    s_sub_u32 s{XS+2}, {SZ['x']}, s33
    s_mov_b32 s{XS+3}, 0x20000
    """)
    def stage(i):
        slot = (i % 4) * 32768
        k(f"s_add_u32 m0, s60, {slot}")
        for j in range(4): vm.issue(f"st{i}", f"buffer_load_dwordx4 v{10+j}, s[{XS}:{XS+3}], s61 offen offset:{j*1024} lds")
        k(f"s_add_u32 m0, s60, {slot + 16384}")
        for j in range(4): vm.issue(f"st{i}", f"buffer_load_dwordx4 v{14+j}, s[{BS}:{BS+3}], s61 offen offset:{j*1024} lds")
        if i < 15: k("s_add_u32 s61, s61, 128\ns_and_b32 s61, s61, 2047")
    X0, WR, GW, GL, GH, AR, AZ, T0, ONE = 20, 36, 44, 52, 60, 68, 70, 72, 96
    k(f"""
    s_lshl_b32 s62, s26, 7
    s_lshl_b32 s63, s27, 3
    s_add_u32 s62, s62, s63
    s_lshl_b32 s63, s30, 1
    s_add_u32 s62, s62, s63
    s_lshl_b32 s63, s62, 11
    v_lshlrev_b32 v18, 4, v1
    """)
    for s, nm in ((XF, 'x'), (RS, 'w_r'), (GS, 'gate_w')):
        k(f"s_mov_b32 s{s+2}, {SZ[nm]}\ns_mov_b32 s{s+3}, 0x20000")
    def router_loads():
        for h in range(2):
            vm.issue("rt", f"buffer_load_dwordx4 v[{GW+4*h}:{GW+4*h+3}], v18, s[{GS}:{GS+3}], 0 offen offset:{h*1024}")
            vm.issue("rt", f"buffer_load_dwordx4 v[{WR+4*h}:{WR+4*h+3}], v18, s[{RS}:{RS+3}], 0 offen offset:{h*1024}")
        for r in range(2):
            for h in range(2):
                vm.issue("rt", f"buffer_load_dwordx4 v[{X0+8*r+4*h}:{X0+8*r+4*h+3}], v18, s[{XF}:{XF+3}], s63 offen offset:{r*2048+h*1024}")
        k(f"s_load_dwordx2 s[{RS}:{RS+1}], s[0:1], {KA['dskip']}\ns_load_dwordx2 s[{GS}:{GS+1}], s[0:1], {KA['out']}\ns_mov_b32 s{GS+2}, {SZ['out']}")
    stamp(k, cfg, 10)
    if cfg.get("rtfirst", 1) and not cfg.get('rtlate', 0): router_loads()
    stage(0)
    if not cfg.get("rtfirst", 1) and not cfg.get('rtlate', 0): router_loads()
    if cfg.get("st1early", 0): stage(1)
    k(f"""
    v_mov_b32 v9, 0
    v_mov_b32 v8, 0
    v_mov_b32 v7, {L_FLAG}
    ds_write_b64 v7, v[8:9]
    ds_write_b64 v7, v[8:9] offset:8
    ds_write_b64 v7, v[8:9] offset:16
    ds_write_b64 v7, v[8:9] offset:24
    ds_write_b32 v7, v9 offset:32
    """)
    for s, nm in ((WS, 'ws'), (DS, 'w_down'), (WGS, 'w_gate'), (WUS, 'w_up')):
        k(f"s_mov_b32 s{s+2}, {SZ[nm]}\ns_mov_b32 s{s+3}, 0x20000")
    k(f"s_load_dword s{TAG}, s[{WS}:{WS+1}], {WS_G}")
    def router_math():
        k(f"v_mov_b32 v{ONE}, 0x3f803f80\nv_mov_b32 v{AR}, 0\nv_mov_b32 v{AR+1}, 0\nv_mov_b32 v{AZ}, 0\nv_mov_b32 v{AZ+1}, 0")
        stamp(k, cfg, 8)
        vm.wait("rt")
        stamp(k, cfg, 9)
        for q in range(8): k(f"v_and_b32 v{GL+q}, 0xffff, v{GW+q}\nv_and_b32 v{GH+q}, 0xffff0000, v{GW+q}")
        for i in range(8):
            t = T0 + 4*(i & 1)
            for r in range(2):
                k(f"v_dot2_f32_bf16 v{t+2*r}, v{X0+8*r+i}, v{GL+i}, 0\nv_dot2_f32_bf16 v{t+2*r+1}, v{X0+8*r+i}, v{GH+i}, 0")
            for r in range(2): k(f"v_dot2c_f32_bf16 v{AR+r}, v{X0+8*r+i}, v{WR+i}")
            if i:
                for r in range(2): k(f"v_dot2c_f32_bf16 v{AZ+r}, v{T0+4*((i-1)&1)+2*r}, v{ONE}")
            for r in range(2): k(f"v_cvt_pk_bf16_f32 v{t+2*r}, v{t+2*r}, v{t+2*r+1}")
        for r in range(2): k(f"v_dot2c_f32_bf16 v{AZ+r}, v{T0+4+2*r}, v{ONE}")
        wave_sum(k, [AR, AR+1, AZ, AZ+1])
        k(f"""
    v_readlane_b32 s66, v{AR+1}, 63
    v_readlane_b32 s67, v{AZ+1}, 63
    v_sub_u32 v{T0+2}, 63, v1
    v_add_u32 v{T0+3}, s62, v{T0+2}
    v_sub_u32 v{T0+3}, 2047, v{T0+3}
    v_lshl_add_u32 v{T0+2}, s30, 1, v{T0+2}
    v_lshlrev_b32 v{T0+2}, 3, v{T0+2}
    v_add_u32 v{T0+2}, {L_RT}, v{T0+2}
    v_writelane_b32 v{AR}, s66, 62
    v_writelane_b32 v{AZ}, s67, 62
    v_cvt_pk_bf16_f32 v{AR}, v{AR}, v{AZ}
    v_and_b32 v{AZ}, 0xffff0000, v{AR}
    v_lshlrev_b32 v{AR}, 16, v{AR}
    v_ashrrev_i32 v{T0}, 31, v{AR}
    v_or_b32 v{T0}, 0x80000000, v{T0}
    v_xor_b32 v{T0}, v{T0}, v{AR}
    v_and_b32 v{T0}, 0xffff0000, v{T0}
    v_or_b32 v{T0}, v{T0}, v{T0+3}           ; key
        """)
        sigmoid_bf16(k, T0+4, AZ, T0+3)
        k(f"""
    v_sub_f32 v{T0+5}, 1.0, v{T0+4}
    v_cvt_pk_bf16_f32 v{T0+1}, v{T0+4}, v{T0+5}
    s_mov_b32 exec_lo, 0
    s_mov_b32 exec_hi, 0xc0000000
    ds_write_b64 v{T0+2}, v[{T0}:{T0+1}]
    s_mov_b64 exec, -1
    v_lshlrev_b32 v19, 3, v4
    s_and_b32 s62, s62, 0xfff8
    s_lshl_b32 s62, s62, 3
        """)
    LATE = cfg.get('rtlate', 0)
    if not LATE: router_math()
    if not cfg.get("st1early", 0): stage(1)
    stamp(k, cfg, 11)
    vm.wait("st0", "lgkmcnt(0)")
    stamp(k, cfg, 0)
    k("s_barrier")
    KEY = 80
    def key_loads(tag):
        for q in range(4):
            t = f"buffer_load_dwordx4 v[{KEY+4*q}:{KEY+4*q+3}], v18, s[{WS}:{WS+3}], s69 offen offset:{q*1024} sc1"
            vm.issue(tag, t) if tag else k(t)
    NT = " nt" if cfg.get("ntw") else ""
    def wdma(tag, srd, base):
        for j in range(8):
            k(f"s_add_u32 m0, s75, {base + j*1024}\ns_add_u32 s74, s73, {j*8*7168}")
            vm.issue(tag, f"buffer_load_dwordx4 v10, s[{srd}:{srd+3}], s74 offen{NT} lds")
    CS, WD, DK, OS = XS, DS, RS, GS
    KS = cfg.get("kslot", 4)
    PUBS = 0
    WUV = 128
    NST = cfg.get("nst", 4)
    WUS0, WUSTEP = cfg.get("wu0", 3), cfg.get("wustep", 2)
    XA = 36
    for i in range(1):
        if LATE:
            router_loads()
            if cfg.get("bpf", 1):
                k(f"""
                s_load_dwordx4 s[20:23], s[0:1], {KA['b_re']}
                s_and_b32 s33, s24, 1
                s_lshl_b32 s33, s33, 9
                s_lshr_b32 s34, s24, 1
                s_lshl_b32 s34, s34, 7
                s_add_u32 s33, s33, s34
                s_lshl_b32 s34, s25, 2
                s_add_u32 s33, s33, s34
                s_lshl_b32 s34, s31, 1
                s_add_u32 s33, s33, s34
                s_lshl_b32 s33, s33, 11
                s_cmp_eq_u32 s32, 1
                s_waitcnt lgkmcnt(0)
                s_cselect_b32 s20, s22, s20
                s_cselect_b32 s21, s23, s21
                s_mov_b32 s22, {SZ['b_re']}
                s_mov_b32 s23, 0x20000
                """)
                for j in range(4): vm.issue("bpf", f"buffer_load_dwordx4 v[100:103], v18, s[20:23], s33 offen offset:{j*1024}")
            vm.wait("st1"); k("s_barrier")
            stage(2)
            router_math()
            stage(3)
            vm.wait("st2", "lgkmcnt(0)"); k("s_barrier")
            stage(4)
        else:
            stage(2)
            stage(3)
        if i == 0:
            k(f"""
            v_add_u32 v21, {L_RT}, v19
            ds_read_b64 v[{T0}:{T0+1}], v21
            s_load_dwordx4 s[84:87], s[0:1], {KA['c_re']}
            s_mul_hi_u32 s70, s2, {(2**32 + 55) // 56}     ; kq
            s_mul_i32 s71, s70, 56
            s_sub_u32 s71, s2, s71                        ; cg
            s_lshl_b32 s72, s70, 8
            s_lshl_b32 s73, s30, 6
            s_add_u32 s72, s72, s73                       ; k0 = 256 kq + 64 w
            s_mul_i32 s73, s72, 7168
            s_lshl_b32 s74, s71, 7
            s_add_u32 s73, s73, s74
            s_cmp_ge_u32 s2, 224
            s_cselect_b32 s{WGS+2}, 0, s{WGS+2}
            s_cselect_b32 s{WUS+2}, 0, s{WUS+2}
            s_lshl_b32 s75, s30, 13
            s_lshl_b32 s69, s30, 12
            s_add_u32 s69, s69, {WS_RKEY}
            s_mov_b32 s76, 0
            v_mul_u32_u24 v31, 7168, v3
            v_lshl_add_u32 v31, v4, 4, v31
            s_mul_i32 s63, s25, {(65536 + NST - 1) // NST}
            s_lshr_b32 s63, s63, 16
            s_mul_i32 s63, s63, {NST}
            s_sub_u32 s63, s25, s63
            s_mul_i32 s{TAG}, s{TAG}, 1664525
            s_add_u32 s{TAG}, s{TAG}, 1013904223
            v_lshlrev_b32 v97, 4, v4
            v_lshl_add_u32 v97, v3, 11, v97
            s_mul_i32 s35, s26, 28
            s_mul_i32 s34, s30, 7
            s_add_u32 s35, s35, s34
            s_lshl_b32 s35, s35, 14
            s_lshl_b32 s34, s27, 7
            s_add_u32 s35, s35, s34
            """)
        if i == PUBS:
            k(f"""
            s_waitcnt lgkmcnt(0)
            v_mov_b32 v{T0+2}, v{T0+1}
            v_mov_b32 v{T0+1}, s{TAG}
            v_mov_b32 v{T0+3}, s{TAG}
            s_add_u32 s66, s62, {WS_RKEY}
            s_add_u32 s67, s62, {WS_GATE}
            s_cmp_lg_u32 s30, 0
            s_cbranch_scc1 L_nopub
            s_mov_b64 exec, 0xff
            buffer_store_dwordx2 v[{T0}:{T0+1}], v19, s[{WS}:{WS+3}], s66 offen sc1
            buffer_store_dwordx2 v[{T0+2}:{T0+3}], v19, s[{WS}:{WS+3}], s67 offen sc1
            s_mov_b64 exec, -1
            L_nopub:
            s_cmp_eq_u32 s32, 1
            s_cselect_b32 s84, s86, s84
            s_cselect_b32 s85, s87, s85
            s_mov_b32 s20, s84
            s_mov_b32 s21, s85
            s_mov_b32 s22, {SZ['c_re']}
            s_mov_b32 s23, 0x20000
            s_lshl_b32 s33, s2, 13
            s_lshl_b32 s34, s31, 12
            s_add_u32 s33, s33, s34
            s_add_u32 s84, s84, s64
            s_addc_u32 s85, s85, 0
            """)
        if i == 0:
            if LATE:
                stage(5); vm.wait("st3"); k("s_barrier")
            else:
                vm.wait("st1"); k("s_barrier")
            if cfg.get("trickle"):
                pieces = [("wu", j) for j in range(8)] + ([("wd", j) for j in range(7)] if cfg.get("wd_at") == "loop" else [])
                t0, t1 = cfg["trickle"]
                for sl in range(3 if LATE else 1, 13):
                    stage(sl + 3)
                    if t0 <= sl < t1:
                        lo = (sl - t0) * len(pieces) // (t1 - t0); hi = (sl + 1 - t0) * len(pieces) // (t1 - t0)
                        for nm, j in pieces[lo:hi]:
                            if nm == "wu": vm.issue("wt", f"s_add_u32 s74, s73, {j*8*7168}\nbuffer_load_dwordx4 v[{WUV+4*j}:{WUV+4*j+3}], v31, s[{WUS}:{WUS+3}], s74 offen{NT}")
                            else: vm.issue("wt", f"buffer_load_dwordx4 v[{200+4*j}:{203+4*j}], v97, s[{DS}:{DS+3}], s35 offen{NT}\ns_add_u32 s35, s35, 16384")
                    vm.wait(f"st{sl+1}"); k("s_barrier")
                break
            k(f"""
            s_mul_i32 s80, s63, {WUSTEP}
            s_add_u32 s80, s80, {WUS0}
            s_mov_b32 s81, {3 if LATE else 1}
            s_mov_b32 s82, {65536 if LATE else 0}
            L_ld1:
            s_add_u32 m0, s60, s82
            s_add_u32 s83, s60, s82
            """)
            for j in range(4): k(f"buffer_load_dwordx4 v{10+j}, s[{XS}:{XS+3}], s61 offen offset:{j*1024} lds")
            k("s_add_u32 m0, s83, 16384\ns_add_u32 s82, s82, 32768")
            for j in range(4): k(f"buffer_load_dwordx4 v{14+j}, s[{BS}:{BS+3}], s61 offen offset:{j*1024} lds")
            k("s_and_b32 s82, s82, 131071\ns_add_u32 s61, s61, 128\ns_and_b32 s61, s61, 2047")
            if cfg.get("wu_at", "loop") == "loop":
                k("s_cmp_lg_u32 s80, s81\ns_cbranch_scc1 L_nowu")
                for j in range(8):
                    k(f"s_add_u32 s74, s73, {j*8*7168}\nbuffer_load_dwordx4 v[{WUV+4*j}:{WUV+4*j+3}], v31, s[{WUS}:{WUS+3}], s74 offen{NT}")
                if cfg.get("wd_at") == "loop":
                    for j in range(7):
                        k(f"buffer_load_dwordx4 v[{200+4*j}:{203+4*j}], v97, s[{DS}:{DS+3}], s35 offen{NT}")
                        if j < 6: k("s_add_u32 s35, s35, 16384")
                if cfg.get("cpf") == 2:
                    for j in range(4): k(f"buffer_load_dwordx4 v[60:63], v18, s[20:23], s33 offen offset:{j*1024}")
                k("L_nowu:")
            stamp_loop(k, cfg, 12, 81)
            k("s_add_u32 s81, s81, 1\ns_cmp_lt_u32 s81, 13\ns_waitcnt vmcnt(16)\ns_barrier\ns_cbranch_scc1 L_ld1")
            vm.q = ["st14"] * 8 + ["st15"] * 8
    key_loads("keys")
    k("v_mov_b32 v10, v31")
    if cfg.get("cpf") == 1:
        for j in range(4): vm.issue("cpf", f"buffer_load_dwordx4 v[60:63], v18, s[20:23], s33 offen offset:{j*1024}")
    wdma("wg", WGS, L_WG)
    vm.wait("st14"); k("s_barrier")
    vm.wait("wt")
    k("v_add_u32 v33, s75, v18")
    if cfg.get("wu_at", "loop") == "loop":
        for j in range(8): k(f"ds_write_b128 v33, v[{WUV+4*j}:{WUV+4*j+3}] offset:{L_WU + j*1024}")
    vm.wait("st15"); k("s_barrier")
    if cfg.get("wu_at", "loop") == "tail": wdma("wu", WUS, L_WU)
    k(f"""
    s_mov_b32 s{CS}, s84
    s_mov_b32 s{CS+1}, s85
    s_sub_u32 s{CS+2}, {SZ['c_re']}, s64
    s_lshl_b32 s60, s32, 13
    s_lshl_b32 s35, s31, 12
    s_add_u32 s60, s60, s35
    s_add_u32 s60, s60, {L_C}
    """)
    k(ROT[cfg.get("rot2", "xc1")])
    C15 = True
    k(f"s_add_u32 s61, s61, {0 if C15 else 2}\ns_and_b32 s61, s61, 15\ns_lshl_b32 s61, s61, 7")
    def stage2(i):
        k(f"s_add_u32 m0, s60, {(i % 4) * 16384}")
        for j in range(4): vm.issue(f"c{i}", f"buffer_load_dwordx4 v{14+j}, s[{CS}:{CS+3}], s61 offen offset:{j*1024} lds")
        if i < 15: k("s_add_u32 s61, s61, 128\ns_and_b32 s61, s61, 2047")
    if C15: stage2(0); stage2(1)
    vm.wait("keys")
    k(f"s_mov_b32 s68, {SPIN}\nL_keypoll:")
    k(f"v_xor_b32 v20, s{TAG}, v{KEY+1}")
    for q in range(1, 8): k(f"v_xor_b32 v21, s{TAG}, v{KEY+2*q+1}\nv_or_b32 v20, v20, v21")
    k("v_cmp_ne_u32 vcc, 0, v20\ns_cbranch_vccz L_keyok\ns_sub_u32 s68, s68, 1\ns_cbranch_scc1 L_keyok")
    key_loads(None)
    k("s_waitcnt vmcnt(0)\ns_branch L_keypoll\nL_keyok:")
    k(f"""
    s_or_b32 s66, s2, s30
    s_cmp_lg_u32 s66, 0
    s_cbranch_scc1 L_nogen
    v_mov_b32 v20, s{TAG}
    s_mov_b64 exec, 1
    buffer_store_dword v20, v9, s[{WS}:{WS+3}], 0 offen offset:{WS_G} sc1
    s_mov_b64 exec, -1
    L_nogen:
    s_mov_b64 s[78:79], 1
    L_top:
    """)
    for i in range(8): k(f"v_subrev_u32 v{22+i}, s76, v{KEY+2*i}")
    k("v_max3_u32 v22, v22, v23, v24\nv_max3_u32 v25, v25, v26, v27\nv_max3_u32 v22, v22, v28, v29\nv_max_u32 v22, v22, v25")
    for m, rm in (("row_shr:1", 0xf), ("row_shr:2", 0xf), ("row_shr:4", 0xf), ("row_shr:8", 0xf), ("row_bcast:15", 0xa), ("row_bcast:31", 0xc)):
        k(f"v_max_u32_dpp v22, v22, v22 {m} row_mask:{rm:#x} bank_mask:0xf")
    k(f"""
    v_readlane_b32 s77, v22, 63
    s_mov_b64 exec, s[78:79]
    s_add_u32 s76, s76, s77
    v_mov_b32 v30, s76
    s_mov_b64 exec, -1
    s_lshl_b32 s78, s78, 1
    s_cmp_lg_u32 s78, 256
    s_cbranch_scc1 L_top
    """)
    if cfg.get("wu_at", "loop") == "pub":
        k(f"""
        s_mov_b32 s68, {SPIN}
        L_pubpoll:
        ds_read_b32 v35, v7 offset:32
        s_waitcnt lgkmcnt(0)
        v_readfirstlane_b32 s77, v35
        s_sub_u32 s68, s68, 1
        s_cbranch_scc1 L_pubok
        s_cmp_lg_u32 s77, 4
        s_cbranch_scc1 L_pubpoll
        L_pubok:
        """)
        wdma("wu", WUS, L_WU)
    k(f"""
    s_lshl_b32 s76, s30, 5
    v_lshl_add_u32 v32, v1, 2, s76
    v_add_u32 v32, {L_CAND}, v32
    v_mov_b32 v35, 1
    s_mov_b64 exec, 0xff
    ds_write_b32 v32, v30
    s_mov_b64 exec, 1
    ds_add_u32 v7, v35 offset:20
    s_mov_b64 exec, -1
    v_and_b32 v32, 31, v1
    v_lshlrev_b32 v32, 2, v32
    v_add_u32 v32, {L_CAND}, v32
    v_lshrrev_b32 v33, 5, v1
    v_lshlrev_b32 v33, 6, v33
    v_add_u32 v33, {L_CAND}, v33
    s_add_u32 s76, s76, {L_SORT}
    s_mov_b32 s68, {SPIN}
    L_candpoll:
    ds_read_b32 v35, v7 offset:20
    ds_read_b32 v34, v32
    """)
    for q in range(4): k(f"ds_read_b128 v[{36+4*q}:{39+4*q}], v33 offset:{16*q}")
    k("""
    s_waitcnt lgkmcnt(0)
    v_readfirstlane_b32 s77, v35
    s_sub_u32 s68, s68, 1
    s_cbranch_scc1 L_candok
    s_cmp_lg_u32 s77, 4
    s_cbranch_scc1 L_candpoll
    L_candok:
    v_mov_b32 v35, 0
    """)
    for q in range(16):
        sp = 78 + 2*(q % 3)
        k(f"v_cmp_gt_u32 s[{sp}:{sp+1}], v{36+q}, v34")
        if q >= 2: k(f"v_addc_co_u32 v35, vcc, 0, v35, s[{78+2*((q-2)%3)}:{79+2*((q-2)%3)}]")
    for q in (14, 15): k(f"v_addc_co_u32 v35, vcc, 0, v35, s[{78+2*(q%3)}:{79+2*(q%3)}]")
    k(f"""
    v_mov_b32 v36, v35
    v_lshrrev_b32 v6, 4, v1                  ; q / rg
    v_lshlrev_b32 v32, 4, v6
    v_permlane32_swap_b32 v35, v36
    v_add_u32 v35, v35, v36
    v_cmp_gt_u32 vcc, 8, v35
    v_lshl_add_u32 v35, v35, 2, s76
    v_lshl_add_u32 v36, v4, 2, s76
    s_and_saveexec_b64 s[66:67], vcc
    ds_write_b32 v35, v34
    s_mov_b64 exec, -1
    ds_read_b32 v30, v36
    s_lshl_b32 s76, s72, 1
    s_waitcnt lgkmcnt(0)
    v_and_b32 v31, 0x7ff, v30
    v_sub_u32 v31, 2047, v31
    v_lshl_add_u32 v32, v31, 11, v32
    """)
    for s_ in range(2):
        vm.issue("xs", f"buffer_load_dwordx4 v[{XA+4*s_}:{XA+4*s_+3}], v32, s[{XF}:{XF+3}], s76 offen offset:{s_*64}")
    stamp(k, cfg, 1)
    k("""
    v_ashrrev_i32 v33, 31, v30
    v_not_b32 v33, v33
    v_or_b32 v33, 0x80000000, v33
    v_xor_b32 v33, v33, v30
    v_and_b32 v33, 0xffff0000, v33
    """)
    sigmoid_bf16(k, 30, 33, 35)
    k(f"""
    v_bfe_u32 v34, v1, 2, 2
    v_lshl_add_u32 v33, v6, 3, v34
    v_lshlrev_b32 v33, 7, v33
    v_and_b32 v34, 3, v1
    v_lshl_add_u32 v5, v34, 3, v33
    v_add_u32 v33, s75, v5
    s_cmp_ge_u32 s2, 224
    s_cbranch_scc1 L_gudone
    """)
    D = 96; FB = 160
    q0 = list(vm.q)
    for mat, tag, base in ((1, "wu", L_WU), (0, "wg", L_WG)) if cfg.get("wu_at", "loop") == "loop" else ((0, "wg", L_WG), (1, "wu", L_WU)):
        vm.wait(tag)
        for s in range(2):
            for cb in range(4):
                for hh in range(2):
                    b = FB + (s*4+cb)*4 + 2*hh
                    k(f"ds_read_b64_tr_b16 v[{b}:{b+1}], v33 offset:{base + (32*s+4*hh)*128 + cb*32}")
        vm.wait("xs")
        if mat == 0: stamp(k, cfg, 12)
        for s in range(2):
            k(f"s_waitcnt lgkmcnt({8*(1-s)})")
            for cb in range(4):
                b = FB + (s*4+cb)*4; d = D + (mat*4+cb)*4
                k(f"v_mfma_f32_16x16x32_bf16 v[{d}:{d+3}], v[{XA+4*s}:{XA+4*s+3}], v[{b}:{b+3}], {'0' if s == 0 else f'v[{d}:{d+3}]'}")
    k(f"v_lshl_add_u32 v34, v1, 4, s75\ns_mov_b64 exec, 0xffffffff")
    for b in range(8): k(f"ds_write_b128 v34, v[{D+4*b}:{D+4*b+3}] offset:{L_WG + b*512}")
    k(f"""
    s_mov_b64 exec, 1
    v_mov_b32 v35, 1
    ds_add_rtn_u32 v35, v7, v35 offset:16
    s_mov_b64 exec, -1
    s_waitcnt lgkmcnt(0)
    v_readfirstlane_b32 s76, v35
    s_cmp_lg_u32 s76, 3
    s_cbranch_scc1 L_gudone
    """)
    for w in range(4):
        for i in range(4): k(f"ds_read_b128 v[{D+16*w+4*i}:{D+16*w+4*i+3}], v18 offset:{L_WG + w*8192 + i*1024}")
    k(f"""
    v_lshrrev_b32 v35, 5, v1
    v_lshlrev_b32 v35, 13, v35
    v_and_b32 v36, 31, v1
    v_lshl_add_u32 v35, v36, 4, v35
    s_lshl_b32 s76, s71, 15
    s_lshl_b32 s77, s70, 11
    s_add_u32 s76, s76, s77
    s_add_u32 s76, s76, {WS_GU}
    s_add_u32 s77, s76, 16384
    v_mov_b32 v42, s{TAG}
    v_mov_b32 v43, s{TAG}
    v_mov_b32 v46, s{TAG}
    v_mov_b32 v47, s{TAG}
    s_waitcnt lgkmcnt(0)
    """)
    for i in range(4):
        for ab in range(2):
            a = D + 4*i + 2*ab; o = 40 + 4*ab
            k(pk("add", a, a, a+16)); k(pk("add", a+32, a+32, a+48)); k(pk("add", o, a, a+32))
            k(f"buffer_store_dwordx4 v[{o}:{o+3}], v35, s[{WS}:{WS+3}], s{76 + (i&1)} offen offset:{ab*1024 + (i>>1)*512} sc1")
    k("L_gudone:")
    vm.q = q0
    stamp(k, cfg, 2)
    XR, GR, DR, E1 = 84, 100, 116, 120
    AF, BF, DD = 20, 48, 76
    T = 152
    IDX, RSG = 178, 179
    k(f"""
    v_mov_b32 v{IDX}, v31
    v_mov_b32 v{RSG}, v30
    v_bfrev_b32 v2, 1
    v_mov_b32 v8, v7
    v_and_b32 v7, 15, v1         ; cl
    v_lshlrev_b32 v11, 4, v4
    v_lshl_add_u32 v11, v3, 11, v11
    s_mul_i32 s50, s26, 28
    s_mul_i32 s51, s30, 7
    s_add_u32 s50, s50, s51
    s_lshl_b32 s50, s50, 14
    s_lshl_b32 s55, s27, 7
    s_add_u32 s50, s50, s55
    s_lshl_b32 s51, s51, 10
    s_lshl_b32 s48, s26, 7
    s_lshl_b32 s49, s30, 5
    s_add_u32 s49, s48, s49      ; R0
    v_lshlrev_b32 v12, 3, v7
    v_lshl_add_u32 v19, v6, 11, v12
    v_lshlrev_b32 v9, 3, v1
    """)
    AUX = cfg.get('aux2', 'wd,gu,ep,act,e1,down,y').split(',')
    YP = 20
    TX, TG, TE, TR_, GG = 160, 162, 164, 168, 156
    def wd_loads(track):
        for j in range(7):
            k(f"s_add_u32 m0, s51, {L_WD + j*1024}")
            if j: k("s_add_u32 s50, s50, 16384")
            t = f"buffer_load_dwordx4 v11, s[{WD}:{WD+3}], s50 offen{NT} lds"
            vm.issue("wd", t) if track else k(t)
    def ep_loads():
        k(f"s_lshl_b32 s33, s49, 11\ns_add_u32 s33, s33, s55\ns_lshl_b32 s74, s49, 3\ns_add_u32 s74, s74, {WS_GATE}")
        vm.issue("g", f"buffer_load_dwordx2 v[{GG}:{GG+1}], v9, s[{WS}:{WS+3}], s74 offen sc1")
        vm.issue("ep", f"buffer_load_dwordx2 v[{DR}:{DR+1}], v12, s[{DK}:{DK+3}], s55 offen")
        for g_ in range(8):
            vm.issue("ep", f"buffer_load_dwordx2 v[{XR+2*g_}:{XR+2*g_+1}], v19, s[{XF}:{XF+3}], s33 offen")
            if g_ < 7: k("s_add_u32 s33, s33, 8192")
    WIN = cfg.get("win", "ep,wd").split(",")
    if WIN != [""]:
        k(f"""
        s_mov_b32 s68, {SPIN}
        s_cmp_ge_u32 s2, 224
        s_cselect_b32 s67, 0, 4
        L_winpoll:
        ds_read_b32 v20, v8 offset:16
        ds_read_b32 v21, v8 offset:28
        s_waitcnt lgkmcnt(0)
        v_readfirstlane_b32 s33, v20
        v_readfirstlane_b32 s34, v21
        s_sub_u32 s68, s68, 1
        s_cbranch_scc1 L_winok
        s_cmp_lg_u32 s33, s67
        s_cbranch_scc1 L_winpoll
        s_cmp_eq_u32 s34, 0
        s_cbranch_scc1 L_winpoll
        L_winok:
        """)
        stamp(k, cfg, 13)
        if "ep" in WIN: ep_loads()
        if "wd" in WIN and cfg.get("wd_at") != "loop": wd_loads(True)
        if cfg.get("wd_at") == "loop":
            k(f"v_add_u32 v20, s51, v18")
            for j in range(7): k(f"ds_write_b128 v20, v[{200+4*j}:{203+4*j}] offset:{L_WD + j*1024}")
            k("s_waitcnt lgkmcnt(0)")
    vm.wait("c0")
    stamp(k, cfg, 3)
    k("s_barrier")
    def e1_group(x, gp, e, b=None):
        for h in range(2):
            k(f"v_lshlrev_b32 v{T}, 16, v{x+h}\nv_and_b32 v{T+1}, 0xffff0000, v{x+h}")
            k(pk("mul", T+2, T, DR+2*h))
            k(pk("mul", T, gp, T if b is None else b+2*h, sa=1))
            k(f"""
            v_cvt_pk_bf16_f32 v{T+2}, v{T+2}, v{T+3}
            v_cvt_pk_bf16_f32 v{T}, v{T}, v{T+1}
            v_and_b32 v{T+3}, 0xffff0000, v{T+2}
            v_lshlrev_b32 v{T+2}, 16, v{T+2}
            v_and_b32 v{T+1}, 0xffff0000, v{T}
            v_lshlrev_b32 v{T}, 16, v{T}
            """)
            k(pk("fma", e+2*h, gp, T+2, T, sa=0))
    GQ = 20
    def gu_loads():
        for kq in range(4):
            for ab in range(2):
                r = GQ + (kq*2+ab)*4
                k(f"buffer_load_dwordx4 v[{r}:{r+3}], v18, s[{WS}:{WS+3}], s{70 + (kq>>1)} offen offset:{(kq&1)*2048 + ab*1024} sc1")
    AG = 52
    def act_loads(tag):
        for r in range(2):
            t = f"buffer_load_dwordx4 v[{AG+4*r}:{AG+4*r+3}], v{(18, 13)[r]}, s[{WS}:{WS+3}], s72 offen offset:{r*1024} sc1"
            vm.issue(tag, t) if tag else k(t)
    mark = 0
    NWD = cfg.get("nwd", 4)
    if 'wd' in AUX and 'wd' not in WIN:
        k(f"""
        s_and_b32 s63, s25, {NWD - 1}
        s_getpc_b64 s[80:81]
        L_wdpc:
        s_add_u32 s80, s80, L_wdsub - L_wdpc
        s_addc_u32 s81, s81, 0
        """)
    for i in range(13):
        if i == 0: stage2(2)
        stage2(i + 3)
        lg = ""
        WD0 = cfg.get("wd0", 1)
        if WD0 <= i < WD0 + NWD and 'wd' in AUX and 'wd' not in WIN:
            L = k.label("wd")
            k(f"s_cmp_lg_u32 s63, {i - WD0}\ns_cbranch_scc1 {L}\ns_swappc_b64 s[82:83], s[80:81]\n{L}:")
        if i == 1 and 'gu' in AUX:
            k(f"""
            s_lshl_b32 s70, s2, 13
            s_add_u32 s70, s70, {WS_GU}
            s_add_u32 s71, s70, 4096
            s_cmp_lt_u32 s2, 224
            s_cselect_b32 s73, s30, 1
            s_cmp_lg_u32 s73, 0
            s_cbranch_scc1 L_nogu1
            """)
            gu_loads()
            k("L_nogu1:")
            mark = vm.total
        if i == 2 and 'ep' in AUX and 'ep' not in WIN: ep_loads()
        if i == 3 and 'gu' in AUX:
            k(f"""
            s_cmp_lg_u32 s73, 0
            s_cbranch_scc1 L_nogu2
            v_mov_b32 v{T}, s{TAG}
            v_mov_b32 v{T+1}, s{TAG}
            s_mov_b32 s68, {SPIN}
            s_waitcnt vmcnt({vm.total - mark})
            L_gupoll:
            """)
            for q in range(8):
                k(f"v_cmp_ne_u64 {'vcc' if q == 0 else 's[66:67]'}, v[{GQ+4*q+2}:{GQ+4*q+3}], v[{T}:{T+1}]")
                if q: k("s_or_b64 vcc, vcc, s[66:67]")
            k("s_cbranch_vccz L_guok\ns_sub_u32 s68, s68, 1\ns_cbranch_scc1 L_guok")
            gu_loads()
            k("s_waitcnt vmcnt(0)\ns_branch L_gupoll\nL_guok:")
            for ab in range(2):
                a = GQ + 4*ab
                k(pk("add", a, a, a+8)); k(pk("add", a+16, a+16, a+24)); k(pk("add", a, a, a+16))
            for ab in range(2):
                g, u = GQ + 4*ab, GQ + 4*ab + 2
                k(f"v_cvt_pk_bf16_f32 v{g}, v{g}, v{g+1}\nv_mov_b32 v{u}, v{g}\nv_permlane32_swap_b32 v{g}, v{u}")
                k(f"""
                v_and_b32 v{g+1}, 0xffff0000, v{g}
                v_lshlrev_b32 v{g}, 16, v{g}
                v_and_b32 v{u+1}, 0xffff0000, v{u}
                v_lshlrev_b32 v{u}, 16, v{u}
                v_mul_f32 v{T+2}, {LOG2E ^ 0x80000000:#x}, v{g}
                v_mul_f32 v{T+3}, {LOG2E ^ 0x80000000:#x}, v{g+1}
                v_exp_f32 v{T+2}, v{T+2}
                v_exp_f32 v{T+3}, v{T+3}
                v_add_f32 v{T+2}, 1.0, v{T+2}
                v_add_f32 v{T+3}, 1.0, v{T+3}
                v_rcp_f32 v{T+2}, v{T+2}
                v_rcp_f32 v{T+3}, v{T+3}
                """)
                k(pk("mul", g, g, T+2))
                k(f"v_cvt_pk_bf16_f32 v{g}, v{g}, v{g+1}\nv_and_b32 v{g+1}, 0xffff0000, v{g}\nv_lshlrev_b32 v{g}, 16, v{g}")
                k(pk("mul", g, g, u))
                k(f"v_cvt_pk_bf16_f32 v{T-2+ab}, v{g}, v{g+1}")
            k(f"""
            s_lshl_b32 s33, s2, 9
            s_add_u32 s33, s33, {WS_ACT}
            s_mov_b64 exec, 0xffffffff
            buffer_store_dwordx4 v[{T-2}:{T+1}], v18, s[{WS}:{WS+3}], s33 offen sc1
            s_mov_b64 exec, -1
            L_nogu2:
            """)
        if i == 4 and 'ep' in AUX:
            vm.wait("ep")
            k(f"""
            s_mov_b32 s68, {SPIN}
            L_gpoll:
            v_cmp_ne_u32 vcc, s{TAG}, v{GG+1}
            s_and_b32 vcc_hi, vcc_hi, 0
            s_cbranch_vccz L_gok
            s_sub_u32 s68, s68, 1
            s_cbranch_scc1 L_gok
            buffer_load_dwordx2 v[{GG}:{GG+1}], v9, s[{WS}:{WS+3}], s74 offen sc1
            s_waitcnt vmcnt(0)
            s_branch L_gpoll
            L_gok:
            v_lshlrev_b32 v8, 2, v6
            """)
            for g_ in range(8): k(f"ds_bpermute_b32 v{GR+2*g_}, v8, v{GG} offset:{16*g_}")
            k(f"""
            v_and_b32 v{DR+3}, 0xffff0000, v{DR+1}
            v_lshlrev_b32 v{DR+2}, 16, v{DR+1}
            v_and_b32 v{DR+1}, 0xffff0000, v{DR}
            v_lshlrev_b32 v{DR}, 16, v{DR}
            s_mul_i32 s72, s26, 7168
            s_mul_i32 s33, s30, 1792
            s_add_u32 s72, s72, s33
            s_add_u32 s72, s72, {WS_ACT}
            v_cmp_gt_u32 vcc, 48, v1
            v_cndmask_b32 v13, v2, v18, vcc
            s_waitcnt lgkmcnt(0)
            """)
            for g_ in range(8): k(f"v_and_b32 v{GR+2*g_+1}, 0xffff0000, v{GR+2*g_}\nv_lshlrev_b32 v{GR+2*g_}, 16, v{GR+2*g_}")
        if i == 6 and 'act' in AUX: act_loads("act")
        for g_ in {5: (0, 1), 6: (2,), 7: (3, 4), 8: (5,), 10: (6,), 12: (7,)}.get(i, ()):
            if 'e1' in AUX: e1_group(XR + 2*g_, GR + 2*g_, E1 + 4*g_)
        if i == 8 and 'act' in AUX:
            vm.wait("act")
            k(f"""
            v_mov_b32 v{T}, s{TAG}
            v_mov_b32 v{T+1}, s{TAG}
            s_mov_b32 s68, {SPIN}
            L_actpoll:
            v_cmp_ne_u64 vcc, v[{AG+2}:{AG+3}], v[{T}:{T+1}]
            v_cmp_ne_u64 s[66:67], v[{AG+6}:{AG+7}], v[{T}:{T+1}]
            s_and_b32 s67, s67, 0xffff
            s_or_b64 vcc, vcc, s[66:67]
            s_cbranch_vccz L_actok
            s_sub_u32 s68, s68, 1
            s_cbranch_scc1 L_actok
            """)
            act_loads(None)
            k(f"""
            s_waitcnt vmcnt(0)
            s_branch L_actpoll
            L_actok:
            s_mul_i32 s33, s30, 112
            v_add_u32 v8, s33, v1
            v_bfe_u32 v{T}, v8, 4, 1
            v_mul_u32_u24 v{T}, {4*ACT_ROW}, v{T}
            v_and_b32 v{T+1}, 15, v8
            v_lshl_add_u32 v{T}, v{T+1}, 1, v{T}
            v_and_b32 v8, 0x1e0, v8
            v_add_u32 v8, v8, v{T}
            v_add_u32 v8, {L_ACT}, v8
            """)
            for r in range(2):
                if r: k("s_mov_b32 exec_hi, 0xffff")
                for h in range(2): k(f"ds_write_b16 v8, v{AG+4*r+h} offset:{r*64 + 2*h*ACT_ROW}\nds_write_b16_d16_hi v8, v{AG+4*r+h} offset:{r*64 + (2*h+1)*ACT_ROW}")
            k("s_mov_b32 exec_hi, -1")
            lg = "lgkmcnt(0)"
        if i == 9 and 'down' in AUX:
            k(f"""
            v_mul_u32_u24 v8, {ACT_ROW}, v4
            v_lshl_add_u32 v8, v6, 4, v8
            v_add_u32 v8, {L_ACT}, v8
            s_lshl_b32 s33, s30, 5
            v_add_u32 v5, s33, v5
            """)
            for s in range(7):
                k(f"ds_read_b128 v[{BF+4*s}:{BF+4*s+3}], v8 offset:{64*s}")
                for hh in range(2): k(f"ds_read_b64_tr_b16 v[{AF+4*s+2*hh}:{AF+4*s+2*hh+1}], v5 offset:{L_WD + (32*s+4*hh)*128}")
            for s in range(7):
                k(f"s_waitcnt lgkmcnt({min(15, 3*(6-s))})")
                k(f"v_mfma_f32_16x16x32_bf16 v[{DD}:{DD+3}], v[{BF+4*s}:{BF+4*s+3}], v[{AF+4*s}:{AF+4*s+3}], {'0' if s == 0 else f'v[{DD}:{DD+3}]'}")
            k(f"""
            v_and_b32 v8, 1, v6
            v_lshlrev_b32 v8, 1, v8
            v_lshrrev_b32 v20, 1, v6
            v_add_u32 v8, v8, v20
            v_lshlrev_b32 v8, 18, v8
            v_lshl_add_u32 v8, v7, 3, v8
            s_lshl_b32 s33, s27, 13
            s_lshl_b32 s34, s26, 9
            s_add_u32 s33, s33, s34
            s_lshl_b32 s34, s30, 7
            s_add_u32 s33, s33, s34
            s_add_u32 s33, s33, {WS_YP}
            s_add_u32 s34, s33, 131072
            v_mov_b32 v21, s{TAG}
            v_mov_b32 v23, s{TAG}
            v_mov_b32 v20, v{DD}
            v_mov_b32 v22, v{DD+1}
            s_mov_b32 exec_lo, 0
            v_mov_b32 v20, v{DD+2}
            v_mov_b32 v22, v{DD+3}
            s_mov_b32 exec_lo, -1
            """)
            vm.issue("yp", f"buffer_store_dwordx2 v[20:21], v8, s[{WS}:{WS+3}], s33 offen sc1")
            vm.issue("yp", f"buffer_store_dwordx2 v[22:23], v8, s[{WS}:{WS+3}], s34 offen sc1")
        if i == 10:
            k(f"""
            v_subrev_u32 v8, s49, v{IDX}
            v_lshlrev_b32 v{T}, v8, 1
            v_cmp_gt_u32 vcc, 32, v8
            v_cndmask_b32 v{T}, 0, v{T}, vcc
            v_or_b32_dpp v{T}, v{T}, v{T} row_shr:1 row_mask:0xf bank_mask:0xf
            v_or_b32_dpp v{T}, v{T}, v{T} row_shr:2 row_mask:0xf bank_mask:0xf
            v_or_b32_dpp v{T}, v{T}, v{T} row_shr:4 row_mask:0xf bank_mask:0xf
            v_lshlrev_b32 v8, v6, 1
            v_readlane_b32 s33, v{T}, 7
            """)
            for g_ in range(8): k(f"s_lshr_b32 s34, s33, {4*g_}\nv_and_b32 v{170+g_}, s34, v8")
        if i == 11:
            k(f"""
            s_add_u32 s33, s30, 4
            v_readlane_b32 s66, v{IDX}, s30
            v_readlane_b32 s67, v{RSG}, s30
            v_readlane_b32 s68, v{IDX}, s33
            v_readlane_b32 s69, v{RSG}, s33
            v_mov_b32 v10, s66
            v_mov_b32 v{TR_}, s67
            s_mov_b32 exec_lo, 0
            v_mov_b32 v10, s68
            v_mov_b32 v{TR_}, s69
            s_mov_b32 exec_lo, -1
            v_subrev_u32 v3, s48, v10
            v_cmp_gt_u32 vcc, 0x80, v3
            v_lshrrev_b32 v11, 5, v1
            v_lshlrev_b32 v11, 19, v11
            v_and_b32 v13, 1, v6
            v_lshl_add_u32 v11, v13, 12, v11
            v_lshl_add_u32 v11, v7, 5, v11
            s_mov_b64 s[52:53], vcc
            v_cndmask_b32 v11, v2, v11, vcc
            v_lshl_add_u32 v13, v10, 11, v12
            v_cndmask_b32 v13, v2, v13, vcc          ; x address
            v_lshlrev_b32 v12, 3, v10
            v_cndmask_b32 v12, v2, v12, vcc
            v_mov_b32 v9, s{TAG}
            v_cndmask_b32 v9, 0, v9, vcc
            s_lshl_b32 s54, s30, 17
            s_lshl_b32 s66, s27, 13
            s_add_u32 s54, s54, s66
            s_add_u32 s54, s54, {WS_YP}
            s_mov_b32 s66, {WS_GATE}
            """)
        if cfg.get("lstamps2"): stamp(k, cfg, 12 + i)
        vm.wait(f"c{i+1}", lg)
        k("s_barrier")
    def yloads(tag):
        for q in range(8):
            for h in range(2):
                r = YP + 8*q + 4*h
                t = f"buffer_load_dwordx4 v[{r}:{r+3}], v11, s[{WS}:{WS+3}], s54 offen offset:{q*512+h*16} sc1"
                vm.issue(tag, t) if tag else k(t)
    if 'y' not in AUX: k("s_mov_b64 s[52:53], 0")
    k("s_cmp_eq_u64 s[52:53], 0\ns_cbranch_scc1 L_noy")
    yloads(None)
    k(f"buffer_load_dwordx2 v[{TX}:{TX+1}], v13, s[{XF}:{XF+3}], s55 offen")
    k(f"buffer_load_dword v{TG}, v12, s[{WS}:{WS+3}], s66 offen sc1")
    k(f"""
    s_waitcnt vmcnt({vm.count_after('c14') + 18})
    s_barrier
    s_waitcnt vmcnt(18)
    s_barrier
    s_branch L_yjoin
    L_noy:
    """)
    vm.wait("c14"); k("s_barrier")
    vm.wait("c15"); k("s_barrier")
    k("L_yjoin:")
    k(f"""
    v_lshlrev_b32 v14, 4, v7
    v_lshl_add_u32 v15, v10, 12, v14
    v_lshl_add_u32 v14, v6, 12, v14
    v_xor_b32 v16, v7, v6
    v_lshlrev_b32 v16, 4, v16
    v_lshl_add_u32 v16, v6, 8, v16
    s_lshl_b32 s33, s30, 13
    s_add_u32 s33, s33, {L_STG}
    v_add_u32 v16, s33, v16
    v_xor_b32 v17, 64, v16
    v_and_b32 v8, 7, v3
    v_xor_b32 v8, v8, v7
    v_lshlrev_b32 v8, 4, v8
    v_and_b32 v5, 0x7f, v3
    v_lshl_add_u32 v8, v5, 8, v8
    s_lshl_b32 s67, s27, 8
    s_lshl_b32 s69, s49, 12
    s_add_u32 s69, s69, s67
    """)
    stamp(k, cfg, 4)
    k(f"s_cmp_eq_u64 s[52:53], 0\ns_cbranch_scc1 L_notok\ns_mov_b32 s68, {SPIN}\nL_ypoll:\ns_waitcnt vmcnt(0)")
    k(f"v_xor_b32 v{T}, v9, v{YP+1}")
    for q in range(1, 32): k(f"v_xor_b32 v{T+1}, v9, v{YP+2*q+1}\nv_or_b32 v{T}, v{T}, v{T+1}")
    k(f"v_cmp_ne_u32 vcc, 0, v{T}\ns_cbranch_vccz L_yok\ns_sub_u32 s68, s68, 1\ns_cbranch_scc1 L_yok")
    yloads(None)
    k("s_branch L_ypoll\nL_yok:")
    for q in range(1, 8):
        for x in range(4): k(f"v_add_f32 v{YP+2*x}, v{YP+2*x}, v{YP+8*q+2*x}")
    for x in range(4): k(f"v_mov_b32 v{YP+2*x+1}, v{YP+2*x}")
    for x in range(4): k(f"v_permlane16_swap_b32 v{YP+2*x}, v{YP+2*x+1}")
    for x in range(4): k(f"v_add_f32 v{YP+8+x}, v{YP+2*x}, v{YP+2*x+1}")
    Y = YP + 8
    k(f"v_and_b32 v{TG+1}, 0xffff0000, v{TG}\nv_lshlrev_b32 v{TG}, 16, v{TG}")
    for h in range(2):
        y = Y + 2*h
        k(f"""
        v_cvt_pk_bf16_f32 v{y}, v{y}, v{y+1}
        v_and_b32 v{y+1}, 0xffff0000, v{y}
        v_lshlrev_b32 v{y}, 16, v{y}
        v_mul_f32 v{y}, v{y}, v{TR_}
        v_mul_f32 v{y+1}, v{y+1}, v{TR_}
        v_cvt_pk_bf16_f32 v{y}, v{y}, v{y+1}
        v_and_b32 v{y+1}, 0xffff0000, v{y}
        v_lshlrev_b32 v{y}, 16, v{y}
        v_lshlrev_b32 v{T}, 16, v{TX+h}
        v_and_b32 v{T+1}, 0xffff0000, v{TX+h}
        """)
        k(pk("add", y, y, T))
        k(f"v_cvt_pk_bf16_f32 v{y}, v{y}, v{y+1}\nv_and_b32 v{y+1}, 0xffff0000, v{y}\nv_lshlrev_b32 v{y}, 16, v{y}")
    e1_group(TX, TG, TE, b=Y)
    k("L_notok:")
    stamp(k, cfg, 5)
    k("s_barrier")
    A = 20
    for g_ in range(8): k(f"ds_read_b128 v[{A+4*g_}:{A+4*g_+3}], v{16 + (g_ & 1)} offset:{g_*1024}")
    k(f"ds_read_b128 v[{A+32}:{A+35}], v8 offset:{L_STG}")
    ONT = " " + cfg.get("ofl", "nt")
    for g_ in range(8):
        k(f"v_cmp_eq_u32 vcc, 0, v{170+g_}\ns_waitcnt lgkmcnt({8-g_})")
        for h in range(2): k(pk("fma", A+4*g_+2*h, GR+2*g_, A+4*g_+2*h, E1+4*g_+2*h, sa=0))
        k(f"s_mov_b64 exec, vcc\nbuffer_store_dwordx4 v[{A+4*g_}:{A+4*g_+3}], v14, s[{OS}:{OS+3}], s69 offen{ONT}\ns_mov_b64 exec, -1\ns_add_u32 s69, s69, 16384")
    k(f"s_waitcnt lgkmcnt(0)")
    for h in range(2): k(pk("fma", A+32+2*h, TG, A+32+2*h, TE+2*h, sa=0))
    k(f"""
    s_and_b32 exec_lo, s52, 0xffff
    s_and_b32 exec_hi, s53, 0xffff
    s_cbranch_execz L_aend
    buffer_store_dwordx4 v[{A+32}:{A+35}], v15, s[{OS}:{OS+3}], s67 offen{ONT}
    L_aend:
    """)
    stamp(k, cfg, 6)
    if cfg.get("stamps") or cfg.get("dbgt"): k("s_waitcnt vmcnt(0)"); stamp(k, cfg, 7)
    stamp_flush(k, cfg, 0)
    k("s_endpgm")
    if 'wd' in AUX and 'wd' not in WIN:
        k("L_wdsub:")
        wd_loads(False)
        k("s_setpc_b64 s[82:83]")

def compute(k, cfg):
    LRS, LIS, DTS, WS, ES, HS, XS, RS, GS, CS = 8, 12, 16, 20, 36, 40, 64, 68, 72, 76
    LR, LI, L8R, L8I, L16R, L16I, SR_, SI_, T1, T2 = 10, 12, 14, 16, 18, 20, 22, 24, 26, 28
    FR, ACC, GR = 32, 96, 160
    TB = lambda tp, cb: 200 + (tp*2+cb)*2
    WRs = lambda cb: 232 + 2*cb
    WIs = lambda cb: 236 + 2*cb
    VR_, VI_, L5R, L5I = 240, 242, 244, 246
    EXP = [248, 250, 252, 254]
    RAWR, RAWI = 248, 250
    k(f"""
    s_load_dwordx2 s[{LRS}:{LRS+1}], s[0:1], {KA['lam_re']}
    s_load_dwordx2 s[{LIS}:{LIS+1}], s[0:1], {KA['lam_im']}
    s_load_dwordx2 s[{DTS}:{DTS+1}], s[0:1], {KA['log_dt']}
    s_load_dwordx2 s[{WS}:{WS+1}], s[0:1], {KA['ws']}
    s_lshr_b32 s30, s29, 1       ; wm
    s_and_b32 s31, s29, 1        ; wn
    v_and_b32 v6, 15, v1         ; j
    v_lshrrev_b32 v7, 4, v1      ; q
    s_lshl_b32 s32, s27, 6
    s_lshl_b32 s33, s31, 5
    s_add_u32 s32, s32, s33
    s_lshl_b32 s32, s32, 1
    v_lshlrev_b32 v8, 1, v6
    v_lshlrev_b32 v196, 4, v1
    """)
    for s in (LRS, LIS, DTS): k(f"s_mov_b32 s{s+2}, 2048\ns_mov_b32 s{s+3}, 0x20000")
    k("s_waitcnt lgkmcnt(0)")
    k(f"s_load_dword s44, s[{WS}:{WS+1}], {WS_G}")
    for cb in range(2):
        k(f"buffer_load_ushort v{T1+cb}, v8, s[{DTS}:{DTS+3}], s32 offen offset:{cb*32}")
        k(f"buffer_load_ushort v{RAWR+cb}, v8, s[{LRS}:{LRS+3}], s32 offen offset:{cb*32}")
        k(f"buffer_load_ushort v{RAWI+cb}, v8, s[{LIS}:{LIS+3}], s32 offen offset:{cb*32}")
    if cfg.get("codepf", 1):
        k(f"""
        s_getpc_b64 s[{LRS}:{LRS+1}]
        Lc_pc:
        s_sub_u32 s{LRS}, s{LRS}, Lc_pc - {NAME}_kernel
        s_subb_u32 s{LRS+1}, s{LRS+1}, 0
        s_mov_b32 s{LRS+2}, L_end - {NAME}_kernel
        s_lshl_b32 s33, s25, 10
        s_cmp_lg_u32 s29, 0
        s_cbranch_scc1 Lc_nopf
        buffer_load_dwordx4 v[192:195], v196, s[{LRS}:{LRS+3}], s33 offen
        Lc_nopf:
        """)
    k(f"""
    v_lshrrev_b32 v8, 1, v6
    v_xor_b32 v8, v8, v7
    v_lshlrev_b32 v8, 4, v8
    v_lshl_add_u32 v8, v6, 7, v8
    s_lshl_b32 s33, s30, 13
    s_lshl_b32 s34, s31, 13
    s_add_u32 s34, s34, 16384
    v_add_u32 v2, s33, v8
    v_add_u32 v4, s34, v8
    v_xor_b32 v3, 64, v2
    v_xor_b32 v5, 64, v4
    s_lshl_b32 s33, s27, 14
    s_add_u32 s33, s33, {WS_E}
    s_add_u32 s{ES}, s{WS}, s33
    s_addc_u32 s{ES+1}, s{WS+1}, 0
    s_mov_b32 s{ES+2}, 16384
    s_mov_b32 s{ES+3}, 0x20000
    s_add_u32 s33, s27, s26
    s_and_b32 s33, s33, 15
    s_lshl_b32 s33, s33, 2
    s_add_u32 s33, s33, s31
    s_lshl_b32 s33, s33, 3
    s_lshl_b32 s34, s26, 9
    s_add_u32 s33, s33, s34
    s_lshl_b32 s34, s30, 2
    s_add_u32 s33, s33, s34
    s_lshl_b32 s33, s33, 10
    s_add_u32 s33, s33, {WS_H}
    s_add_u32 s{HS}, s{WS}, s33
    s_addc_u32 s{HS+1}, s{WS+1}, 0
    s_mov_b32 s{HS+2}, {2*8192 + 4096}
    s_mov_b32 s{HS+3}, 0x20000
    """)
    for r in range(64): k(f"v_mov_b32 v{ACC+r}, 0")
    k("s_waitcnt vmcnt(0)")
    for cb in range(2):
        k(f"""
        v_lshlrev_b32 v{T1+cb}, 16, v{T1+cb}
        v_lshlrev_b32 v{RAWR+cb}, 16, v{RAWR+cb}
        v_lshlrev_b32 v{RAWI+cb}, 16, v{RAWI+cb}
        v_mul_f32 v{T1+cb}, {LOG2E:#x}, v{T1+cb}
        v_exp_f32 v{T1+cb}, v{T1+cb}
        """)
    k(f"v_cvt_pk_bf16_f32 v{T1}, v{T1}, v{T1+1}\nv_and_b32 v{T1+1}, 0xffff0000, v{T1}\nv_lshlrev_b32 v{T1}, 16, v{T1}")
    k(pk("mul", T2, T1, RAWI)); k(pk("mul", T1, T1, RAWR))
    for cb in range(2):
        k(f"""
        v_mul_f32 v{T1+cb}, {LOG2E:#x}, v{T1+cb}
        v_mul_f32 v{T2+cb}, {INV2PI:#x}, v{T2+cb}
        v_exp_f32 v{T1+cb}, v{T1+cb}
        v_rndne_f32 v{LR+cb}, v{T2+cb}
        v_sub_f32 v{T2+cb}, v{T2+cb}, v{LR+cb}
        v_cos_f32 v{LR+cb}, v{T2+cb}
        v_sin_f32 v{LI+cb}, v{T2+cb}
        """)
    k(pk("mul", LR, LR, T1)); k(pk("mul", LI, LI, T1))
    csq(k, L8R, L8I, LR, LI, T1); csq(k, L16R, L16I, L8R, L8I, T1); csq(k, L8R, L8I, L16R, L16I, T1); csq(k, L16R, L16I, L8R, L8I, T1)
    k("s_waitcnt lgkmcnt(0)\ns_mul_i32 s44, s44, 1664525\ns_add_u32 s44, s44, 1013904223")
    stamp(k, cfg, 11)
    if cfg.get("prio", 1): k(f"s_setprio {cfg.get('prio', 1)}")
    k("s_barrier")
    stamp(k, cfg, 0)
    def rd(sub, fs, slot):
        b = FR + 32*fs; o = slot*32768
        A = [f"ds_read_b128 v[{b+4*m}:{b+4*m+3}], v{2+sub} offset:{o+m*2048}" for m in range(4)]
        B = [f"ds_read_b128 v[{b+16+4*m}:{b+16+4*m+3}], v{4+sub} offset:{o+m*2048}" for m in range(4)]
        return [A[0], B[0], B[1], B[2], B[3], A[1], A[2], A[3]]
    def mm(fs):
        b = FR + 32*fs; out = []
        for mb in range(4):
            for x in (range(4) if mb % 2 == 0 else range(3, -1, -1)):
                ri, cb = x >> 1, x & 1
                a = ACC + (cb*2+ri)*16 + mb*4
                out.append(f"v_mfma_f32_16x16x32_bf16 v[{a}:{a+3}], v[{b+4*mb}:{b+4*mb+3}], v[{b+16+4*x}:{b+16+4*x+3}], v[{a}:{a+3}]")
        return out
    for l in rd(0, 0, 0): k(l)
    k("s_mov_b32 s35, 0\nLc_loop:")
    BAR = cfg.get("bar1", 3)
    for half in range(2):
        m = mm(0); r = rd(1, 1, half)
        k("s_waitcnt lgkmcnt(0)")
        for i in range(16):
            k(m[i])
            if i < 8: k(r[i])
        m = mm(1)
        if half == 0: r = rd(0, 0, 1)
        else: r = rd(0, 0, 0)
        k("s_waitcnt lgkmcnt(0)")
        for i in range(16):
            k(m[i])
            if half == 1 and i == 0:
                for a in range(2, 6): k(f"v_xor_b32 v{a}, 0x10000, v{a}")
            if i == BAR - 1:
                if half == 0: k("s_barrier")
                else: k("s_cmp_eq_u32 s35, 7\ns_cbranch_scc1 Lc_nobar\ns_barrier\nLc_nobar:")
            if BAR <= i < BAR + 8: k(r[i - BAR])
    stamp_loop(k, cfg, 12, 35)
    k("s_add_u32 s35, s35, 1\ns_cmp_lt_u32 s35, 8\ns_cbranch_scc1 Lc_loop")
    stamp(k, cfg, 1)
    U = lambda cb, ri, tp: ACC + (cb*2+ri)*16 + 2*tp
    k(f"""
    s_sub_u32 s33, s26, 1
    v_sub_u32 v8, s33, v7
    v_lshlrev_b32 v8, 10, v8
    v_lshl_add_u32 v8, v6, 4, v8
    s_lshl_b32 s33, s31, 9
    v_add_u32 v192, s33, v8
    v_add_u32 v193, -4096, v192
    v_add_u32 v194, -8192, v192
    v_add_u32 v195, -12288, v192
    v_mov_b32 v9, {L_FLAG}
    """)
    def lb_loads():
        for i in range(4):
            for cb in range(2):
                g = GR + (i*2+cb)*4
                k(f"buffer_load_dwordx4 v[{g}:{g+3}], v{192+i}, s[{ES}:{ES+3}], 0 offen offset:{cb*256} sc1")
    if cfg.get("lbspec"): lb_loads()
    k("s_waitcnt lgkmcnt(0)")
    for tp in range(1, 8):
        for ri_first in (0,):
            for cb in range(2): k(pk("fma", U(cb,0,tp), LR, U(cb,0,tp-1), U(cb,0,tp), sa=cb))
            for cb in range(2): k(pk("fma", U(cb,1,tp), LR, U(cb,1,tp-1), U(cb,1,tp), sa=cb))
            for cb in range(2): k(pk("fma", U(cb,0,tp), LI, U(cb,1,tp-1), U(cb,0,tp), sa=cb, na=3))
            for cb in range(2): k(pk("fma", U(cb,1,tp), LI, U(cb,0,tp-1), U(cb,1,tp), sa=cb))
    for cb in range(2):
        e = T1 + 2*cb; r0, i0 = U(cb,0,7), U(cb,1,7)
        k(f"""
        v_fma_f32 v{e}, v{L8R+cb}, v{r0}, v{r0+1}
        v_fma_f32 v{e+1}, v{L8R+cb}, v{i0}, v{i0+1}
        v_fma_f32 v{e}, -v{L8I+cb}, v{i0}, v{e}
        v_fma_f32 v{e+1}, v{L8I+cb}, v{r0}, v{e+1}
        """)
    k(f"""
    s_lshl_b32 s33, s31, 8
    s_add_u32 s33, s33, {L_EX}
    v_lshl_add_u32 v30, v6, 3, s33          ; e[0][ch]
    s_lshl_b32 s33, s30, 11
    v_lshl_add_u32 v31, v7, 9, s33
    v_add_u32 v31, v31, v30                 ; e[seg][ch]
    ds_write_b64 v31, v[{T1}:{T1+1}]
    ds_write_b64 v31, v[{T1+2}:{T1+3}] offset:128
    s_lshl_b32 s33, s29, 2
    v_add_u32 v31, s33, v9
    s_xor_b32 s33, s33, 8
    v_add_u32 v9, s33, v9
    v_mov_b32 v8, 1
    ds_write_b32 v31, v8
    s_mov_b32 s45, {SPIN}
    Lc_expoll:
    ds_read_b32 v8, v9
    """)
    EV = lambda s, cb: FR + (s*2+cb)*2
    for s in range(8):
        for cb in range(2): k(f"ds_read_b64 v[{EV(s,cb)}:{EV(s,cb)+1}], v30 offset:{s*512+cb*128}")
    k(f"""
    s_waitcnt lgkmcnt(0)
    v_readfirstlane_b32 s33, v8
    s_sub_u32 s45, s45, 1
    s_cbranch_scc1 Lc_exok
    s_cmp_eq_u32 s33, 0
    s_cbranch_scc1 Lc_expoll
    Lc_exok:
    """)
    for s in range(1, 8):
        for cb in range(2): cfma_ri(k, EV(s,cb), L16R, L16I, cb, EV(s-1,cb), EV(s,cb), EV(s,cb))
    k(f"""
    s_cmp_eq_u32 s30, 0
    s_cbranch_scc1 Lc_nopub
    s_cmp_eq_u32 s26, 15
    s_cbranch_scc1 Lc_nopub
    v_mov_b32 v{T1}, v{EV(7,0)}
    v_mov_b32 v{T1+1}, v{EV(7,0)+1}
    v_mov_b32 v{T1+2}, s44
    v_mov_b32 v{T1+3}, s44
    s_lshl_b32 s33, s26, 10
    s_lshl_b32 s34, s31, 9
    s_add_u32 s33, s33, s34
    v_lshlrev_b32 v8, 4, v1
    s_mov_b64 exec, 0xffff0000
    v_mov_b32 v{T1}, v{EV(7,1)}
    v_mov_b32 v{T1+1}, v{EV(7,1)+1}
    s_mov_b64 exec, 0xffffffff
    buffer_store_dwordx4 v[{T1}:{T1+3}], v8, s[{ES}:{ES+3}], s33 offen sc1
    s_mov_b64 exec, -1
    Lc_nopub:
    """)
    if cfg.get("wu_at", "loop") == "pub":
        k(f"v_mov_b32 v8, 1\nv_mov_b32 v9, {L_FLAG}\ns_mov_b64 exec, 1\nds_add_u32 v9, v8 offset:32\ns_mov_b64 exec, -1")
    stamp(k, cfg, 2)
    PL = FR + 28
    k(f"v_mov_b32 v{PL}, 0\nv_mov_b32 v{PL+1}, 0\nv_mov_b32 v{PL+2}, 0\nv_mov_b32 v{PL+3}, 0")
    k("s_lshl_b32 s33, s30, 2\nv_add_u32 v8, s33, v7")
    for s in range(1, 8):
        k(f"v_cmp_eq_u32 vcc, {s}, v8")
        for x in range(4): k(f"v_cndmask_b32 v{PL+x}, v{PL+x}, v{EV(s-1,0)+x}, vcc")
    PRs = lambda cb: FR + 4*cb
    PIs = lambda cb: FR + 4*cb + 2
    for cb in range(2):
        p = PL + 2*cb; r0, i0 = U(cb,0,7), U(cb,1,7)
        k(f"""
        v_fma_f32 v{PRs(cb)+1}, v{L8R+cb}, v{p}, v{r0}
        v_fma_f32 v{PIs(cb)+1}, v{L8R+cb}, v{p+1}, v{i0}
        v_mov_b32 v{PRs(cb)}, v{p}
        v_mov_b32 v{PIs(cb)}, v{p+1}
        v_fma_f32 v{PRs(cb)+1}, -v{L8I+cb}, v{p+1}, v{PRs(cb)+1}
        v_fma_f32 v{PIs(cb)+1}, v{L8I+cb}, v{p}, v{PIs(cb)+1}
        """)
    A_R, A_I, B_R, B_I, WR_, WI_, S2R, S2I, TT = 64, 66, 68, 70, 72, 74, 76, 78, 80
    def sel_one(dr, di, sr, si, bit, v):
        k(f"v_and_b32 v9, {bit}, v{v}\nv_cmp_ne_u32 vcc, 0, v9")
        for cb in range(2): k(f"v_cndmask_b32 v{dr+cb}, 1.0, v{sr+cb}, vcc\nv_cndmask_b32 v{di+cb}, 0, v{si+cb}, vcc")
    sel_one(WR_, WI_, L16R, L16I, 1, 8)
    csq(k, A_R, A_I, L16R, L16I, TT)
    sel_one(SR_, SI_, A_R, A_I, 2, 8)
    cmul_cb(k, VR_, VI_, WR_, WI_, SR_, SI_)
    csq(k, B_R, B_I, A_R, A_I, TT)
    sel_one(SR_, SI_, B_R, B_I, 4, 8)
    cmul_cb(k, WR_, WI_, VR_, VI_, SR_, SI_)
    csq(k, A_R, A_I, B_R, B_I, TT)
    sel_one(S2R, S2I, A_R, A_I, 1, 7)
    csq(k, B_R, B_I, A_R, A_I, TT)
    sel_one(SR_, SI_, B_R, B_I, 2, 7)
    cmul_cb(k, VR_, VI_, S2R, S2I, SR_, SI_)
    csq(k, L5R, L5I, B_R, B_I, TT)
    cmul_cb(k, A_R, A_I, WR_, WI_, L8R, L8I)
    for cb in range(2):
        k(f"v_mov_b32 v{WRs(cb)}, v{WR_+cb}\nv_mov_b32 v{WRs(cb)+1}, v{A_R+cb}\nv_mov_b32 v{WIs(cb)}, v{WI_+cb}\nv_mov_b32 v{WIs(cb)+1}, v{A_I+cb}")
    for cb in range(2):
        k(f"v_max_f32 v{T1+cb}, |v{RAWR+cb}|, |v{RAWI+cb}|\nv_rcp_f32 v{T2+cb}, v{T1+cb}")
    k(pk("mul", RAWR, RAWR, T2)); k(pk("mul", RAWI, RAWI, T2))
    k(pk("mul", T2, RAWR, RAWR)); k(pk("fma", T2, RAWI, RAWI, T2)); k(pk("mul", T2, T2, T1))
    for cb in range(2): k(f"v_rcp_f32 v{T2+cb}, v{T2+cb}\nv_add_f32 v{T1+cb}, -1.0, v{LR+cb}")
    k(pk("add", T2, T2, T2))
    k(pk("mul", SR_, T1, RAWR)); k(pk("mul", SI_, LI, RAWR)); k(pk("fma", SR_, LI, RAWI, SR_)); k(pk("fma", SI_, T1, RAWI, SI_, na=3))
    k(pk("mul", SR_, SR_, T2)); k(pk("mul", SI_, SI_, T2))
    for cb in range(2):
        k(f"v_mov_b32 v{T1+2*cb}, v{SR_+cb}\nv_mov_b32 v{T1+2*cb+1}, v{SI_+cb}")
    for tp in range(8):
        for cb in range(2):
            src = T1 + 2*cb if tp == 0 else TB(tp-1, cb)
            k(pk("mul", TB(tp,cb), LR, src, sa=cb))
        for cb in range(2):
            src = T1 + 2*cb if tp == 0 else TB(tp-1, cb)
            k(pk("fma", TB(tp,cb), LI, src, TB(tp,cb), sa=cb, sb='x', nb=1))
    for tp in range(8):
        for cb in range(2):
            t = T1 + 2*cb; R, I = U(cb,0,tp), U(cb,1,tp)
            k(pk("mul", t, SI_, R, sa=cb, na=3)); k(pk("mul", R, SR_, R, sa=cb))
            k(pk("fma", R, SI_, I, R, sa=cb, na=3)); k(pk("fma", I, SR_, I, t, sa=cb, na=3))
    k(f"v_mov_b32 v9, s44")
    for i in range(4):
        k(f"v_cmp_le_i32 vcc, 0, v{192+i}\nv_cndmask_b32 v{EXP[i]}, 0, v9, vcc\nv_cndmask_b32 v{EXP[i]+1}, 0, v9, vcc")
    k(f"""
    s_lshl_b32 s33, s29, 12
    s_add_u32 s33, s33, {L_TR}
    v_lshrrev_b32 v8, 1, v6
    v_and_b32 v8, 4, v8
    v_and_b32 v9, 7, v6
    v_xor_b32 v8, v8, v9                    ; g(j)
    v_lshlrev_b32 v9, 1, v7
    v_xor_b32 v8, v8, v9
    v_lshlrev_b32 v8, 4, v8
    v_lshl_add_u32 v8, v6, 7, v8
    v_add_u32 v2, s33, v8
    v_xor_b32 v3, 16, v2
    v_bfe_u32 v8, v1, 2, 2                  ; r
    v_bfe_u32 v9, v1, 1, 1
    v_xor_b32 v9, v9, v8
    v_and_b32 v4, 1, v7
    v_lshlrev_b32 v4, 2, v4
    v_xor_b32 v9, v9, v4
    v_lshlrev_b32 v9, 4, v9
    v_lshl_add_u32 v8, v7, 3, v8
    v_lshl_add_u32 v9, v8, 7, v9
    v_and_b32 v8, 1, v1
    v_lshl_add_u32 v9, v8, 3, v9
    v_add_u32 v4, s33, v9
    v_xor_b32 v5, 32, v4
    v_xor_b32 v30, 64, v4
    v_xor_b32 v31, 96, v4
    s_mov_b32 s45, {SPIN}
    """)
    if cfg.get("dbgregs"):
        k(f"s_mov_b32 s{WS+2}, {SZ['ws']}\ns_mov_b32 s{WS+3}, 0x20000\ns_lshl_b32 s34, s2, 2\ns_add_u32 s34, s34, s29\ns_lshl_b32 s34, s34, 14\ns_add_u32 s34, s34, {WS_STAMP}\nv_lshlrev_b32 v197, 2, v1")
        for i, r in enumerate(cfg["dbgregs"]):
            if i and i % 16 == 0: k("s_add_u32 s34, s34, 4096")
            k(f"buffer_store_dword v{r}, v197, s[{WS}:{WS+3}], s34 offen offset:{(i%16)*256}")
    stamp(k, cfg, 3)
    if not cfg.get("lbspec"):
        if cfg.get("lbpre", 0): k(f"s_sleep {cfg.get('lbpre', 0)}")
        lb_loads()
    k("Lc_lbpoll:\ns_waitcnt vmcnt(0)")
    for i in range(4):
        for cb in range(2):
            g = GR + (i*2+cb)*4
            k(f"v_cmp_ne_u64 s[{46+2*(i*2+cb)}:{47+2*(i*2+cb)}], v[{g+2}:{g+3}], v[{EXP[i]}:{EXP[i]+1}]")
    k("""
    s_or_b64 s[46:47], s[46:47], s[48:49]
    s_or_b64 s[50:51], s[50:51], s[52:53]
    s_or_b64 s[54:55], s[54:55], s[56:57]
    s_or_b64 s[58:59], s[58:59], s[60:61]
    s_or_b64 s[46:47], s[46:47], s[50:51]
    s_or_b64 s[54:55], s[54:55], s[58:59]
    s_or_b64 s[46:47], s[46:47], s[54:55]
    s_cbranch_scc0 Lc_lbok
    s_sub_u32 s45, s45, 1
    s_cbranch_scc1 Lc_lbok
    """)
    if cfg.get("lbsleep"): k(f"s_sleep {cfg['lbsleep']}")
    lb_loads()
    k("s_branch Lc_lbpoll\nLc_lbok:")
    stamp(k, cfg, 4)
    G = lambda i, cb: GR + (i*2+cb)*4
    for i in (2, 1, 0):
        for cb in range(2): cfma_ri(k, G(i,cb), L5R, L5I, cb, G(i+1,cb), G(i,cb), G(i,cb))
    H = lambda cb: G(1, cb)
    for cb in range(2): k(pk("mul", H(cb), VR_, G(0,cb), sa=cb))
    for cb in range(2): k(pk("fma", H(cb), VI_, G(0,cb), H(cb), sa=cb, sb='x', nb=1))
    for op in ("v_permlane16_swap_b32", "v_permlane32_swap_b32"):
        for cb in range(2): k(f"v_mov_b32 v{H(cb)+2}, v{H(cb)}\nv_mov_b32 v{H(cb)+3}, v{H(cb)+1}")
        for cb in range(2): k(f"{op} v{H(cb)}, v{H(cb)+2}\n{op} v{H(cb)+1}, v{H(cb)+3}")
        for cb in range(2): k(pk("add", H(cb), H(cb), H(cb)+2))
    for cb in range(2):
        k(pk("fma", PRs(cb), WRs(cb), H(cb), PRs(cb), sb=0)); k(pk("fma", PIs(cb), WRs(cb), H(cb), PIs(cb), sb=1))
    for cb in range(2):
        k(pk("fma", PRs(cb), WIs(cb), H(cb), PRs(cb), sb=1, nb=3)); k(pk("fma", PIs(cb), WIs(cb), H(cb), PIs(cb), sb=0))
    PK = GR
    RA = {0: 4, 2: 5, 4: 30, 6: 31}
    k(f"s_mov_b32 s33, {2*8192}")
    def hstores(ri):
        for qq in range(4):
            b = ACC + 32*ri + 4*qq
            k(f"s_waitcnt lgkmcnt({2*(1-ri) + 2*(3-qq)})")
            k(f"buffer_store_dwordx4 v[{b}:{b+3}], v196, s[{HS}:{HS+3}], {'s33' if ri else '0'} offen offset:{qq*1024} {cfg.get('hstfl', 'sc1')}")
    for ri in range(2):
        for cb in range(2):
            for tp in range(8):
                R, I, T = U(cb,0,tp), U(cb,1,tp), TB(tp,cb)
                if ri == 0: k(pk("fma", R, T, PRs(cb), R, sa=0)); k(pk("fma", R, T, PIs(cb), R, sa=1, na=3))
                else: k(pk("fma", I, T, PIs(cb), I, sa=0, na=3)); k(pk("fma", I, T, PRs(cb), I, sa=1, na=3))
            for sub in range(2):
                b = PK + ((ri*2+cb)*2+sub)*4
                for x in range(4): k(f"v_cvt_pk_bf16_f32 v{b+x}, v{U(cb,ri,2*x)+sub}, v{U(cb,ri,2*x+1)+sub}")
                k(f"ds_write_b128 v{2+sub}, v[{b}:{b+3}] offset:{cb*16*128}")
            if ri == 1 and cb == 0: hstores(0)
        for qq in range(4):
            b = ACC + 32*ri + 4*qq
            for hh in range(2): k(f"ds_read_b64_tr_b16 v[{b+2*hh}:{b+2*hh+1}], v{RA[(2*qq) ^ (4*hh)]} offset:{4*hh*128}")
    hstores(1)
    stamp(k, cfg, 5)
    CF, HR, AC2 = 8, 40, 200
    FS = 44
    k(f"""
    s_lshl_b32 s33, s26, 11
    s_add_u32 s33, s33, {WS_HF}
    s_add_u32 s{ES}, s{WS}, s33
    s_addc_u32 s{ES+1}, s{WS+1}, 0
    s_mov_b32 s{ES+2}, 2048
    s_lshl_b32 s47, s27, 7
    v_mov_b32 v190, s44
    v_lshlrev_b32 v191, 2, v1
    v_lshlrev_b32 v192, 7, v6
    v_mov_b32 v193, 1
    v_mov_b32 v194, {L_FLAG}
    v_lshrrev_b32 v2, 1, v6
    v_xor_b32 v2, v2, v7
    v_lshlrev_b32 v2, 4, v2
    v_lshl_add_u32 v2, v6, 7, v2
    v_add_u32 v2, {L_C}, v2
    v_xor_b32 v3, 64, v2
    v_and_b32 v5, 7, v6
    v_xor_b32 v5, v5, v7
    v_lshlrev_b32 v5, 4, v5
    v_lshl_add_u32 v5, v6, 8, v5
    s_lshl_b32 s33, s29, 13
    s_add_u32 s33, s33, {L_STG}
    v_add_u32 v186, s33, v5
    v_xor_b32 v187, 64, v186
    v_xor_b32 v188, 128, v186
    v_xor_b32 v189, 192, v186
    """)
    for r in range(32): k(f"v_mov_b32 v{AC2+r}, 0")
    k(ROT[cfg.get("rot2", "xc1")])
    k(f"""
    s_and_b32 s61, s61, 15
    s_add_u32 s62, s61, s26
    s_and_b32 s62, s62, 15
    s_lshl_b32 s62, s62, 15      ; h byte offset of the next substep to load
    s_lshl_b32 s32, s29, 11
    s_lshl_b32 s33, s26, 19
    s_add_u32 s33, s33, s32
    s_add_u32 s33, s33, {WS_H}
    s_waitcnt vmcnt(0)
    s_mov_b64 exec, 1
    ds_add_rtn_u32 v193, v194, v193 offset:24
    s_mov_b64 exec, -1
    """)
    stamp(k, cfg, 20)
    k(f"""
    s_add_u32 s{HS}, s{WS}, s33
    s_addc_u32 s{HS+1}, s{WS+1}, 0
    s_sub_u32 s{HS+2}, {64*8192}, s32
    s_waitcnt lgkmcnt(0)
    v_readfirstlane_b32 s46, v193
    """)
    k(f"""
    s_cmp_lg_u32 s46, 3
    s_cbranch_scc1 Lc_hok
    s_mov_b64 exec, 0xffffffff
    buffer_store_dword v190, v191, s[{ES}:{ES+3}], s47 offen sc1
    ds_write_b32 v194, v194 offset:28
    s_mov_b64 exec, 0xffff
    """)
    if cfg.get("skipown", 1): k("s_lshl_b32 s46, 1, s27\ns_andn2_b32 exec_lo, exec_lo, s46")
    if cfg.get("presleep", 0): k(f"s_sleep {cfg.get('presleep', 0)}")
    k(f"s_mov_b32 s45, {SPIN}\nLc_hpoll:")
    if cfg.get("pollat", "sc0 sc1"): k(f"v_mov_b32 v193, 0\nbuffer_atomic_or v193, v192, s[{ES}:{ES+3}], 0 offen {cfg.get('pollat', 'sc0 sc1')}")
    else: k(f"buffer_load_dword v193, v192, s[{ES}:{ES+3}], 0 offen sc1")
    k(f"""
    s_waitcnt vmcnt(0)
    v_cmp_ne_u32 vcc, s44, v193
    s_cbranch_vccz Lc_hdone
    s_sub_u32 s45, s45, 1
    s_cbranch_scc1 Lc_hdone
    s_sleep {cfg.get('hsleep', 4)}
    s_branch Lc_hpoll
    Lc_hdone:
    s_mov_b64 exec, -1
    Lc_hok:
    s_barrier
    """)
    stamp(k, cfg, 7)
    def hload(u, tb):
        r = HR + 8*(u % 8) + 4*tb
        k(f"buffer_load_dwordx4 v[{r}:{r+3}], v196, s[{HS}:{HS+3}], s62 offen offset:{tb*1024} {cfg.get('hld', 'sc1')}")
    def hadv(): k(f"s_add_u32 s62, s62, 8192\ns_and_b32 s62, s62, {64*8192-1}")
    HD = cfg.get("hd", 6)
    for u in range(HD):
        hload(u, 0); hload(u, 1); hadv()
    stamp(k, cfg, 8)
    def rd2(sub, fs, slot):
        b = CF + 16*fs; ri, s = sub >> 1, sub & 1
        return [f"ds_read_b128 v[{b+4*d}:{b+4*d+3}], v{2+s} offset:{slot*16384 + ri*8192 + d*2048}" for d in range(4)]
    def mm2(u, fs):
        b = CF + 16*fs; out = []
        for tb in range(2):
            h = HR + 8*(u % 8) + 4*tb
            for d in (range(4) if tb == 0 else range(3, -1, -1)):
                a = AC2 + (tb*4+d)*4
                out.append(f"v_mfma_f32_16x16x32_bf16 v[{a}:{a+3}], v[{b+4*d}:{b+4*d+3}], v[{h}:{h+3}], v[{a}:{a+3}]")
        return out
    for l in rd2(0, 0, 0): k(l)
    k("s_mov_b32 s35, 0\nLc2_loop:")
    for u in range(8):
        if u == 8 - HD: k(f"s_cmp_eq_u32 s35, 7\ns_cselect_b32 s{HS+2}, 0, s{HS+2}")
        half, sub = u >> 2, u & 3
        m = mm2(u, u & 1)
        r = rd2(sub+1, (u+1) & 1, half) if sub < 3 else rd2(0, 0, 1 - half)
        k(f"s_waitcnt vmcnt({2*HD-1}) lgkmcnt(0)")
        for i in range(8):
            if i == 4: k(f"s_waitcnt vmcnt({2*HD-1})")
            k(m[i])
            if sub == 3 and i == 0:
                if half == 1: k("v_xor_b32 v2, 0x8000, v2\nv_xor_b32 v3, 0x8000, v3\ns_cbranch_scc1 Lc2_nobar\ns_barrier\nLc2_nobar:")
                else: k("s_barrier")
            o = 1 if sub == 3 else 0
            if o <= i < o + 4: k(r[i - o])
            if i == 3: hload(u + HD, 0)
            if i == 7:
                hload(u + HD, 1)
                if u == 6: k(f"s_add_u32 s62, s62, 8192\ns_and_b32 s62, s62, {64*8192-1}\ns_cmp_eq_u32 s35, 7")
                else: hadv()
    stamp_loop(k, dict(lstamps=cfg.get('lstamps2')), 12, 35)
    k("s_add_u32 s35, s35, 1\ns_cmp_lt_u32 s35, 8\ns_cbranch_scc1 Lc2_loop")
    stamp(k, cfg, 9)
    for tb in range(2):
        for d in range(4):
            a = AC2 + (tb*4+d)*4
            k(f"ds_write_b128 v{186+d}, v[{a}:{a+3}] offset:{tb*4096}")
    k("s_waitcnt lgkmcnt(0)\ns_barrier")
    stamp(k, cfg, 10)
    stamp_flush(k, cfg, 0)
```

```python
from asmgen import *
from layout import *

LOG2E = 0x3fb8aa3b
INV2PI = 0x3e22f983
SPIN = 1 << 15

def pk(op, d, a, b, c=None, sa=None, sb=None, sc=None, na=0, nb=0, nc=0):
    srcs = [(a, sa, na), (b, sb, nb)] + ([(c, sc, nc)] if c is not None else [])
    if sa not in (1, 'x') and sb in (1, 'x'): srcs[0], srcs[1] = srcs[1], srcs[0]
    lo = [{None: 0, 0: 0, 1: 1, 'x': 1}[s] for _, s, _ in srcs]
    hi = [{None: 1, 0: 0, 1: 1, 'x': 0}[s] for _, s, _ in srcs]
    nl = [n & 1 for _, _, n in srcs]; nh = [n >> 1 for _, _, n in srcs]
    t = f"v_pk_{op}_f32 v[{d}:{d+1}], " + ", ".join(f"v[{r}:{r+1}]" for r, _, _ in srcs)
    f = lambda x: "[" + ",".join(map(str, x)) + "]"
    if any(lo): t += f" op_sel:{f(lo)}"
    if not all(hi): t += f" op_sel_hi:{f(hi)}"
    if any(nl): t += f" neg_lo:{f(nl)}"
    if any(nh): t += f" neg_hi:{f(nh)}"
    return t

def csq(k, dr, di, ar, ai, t):
    k(pk("mul", t, ar, ai)); k(pk("mul", dr, ar, ar)); k(pk("fma", dr, ai, ai, dr, na=3)); k(pk("add", di, t, t))
def cmul_cb(k, dr, di, ar, ai, br, bi):
    k(pk("mul", dr, ar, br)); k(pk("mul", di, ar, bi)); k(pk("fma", dr, ai, bi, dr, na=3)); k(pk("fma", di, ai, br, di))
def cfma_ri(k, d, cr, ci, cb, h, g, t):
    k(pk("fma", t, cr, h, g, sa=cb)); k(pk("fma", d, ci, h, t, sa=cb, sb='x', nb=1))

def wg_coords(k, band=False):
    if band:
        k("""
        s_and_b32 s24, s2, 7
        s_lshr_b32 s25, s2, 3
        s_lshr_b32 s26, s25, 4
        s_lshl_b32 s26, s26, 3
        s_add_u32 s26, s26, s24      ; s26 = c (time chunk): the 16 tiles of a chunk share blockIdx % 8
        s_and_b32 s27, s25, 15
        """)
        return
    k("""
    s_and_b32 s24, s2, 7
    s_lshr_b32 s25, s2, 3
    s_lshr_b32 s26, s25, 3
    s_lshl_b32 s26, s26, 2
    s_lshr_b32 s27, s24, 1
    s_add_u32 s26, s26, s27
    s_and_b32 s27, s24, 1
    s_lshl_b32 s27, s27, 3
    s_and_b32 s28, s25, 7
    s_add_u32 s27, s27, s28
    """)

ROT = {
    "none": "s_mov_b32 s61, 0",
    "cn": "s_add_u32 s61, s26, s27",
    "q": "s_lshr_b32 s61, s25, 3\ns_lshl_b32 s61, s61, 1\ns_add_u32 s61, s61, s28\ns_lshl_b32 s61, s61, 1",
    "x": "s_lshl_b32 s61, s24, 1",
    "qx": "s_lshr_b32 s61, s25, 3\ns_lshl_b32 s61, s61, 1\ns_add_u32 s61, s61, s28\ns_lshl_b32 s61, s61, 1\ns_lshr_b32 s62, s24, 1\ns_add_u32 s61, s61, s62\ns_and_b32 s62, s24, 1\ns_add_u32 s61, s61, s62",
    "c4": "s_lshr_b32 s61, s25, 3\ns_lshl_b32 s61, s61, 2",
    "n2": "s_lshl_b32 s61, s28, 1",
    "c": "s_mov_b32 s61, s26",
    "n": "s_mov_b32 s61, s27",
    "xn1": "s_lshl_b32 s61, s24, 1\ns_add_u32 s61, s61, s28",
    "xc1": "s_lshr_b32 s61, s25, 3\ns_lshl_b32 s62, s24, 1\ns_add_u32 s61, s61, s62",
    "xp": "s_and_b32 s61, s25, 1\ns_lshl_b32 s62, s24, 1\ns_add_u32 s61, s61, s62",
    "xp2": "s_lshr_b32 s61, s25, 3\ns_add_u32 s61, s61, s25\ns_and_b32 s61, s61, 1\ns_lshl_b32 s62, s24, 1\ns_add_u32 s61, s61, s62",
    "k8": "s_lshr_b32 s61, s24, 1\ns_lshl_b32 s61, s61, 2\ns_and_b32 s62, s24, 1\ns_lshl_b32 s62, s62, 3\ns_add_u32 s61, s61, s62",
    "k8c1": "s_lshr_b32 s61, s24, 1\ns_lshl_b32 s61, s61, 2\ns_and_b32 s62, s24, 1\ns_lshl_b32 s62, s62, 3\ns_add_u32 s61, s61, s62\ns_lshr_b32 s62, s25, 3\ns_add_u32 s61, s61, s62",
    "k8p": "s_lshr_b32 s61, s24, 1\ns_lshl_b32 s61, s61, 2\ns_and_b32 s62, s24, 1\ns_lshl_b32 s62, s62, 3\ns_add_u32 s61, s61, s62\ns_lshr_b32 s62, s25, 3\ns_add_u32 s62, s62, s25\ns_and_b32 s62, s62, 1\ns_add_u32 s61, s61, s62",
    "h8": "s_and_b32 s61, s25, 1\ns_lshl_b32 s61, s61, 3",
}

class _Rot(dict):
    def __missing__(self, key):
        a, b, m, c = key.split(".")
        return (f"s_lshr_b32 s61, s25, 3\ns_mul_i32 s61, s61, {a}\ns_and_b32 s62, s25, {m}\ns_mul_i32 s62, s62, {b}\n"
                f"s_add_u32 s61, s61, s62\ns_mul_i32 s62, s24, {c}\ns_add_u32 s61, s61, s62")
ROT = _Rot(ROT)

def add_base(k, s, off):
    k(f"s_add_u32 s{s}, s{s}, {off}\ns_addc_u32 s{s+1}, s{s+1}, 0")

def wave_max(k, v, t, sdst):
    k(f"v_mov_b32 v{t}, v{v}")
    for m in ("row_shr:1", "row_shr:2", "row_shr:4", "row_shr:8"):
        k(f"v_max_u32_dpp v{t}, v{t}, v{t} {m} row_mask:0xf bank_mask:0xf")
    k(f"v_max_u32_dpp v{t}, v{t}, v{t} row_bcast:15 row_mask:0xa bank_mask:0xf")
    k(f"v_max_u32_dpp v{t}, v{t}, v{t} row_bcast:31 row_mask:0xc bank_mask:0xf")
    k(f"v_readlane_b32 s{sdst}, v{t}, 63")

def wave_sum(k, regs):
    for m, rm in (("row_shr:1", 0xf), ("row_shr:2", 0xf), ("row_shr:4", 0xf), ("row_shr:8", 0xf), ("row_bcast:15", 0xa), ("row_bcast:31", 0xc)):
        for v in regs:
            k(f"v_add_f32_dpp v{v}, v{v}, v{v} {m} row_mask:{rm:#x} bank_mask:0xf")

def sigmoid_bf16(k, d, x, t):
    k(f"""
    v_mul_f32 v{t}, {LOG2E ^ 0x80000000:#x}, v{x}
    v_exp_f32 v{t}, v{t}
    v_add_f32 v{t}, 1.0, v{t}
    v_rcp_f32 v{t}, v{t}
    v_cvt_pk_bf16_f32 v{d}, v{t}, v{t}
    v_lshlrev_b32 v{d}, 16, v{d}
    """)

def stamp(k, cfg, i, cond="s_waitcnt lgkmcnt(0)"):
    if cfg.get("dbgt"):
        slot = cfg["dbgt"].get(cfg.get("_role", "") + str(i))
        if slot is not None: k(f"s_memrealtime s[92:93]\ns_waitcnt lgkmcnt(0)\nv_writelane_b32 v199, s92, {slot}")
        return
    if not cfg.get("stamps"): return
    k(f"s_memrealtime s[92:93]\ns_memtime s[94:95]\ns_waitcnt lgkmcnt(0)\nv_writelane_b32 v199, s92, {i}\nv_writelane_b32 v199, s94, {32+i}")
def stamp_loop(k, cfg, base, sreg):
    if not cfg.get("lstamps"): return
    k(f"""s_memrealtime s[92:93]
    s_memtime s[94:95]
    s_add_u32 s96, s{sreg}, {base}
    s_add_u32 s97, s96, 32
    v_cmp_eq_u32 s[98:99], s96, v1
    v_cmp_eq_u32 s[100:101], s97, v1
    s_waitcnt lgkmcnt(0)
    v_mov_b32 v197, s92
    v_mov_b32 v198, s94
    v_cndmask_b32 v199, v199, v197, s[98:99]
    v_cndmask_b32 v199, v199, v198, s[100:101]""")
def stamp_flush(k, cfg, which):
    if cfg.get("dbgt"):
        L = k.label("dbg")
        k(f"""
        s_and_b32 s92, s29, 3
        s_cmp_lg_u32 s92, 0
        s_cbranch_scc1 {L}
        s_and_b32 s92, s2, {cfg.get('dbgmask', 0x18)}
        s_cmp_lg_u32 s92, 0
        s_cbranch_scc1 {L}
        s_load_dwordx2 s[96:97], s[0:1], {KA['dbg']}
        s_mov_b32 s98, 256
        s_mov_b32 s99, 0x20000
        s_not_b32 s92, s90
        v_writelane_b32 v199, s92, 0
        s_mov_b64 exec, -1
        v_mbcnt_lo_u32_b32 v198, -1, 0
        v_lshlrev_b32 v198, 2, v198
        s_mov_b64 exec, 0xffff
        s_waitcnt lgkmcnt(0)
        buffer_atomic_umax v199, v198, s[96:99], 0 offen
        {L}:
        """)
        return
    if not cfg.get("stamps"): return
    k(f"""
    s_load_dwordx2 s[92:93], s[0:1], {KA['ws']}
    s_mov_b32 s94, {SZ['ws']}
    s_mov_b32 s95, 0x20000
    v_writelane_b32 v199, s90, 31
    v_writelane_b32 v199, s88, 63
    s_lshl_b32 s96, s2, 11
    s_lshl_b32 s97, s29, 8
    s_add_u32 s96, s96, s97
    s_add_u32 s96, s96, {WS_STAMP + which * 0x80000}
    s_mov_b64 exec, -1
    v_mbcnt_lo_u32_b32 v198, -1, 0
    v_mbcnt_hi_u32_b32 v198, -1, v198
    v_lshlrev_b32 v198, 2, v198
    s_waitcnt lgkmcnt(0)
    buffer_store_dword v199, v198, s[92:95], s96 offen
    """)


def lead4(k, inc, unit):
    k(f"""
    s_lshr_b32 s{inc}, s25, 3
    s_add_u32 s{inc}, s{inc}, s25
    s_and_b32 s{inc}, s{inc}, 3
    s_cmp_eq_u32 s{inc}, 0
    s_addc_u32 s61, s61, 0
    s_cmp_eq_u32 s{inc}, 3
    s_subb_u32 s61, s61, 0
    s_lshl_b32 s{inc+1}, s{inc}, 3
    s_mov_b32 s{inc+2}, 0x03020300
    s_mov_b32 s{inc+3}, 0x03020300
    s_sub_u32 s{inc+1}, 32, s{inc+1}
    s_lshr_b64 s[{inc+2}:{inc+3}], s[{inc+2}:{inc+3}], s{inc+1}
    """)
    for b, d in ((0, inc), (1, inc+1), (3, inc+3), (2, inc+2)):
        k(f"s_bfe_u32 s{d}, s{inc+2}, {(8 << 16) | (8*b)}")
    for b in range(4): k(f"s_sub_u32 s{inc+b}, s{inc+b}, 1\ns_mul_i32 s{inc+b}, s{inc+b}, {unit}")
```

```python
from common import *

S0 = 147456
L_FLAG, L_RT, L_CAND, L_SORT, L_EX, L_ACT = S0, S0 + 64, S0 + 256, S0 + 512, S0 + 1024, S0 + 5120
ACT_ROW = 464
L_TR = 131072
L_WG, L_WU = 0, 32768
L_C = 65536
L_WD = 32768
L_STG = 0

def gen_fused(cfg):
    k = Kern(NAME + "_kernel", 256, 512, 163840, 256)
    if cfg.get("dbgt"): k("s_memrealtime s[90:91]\nv_mov_b32 v199, 0")
    if cfg.get("stamps"): k("s_memrealtime s[90:91]\ns_memtime s[88:89]\nv_mov_b32 v199, 0")
    k(f"""
    s_load_dwordx4 s[4:7], s[0:1], {KA['x']}
    s_load_dwordx4 s[12:15], s[0:1], {KA['b_re']}
    s_load_dwordx2 s[36:37], s[0:1], {KA['w_r']}
    s_load_dwordx2 s[40:41], s[0:1], {KA['gate_w']}
    s_load_dwordx2 s[16:17], s[0:1], {KA['ws']}
    s_load_dwordx2 s[8:9], s[0:1], {KA['lam_im']}
    s_load_dwordx2 s[44:45], s[0:1], {KA['log_dt']}
    s_cmp_ge_u32 s2, 256
    s_cbranch_scc1 L_end
    v_lshrrev_b32 v2, 6, v0
    v_and_b32 v1, 63, v0
    """)
    wg_coords(k)
    k("v_readfirstlane_b32 s29, v2\ns_cmp_lt_u32 s29, 4\ns_cbranch_scc1 L_compute")
    loader(k, dict(cfg, _role="L"))
    k("L_compute:")
    compute(k, dict(cfg, _role="C"))
    k("L_end:\ns_endpgm")
    k.lines = fix_hazards(k.lines)
    return k

def lds_spin(k, name, read, sreg, cond, cnt=68):
    k(f"""
    s_mov_b32 s{cnt}, {SPIN}
    L_{name}poll:
    {read}
    s_waitcnt lgkmcnt(0)
    v_readfirstlane_b32 s{sreg[0]}, v{sreg[1]}
    s_sub_u32 s{cnt}, s{cnt}, 1
    s_cbranch_scc1 L_{name}ok
    {cond}
    s_cbranch_scc1 L_{name}poll
    L_{name}ok:
    """)

def loader(k, cfg):
    vm = VM(k)
    XF, XS, BS, WS, RS, GS, WD, WGS, WUS = 4, 8, 12, 16, 36, 40, 44, 48, 52
    CS, DK, OS = XS, RS, GS
    TAG = 65
    k(f"""
    s_and_b32 s30, s29, 3
    v_lshlrev_b32 v18, 4, v1
    s_lshl_b32 s20, s26, 7       ; 128 c
    s_lshl_b32 s63, s27, 3
    s_add_u32 s62, s20, s63
    s_lshl_b32 s63, s30, 1
    s_add_u32 s62, s62, s63
    s_lshl_b32 s63, s62, 11
    s_mov_b32 s{RS+2}, 2048
    s_mov_b32 s{RS+3}, 0x20000
    s_mov_b32 s{GS+2}, 2048
    s_mov_b32 s{GS+3}, 0x20000
    v_lshrrev_b32 v3, 3, v1      ; r3
    v_and_b32 v4, 7, v1
    v_lshrrev_b32 v5, 1, v3
    v_xor_b32 v2, v4, v5
    v_lshlrev_b32 v2, 4, v2
    v_lshl_add_u32 v14, v3, 11, v2   ; B piece 0
    v_xor_b32 v15, 64, v14
    v_add_u32 v16, {2*15360}, v14
    v_add_u32 v17, {3*15360}, v15
    v_add_u32 v15, {15360}, v15
    v_lshrrev_b32 v6, 2, v3
    v_lshlrev_b32 v6, 4, v6
    v_and_b32 v7, 1, v3
    v_lshl_add_u32 v6, v7, 3, v6
    v_and_b32 v7, 1, v5
    v_add_u32 v6, v6, v7
    v_lshl_add_u32 v10, v6, 11, v2   ; A piece 0
    v_xor_b32 v11, 64, v10
    v_add_u32 v12, {2*2048-2048}, v10
    v_add_u32 v13, {34*2048-3072}, v11
    v_add_u32 v11, {32*2048-1024}, v11
    s_lshr_b32 s31, s30, 1       ; w>>1
    s_and_b32 s32, s30, 1        ; w&1
    s_lshl_b32 s34, s31, 6
    s_add_u32 s33, s20, s34
    s_lshl_b32 s34, s32, 2
    s_add_u32 s33, s33, s34
    s_lshl_b32 s33, s33, 11
    s_lshl_b32 s34, s27, 6
    s_lshl_b32 s35, s31, 5
    s_add_u32 s34, s34, s35
    s_lshl_b32 s64, s34, 11
    s_lshl_b32 s60, s30, 12
    """)
    k(ROT[cfg.get("rot1", "cn")].replace("s62", "s66"))
    X0, WR, GW, GL, GH, AR, AZ, T0, ONE = 20, 36, 44, 52, 60, 68, 70, 72, 96
    k(f"""
    s_and_b32 s61, s61, 15
    s_lshl_b32 s61, s61, 7
    s_cmp_eq_u32 s32, 1
    s_waitcnt lgkmcnt(0)
    s_mov_b32 s{XF+2}, {SZ['x']}
    s_mov_b32 s{XF+3}, 0x20000
    """)
    stamp(k, cfg, 10)
    if cfg.get("stamps") or cfg.get("dbgt"): k("s_cmp_eq_u32 s32, 1")
    for h in range(2):
        vm.issue("rt", f"buffer_load_dwordx4 v[{GW+4*h}:{GW+4*h+3}], v18, s[{GS}:{GS+3}], 0 offen offset:{h*1024}")
        vm.issue("rt", f"buffer_load_dwordx4 v[{WR+4*h}:{WR+4*h+3}], v18, s[{RS}:{RS+3}], 0 offen offset:{h*1024}")
    for r in range(2):
        for h in range(2):
            vm.issue("rt", f"buffer_load_dwordx4 v[{X0+8*r+4*h}:{X0+8*r+4*h+3}], v18, s[{XF}:{XF+3}], s63 offen offset:{r*2048+h*1024}")
    k(f"""
    s_cselect_b32 s{BS}, s{BS+2}, s{BS}
    s_cselect_b32 s{BS+1}, s{BS+3}, s{BS+1}
    s_add_u32 s{BS}, s{BS}, s64
    s_addc_u32 s{BS+1}, s{BS+1}, 0
    s_sub_u32 s{BS+2}, {SZ['b_re']}, s64
    s_mov_b32 s{BS+3}, 0x20000
    s_add_u32 s{XS}, s{XF}, s33
    s_addc_u32 s{XS+1}, s{XF+1}, 0
    s_sub_u32 s{XS+2}, {SZ['x']}, s33
    s_mov_b32 s{XS+3}, 0x20000
    """)
    def stage(i):
        slot = (i % 4) * 32768
        k(f"s_add_u32 m0, s60, {slot}")
        for j in range(4): vm.issue(f"st{i}", f"buffer_load_dwordx4 v{10+j}, s[{XS}:{XS+3}], s61 offen offset:{j*1024} lds")
        k(f"s_add_u32 m0, s60, {slot + 16384}")
        for j in range(4): vm.issue(f"st{i}", f"buffer_load_dwordx4 v{14+j}, s[{BS}:{BS+3}], s61 offen offset:{j*1024} lds")
        k("s_add_u32 s61, s61, 128\ns_and_b32 s61, s61, 2047")
    stage(0)
    k(f"""
    s_load_dword s{TAG}, s[{WS}:{WS+1}], {WS_G}
    s_load_dwordx2 s[{DK}:{DK+1}], s[0:1], {KA['dskip']}
    s_load_dwordx2 s[{OS}:{OS+1}], s[0:1], {KA['out']}
    s_load_dwordx2 s[{WD}:{WD+1}], s[0:1], {KA['w_down']}
    s_load_dwordx2 s[{WGS}:{WGS+1}], s[0:1], {KA['w_gate']}
    s_load_dwordx2 s[{WUS}:{WUS+1}], s[0:1], {KA['w_up']}
    s_load_dwordx4 s[84:87], s[0:1], {KA['c_re']}
    v_mov_b32 v9, 0
    v_mov_b32 v8, 0
    v_mov_b32 v7, {L_FLAG}
    ds_write_b64 v7, v[8:9]
    ds_write_b64 v7, v[8:9] offset:8
    ds_write_b64 v7, v[8:9] offset:16
    ds_write_b64 v7, v[8:9] offset:24
    """)
    for s, nm in ((WS, 'ws'), (OS, 'out'), (WD, 'w_down'), (WGS, 'w_gate'), (WUS, 'w_up')):
        k(f"s_mov_b32 s{s+2}, {SZ[nm]}\ns_mov_b32 s{s+3}, 0x20000")
    NST, WUS0, WUSTEP = cfg.get("nst", 4), cfg.get("wu0", 3), cfg.get("wustep", 2)
    k(f"""
    s_mul_hi_u32 s70, s2, {(2**32 + 55) // 56}     ; kq
    s_mul_i32 s71, s70, 56
    s_sub_u32 s71, s2, s71                        ; cg
    s_lshl_b32 s72, s70, 8
    s_lshl_b32 s73, s30, 6
    s_add_u32 s72, s72, s73                       ; k0 = 256 kq + 64 w
    s_mul_i32 s73, s72, 7168
    s_lshl_b32 s74, s71, 7
    s_add_u32 s73, s73, s74
    s_cmp_ge_u32 s2, 224
    s_cselect_b32 s{WGS+2}, 0, s{WGS+2}
    s_cselect_b32 s{WUS+2}, 0, s{WUS+2}
    s_lshl_b32 s75, s30, 13
    s_lshl_b32 s69, s30, 12
    s_add_u32 s69, s69, {WS_RKEY}
    s_mul_i32 s80, s25, {(65536 + NST - 1) // NST}
    s_lshr_b32 s80, s80, 16
    s_mul_i32 s80, s80, {NST}
    s_sub_u32 s80, s25, s80
    s_mul_i32 s80, s80, {WUSTEP}
    s_add_u32 s80, s80, {WUS0}
    s_lshl_b32 s22, s27, 7                        ; 128 n
    s_mul_i32 s35, s26, 28
    s_mul_i32 s34, s30, 7
    s_add_u32 s35, s35, s34
    s_lshl_b32 s35, s35, 14
    s_add_u32 s35, s35, s22
    s_lshl_b32 s23, s34, 10
    s_lshl_b32 s21, s30, 5
    s_add_u32 s21, s21, s20
    v_mul_u32_u24 v228, 7168, v3
    v_lshl_add_u32 v228, v4, 4, v228
    v_lshlrev_b32 v229, 4, v4
    v_lshl_add_u32 v229, v3, 11, v229             ; down slice offset
    v_lshlrev_b32 v19, 3, v4
    v_mov_b32 v{ONE}, 0x3f803f80
    v_mov_b32 v{AR}, 0
    v_mov_b32 v{AR+1}, 0
    v_mov_b32 v{AZ}, 0
    v_mov_b32 v{AZ+1}, 0
    """)
    XR = 232
    k(f"""
    s_lshr_b32 s56, s61, 7
    s_sub_u32 s56, s27, s56
    s_add_u32 s56, s56, 1
    s_and_b32 s56, s56, 15
    s_and_b32 s57, s56, 3
    s_lshl_b32 s57, s57, 15
    s_lshl_b32 s58, s31, 13
    s_add_u32 s57, s57, s58
    s_lshl_b32 s58, s32, 10
    s_add_u32 s57, s57, s58
    v_lshrrev_b32 v6, 4, v1
    v_and_b32 v230, 1, v6
    v_lshrrev_b32 v231, 1, v6
    v_lshlrev_b32 v231, 11, v231
    v_lshl_add_u32 v231, v230, 8, v231
    v_lshl_add_u32 v230, s32, 2, v230
    v_bfe_u32 v8, v1, 1, 3
    v_xor_b32 v230, v230, v8
    v_lshl_add_u32 v230, v230, 4, v231
    v_and_b32 v8, 1, v1
    v_lshl_add_u32 v230, v8, 3, v230
    v_add_u32 v230, s57, v230
    v_xor_b32 v231, 32, v230
    s_getpc_b64 s[58:59]
    L_xpc:
    s_add_u32 s58, s58, L_xsub - L_xpc
    s_addc_u32 s59, s59, 0
    """)
    def xcall(slot):
        L = k.label("x")
        k(f"s_cmp_lg_u32 s56, {slot}\ns_cbranch_scc1 {L}\ns_swappc_b64 s[66:67], s[58:59]\n{L}:")
    vm.wait("rt")
    for q in range(8): k(f"v_and_b32 v{GL+q}, 0xffff, v{GW+q}\nv_and_b32 v{GH+q}, 0xffff0000, v{GW+q}")
    for i in range(8):
        t = T0 + 4*(i & 1)
        for r in range(2):
            k(f"v_dot2_f32_bf16 v{t+2*r}, v{X0+8*r+i}, v{GL+i}, 0\nv_dot2_f32_bf16 v{t+2*r+1}, v{X0+8*r+i}, v{GH+i}, 0")
        for r in range(2): k(f"v_dot2c_f32_bf16 v{AR+r}, v{X0+8*r+i}, v{WR+i}")
        if i:
            for r in range(2): k(f"v_dot2c_f32_bf16 v{AZ+r}, v{T0+4*((i-1)&1)+2*r}, v{ONE}")
        for r in range(2): k(f"v_cvt_pk_bf16_f32 v{t+2*r}, v{t+2*r}, v{t+2*r+1}")
    for r in range(2): k(f"v_dot2c_f32_bf16 v{AZ+r}, v{T0+4+2*r}, v{ONE}")
    if cfg.get("st1mid", 1): stage(1)
    wave_sum(k, [AR, AR+1, AZ, AZ+1])
    k(f"""
    v_readlane_b32 s66, v{AR+1}, 63
    v_readlane_b32 s67, v{AZ+1}, 63
    v_sub_u32 v{T0+2}, 63, v1
    v_add_u32 v{T0+3}, s62, v{T0+2}
    v_sub_u32 v{T0+3}, 2047, v{T0+3}
    v_lshl_add_u32 v{T0+2}, s30, 1, v{T0+2}
    v_lshlrev_b32 v{T0+2}, 3, v{T0+2}
    v_add_u32 v{T0+2}, {L_RT}, v{T0+2}
    v_writelane_b32 v{AR}, s66, 62
    v_writelane_b32 v{AZ}, s67, 62
    v_cvt_pk_bf16_f32 v{AR}, v{AR}, v{AZ}
    v_and_b32 v{AZ}, 0xffff0000, v{AR}
    v_lshlrev_b32 v{AR}, 16, v{AR}
    v_ashrrev_i32 v{T0}, 31, v{AR}
    v_or_b32 v{T0}, 0x80000000, v{T0}
    v_xor_b32 v{T0}, v{T0}, v{AR}
    v_and_b32 v{T0}, 0xffff0000, v{T0}
    v_or_b32 v{T0}, v{T0}, v{T0+3}
    """)
    sigmoid_bf16(k, T0+4, AZ, T0+3)
    k(f"""
    v_sub_f32 v{T0+5}, 1.0, v{T0+4}
    v_cvt_pk_bf16_f32 v{T0+1}, v{T0+4}, v{T0+5}
    s_mov_b32 exec_lo, 0
    s_mov_b32 exec_hi, 0xc0000000
    ds_write_b64 v{T0+2}, v[{T0}:{T0+1}]
    s_mov_b64 exec, -1
    s_and_b32 s62, s62, 0xfff8
    s_lshl_b32 s62, s62, 3
    v_add_u32 v21, {L_RT}, v19
    """)
    if not cfg.get("st1mid", 1): stage(1)
    stamp(k, cfg, 11)
    vm.wait("st0", "lgkmcnt(0)")
    stamp(k, cfg, 0)
    k(f"s_barrier\nds_read_b64 v[{T0}:{T0+1}], v21")
    stage(2)
    stage(3)
    k(f"""
    s_mul_i32 s{TAG}, s{TAG}, 1664525
    s_add_u32 s{TAG}, s{TAG}, 1013904223
    s_cmp_eq_u32 s32, 1
    s_cselect_b32 s84, s86, s84
    s_cselect_b32 s85, s87, s85
    s_add_u32 s84, s84, s64
    s_addc_u32 s85, s85, 0
    s_cmp_lg_u32 s30, 0
    s_cbranch_scc1 L_nopub
    s_add_u32 s66, s62, {WS_RKEY}
    s_add_u32 s67, s62, {WS_GATE}
    s_waitcnt lgkmcnt(0)
    v_mov_b32 v{T0+2}, v{T0+1}
    v_mov_b32 v{T0+1}, s{TAG}
    v_mov_b32 v{T0+3}, s{TAG}
    s_mov_b64 exec, 0xff
    buffer_store_dwordx2 v[{T0}:{T0+1}], v19, s[{WS}:{WS+3}], s66 offen sc1
    buffer_store_dwordx2 v[{T0+2}:{T0+3}], v19, s[{WS}:{WS+3}], s67 offen sc1
    s_mov_b64 exec, -1
    L_nopub:
    """)
    xcall(0)
    vm.wait("st1"); k("s_barrier")
    WUV, WDV = 128, 200
    k(f"""
    s_mov_b32 s81, 1
    s_mov_b32 s82, 0
    L_ld1:
    s_add_u32 m0, s60, s82
    s_add_u32 s83, s60, s82
    """)
    for j in range(4): k(f"buffer_load_dwordx4 v{10+j}, s[{XS}:{XS+3}], s61 offen offset:{j*1024} lds")
    k("s_add_u32 m0, s83, 16384\ns_add_u32 s82, s82, 32768")
    for j in range(4): k(f"buffer_load_dwordx4 v{14+j}, s[{BS}:{BS+3}], s61 offen offset:{j*1024} lds")
    k("s_and_b32 s82, s82, 131071\ns_add_u32 s61, s61, 128\ns_and_b32 s61, s61, 2047")
    k("s_cmp_lg_u32 s80, s81\ns_cbranch_scc1 L_nowu")
    for j in range(8):
        k(f"s_add_u32 s74, s73, {j*8*7168}\nbuffer_load_dwordx4 v[{WUV+4*j}:{WUV+4*j+3}], v228, s[{WUS}:{WUS+3}], s74 offen nt")
    for j in range(7):
        k(f"buffer_load_dwordx4 v[{WDV+4*j}:{WDV+4*j+3}], v229, s[{WD}:{WD+3}], s35 offen nt")
        if j < 6: k("s_add_u32 s35, s35, 16384")
    k("L_nowu:")
    xcall("s81")
    stamp_loop(k, cfg, 12, 81)
    k("s_add_u32 s81, s81, 1\ns_cmp_lt_u32 s81, 13\ns_waitcnt vmcnt(16)\ns_barrier\ns_cbranch_scc1 L_ld1")
    vm.q = ["st14"] * 8 + ["st15"] * 8
    KEY, DRAW, GG = 80, 248, 250
    def key_loads(tag):
        for q in range(4):
            t = f"buffer_load_dwordx4 v[{KEY+4*q}:{KEY+4*q+3}], v18, s[{WS}:{WS+3}], s69 offen offset:{q*1024} sc1"
            vm.issue(tag, t) if tag else k(t)
    key_loads("keys")
    k(f"""
    v_and_b32 v13, 15, v1                    ; cl
    v_lshlrev_b32 v12, 3, v13
    v_lshlrev_b32 v11, 3, v1
    s_lshl_b32 s34, s21, 3
    s_add_u32 s34, s34, {WS_GATE}
    """)
    vm.issue("ep", f"buffer_load_dwordx2 v[{GG}:{GG+1}], v11, s[{WS}:{WS+3}], s34 offen sc1")
    vm.issue("ep", f"buffer_load_dwordx2 v[{DRAW}:{DRAW+1}], v12, s[{DK}:{DK+3}], s22 offen")
    def wg_dma():
        for j in range(8):
            k(f"s_add_u32 m0, s75, {L_WG + j*1024}\ns_add_u32 s74, s73, {j*8*7168}")
            vm.issue("wg", f"buffer_load_dwordx4 v228, s[{WGS}:{WGS+3}], s74 offen nt lds")
    wg_dma()
    xcall(13)
    vm.wait("st14"); k("s_barrier")
    xcall(14)
    k("v_add_u32 v33, s75, v18")
    for j in range(8): k(f"ds_write_b128 v33, v[{WUV+4*j}:{WUV+4*j+3}] offset:{L_WU + j*1024}")
    k(f"""
    s_mov_b32 s{CS}, s84
    s_mov_b32 s{CS+1}, s85
    s_sub_u32 s{CS+2}, {SZ['c_re']}, s64
    s_lshl_b32 s60, s32, 13
    s_lshl_b32 s35, s31, 12
    s_add_u32 s60, s60, s35
    s_add_u32 s60, s60, {L_C}
    """)
    k(ROT[cfg.get("rot2", "xc1")])
    k(f"s_and_b32 s61, s61, 15\ns_lshl_b32 s61, s61, 7")
    vm.wait("st15"); k("s_barrier")
    def stage2(i):
        k(f"s_add_u32 m0, s60, {(i % 4) * 16384}")
        for j in range(4): vm.issue(f"c{i}", f"buffer_load_dwordx4 v{14+j}, s[{CS}:{CS+3}], s61 offen offset:{j*1024} lds")
        if i < 15: k("s_add_u32 s61, s61, 128\ns_and_b32 s61, s61, 2047")
    stage2(0); stage2(1)
    xcall(15)
    vm.wait("keys")
    k(f"s_mov_b32 s68, {SPIN}\nL_keypoll:")
    k(f"v_xor_b32 v20, s{TAG}, v{KEY+1}")
    for q in range(1, 8): k(f"v_xor_b32 v21, s{TAG}, v{KEY+2*q+1}\nv_or_b32 v20, v20, v21")
    k("v_cmp_ne_u32 vcc, 0, v20\ns_cbranch_vccz L_keyok\ns_sub_u32 s68, s68, 1\ns_cbranch_scc1 L_keyok")
    key_loads(None)
    k("s_waitcnt vmcnt(0)\ns_branch L_keypoll\nL_keyok:")
    k(f"""
    s_or_b32 s66, s2, s30
    s_cmp_lg_u32 s66, 0
    s_cbranch_scc1 L_nogen
    v_mov_b32 v20, s{TAG}
    s_mov_b64 exec, 1
    buffer_store_dword v20, v9, s[{WS}:{WS+3}], 0 offen offset:{WS_G} sc1
    s_mov_b64 exec, -1
    L_nogen:
    s_mov_b32 s76, 0
    s_mov_b64 s[78:79], 1
    L_top:
    """)
    for i in range(8): k(f"v_subrev_u32 v{22+i}, s76, v{KEY+2*i}")
    k("v_max3_u32 v22, v22, v23, v24\nv_max3_u32 v25, v25, v26, v27\nv_max3_u32 v22, v22, v28, v29\nv_max_u32 v22, v22, v25")
    for m, rm in (("row_shr:1", 0xf), ("row_shr:2", 0xf), ("row_shr:4", 0xf), ("row_shr:8", 0xf), ("row_bcast:15", 0xa), ("row_bcast:31", 0xc)):
        k(f"v_max_u32_dpp v22, v22, v22 {m} row_mask:{rm:#x} bank_mask:0xf")
    k(f"""
    v_readlane_b32 s77, v22, 63
    s_mov_b64 exec, s[78:79]
    s_add_u32 s76, s76, s77
    v_mov_b32 v30, s76
    s_mov_b64 exec, -1
    s_lshl_b32 s78, s78, 1
    s_cmp_lg_u32 s78, 256
    s_cbranch_scc1 L_top
    s_lshl_b32 s76, s30, 5
    v_lshl_add_u32 v32, v1, 2, s76
    v_add_u32 v32, {L_CAND}, v32
    v_mov_b32 v35, 1
    s_mov_b64 exec, 0xff
    ds_write_b32 v32, v30
    s_mov_b64 exec, 1
    ds_add_u32 v7, v35 offset:20
    s_mov_b64 exec, -1
    v_and_b32 v32, 31, v1
    v_lshlrev_b32 v32, 2, v32
    v_add_u32 v32, {L_CAND}, v32
    v_lshrrev_b32 v33, 5, v1
    v_lshlrev_b32 v33, 6, v33
    v_add_u32 v33, {L_CAND}, v33
    s_add_u32 s76, s76, {L_SORT}
    """)
    lds_spin(k, "cand", "ds_read_b32 v35, v7 offset:20\nds_read_b32 v34, v32\n" +
             "\n".join(f"ds_read_b128 v[{36+4*q}:{39+4*q}], v33 offset:{16*q}" for q in range(4)), (77, 35), "s_cmp_lg_u32 s77, 4")
    k("v_mov_b32 v35, 0")
    for q in range(16):
        sp = 78 + 2*(q % 3)
        k(f"v_cmp_gt_u32 s[{sp}:{sp+1}], v{36+q}, v34")
        if q >= 2: k(f"v_addc_co_u32 v35, vcc, 0, v35, s[{78+2*((q-2)%3)}:{79+2*((q-2)%3)}]")
    for q in (14, 15): k(f"v_addc_co_u32 v35, vcc, 0, v35, s[{78+2*(q%3)}:{79+2*(q%3)}]")
    IDX, RSG, XA = 252, 253, 36
    k(f"""
    v_mov_b32 v36, v35
    v_lshlrev_b32 v32, 4, v6
    s_nop 0
    v_permlane32_swap_b32 v35, v36
    v_add_u32 v35, v35, v36
    v_cmp_gt_u32 vcc, 8, v35
    v_lshl_add_u32 v35, v35, 2, s76
    v_lshl_add_u32 v36, v4, 2, s76
    s_and_saveexec_b64 s[66:67], vcc
    ds_write_b32 v35, v34
    s_mov_b64 exec, -1
    ds_read_b32 v30, v36
    s_lshl_b32 s76, s72, 1
    s_waitcnt lgkmcnt(0)
    v_and_b32 v{IDX}, 0x7ff, v30
    v_sub_u32 v{IDX}, 2047, v{IDX}
    v_lshl_add_u32 v32, v{IDX}, 11, v32
    """)
    for s_ in range(2):
        vm.issue("xs", f"buffer_load_dwordx4 v[{XA+4*s_}:{XA+4*s_+3}], v32, s[{XF}:{XF+3}], s76 offen offset:{s_*64}")
    stamp(k, cfg, 1)
    k("""
    v_ashrrev_i32 v33, 31, v30
    v_not_b32 v33, v33
    v_or_b32 v33, 0x80000000, v33
    v_xor_b32 v33, v33, v30
    v_and_b32 v33, 0xffff0000, v33
    """)
    sigmoid_bf16(k, RSG, 33, 35)
    k(f"""
    v_bfe_u32 v34, v1, 2, 2
    v_lshl_add_u32 v33, v6, 3, v34
    v_lshlrev_b32 v33, 7, v33
    v_and_b32 v34, 3, v1
    v_lshl_add_u32 v5, v34, 3, v33
    v_add_u32 v33, s75, v5
    s_cmp_ge_u32 s2, 224
    s_cbranch_scc1 L_gudone
    """)
    D = 96; FB = 160
    q0 = list(vm.q)
    for mat, base in ((1, L_WU), (0, L_WG)):
        if mat == 0: vm.wait("wg")
        for s in range(2):
            for cb in range(4):
                for hh in range(2):
                    b = FB + (s*4+cb)*4 + 2*hh
                    k(f"ds_read_b64_tr_b16 v[{b}:{b+1}], v33 offset:{base + (32*s+4*hh)*128 + cb*32}")
        vm.wait("xs")
        for s in range(2):
            k(f"s_waitcnt lgkmcnt({8*(1-s)})")
            for cb in range(4):
                b = FB + (s*4+cb)*4; d = D + (mat*4+cb)*4
                k(f"v_mfma_f32_16x16x32_bf16 v[{d}:{d+3}], v[{XA+4*s}:{XA+4*s+3}], v[{b}:{b+3}], {'0' if s == 0 else f'v[{d}:{d+3}]'}")
    k(f"v_lshl_add_u32 v34, v1, 4, s75\ns_mov_b64 exec, 0xffffffff")
    for b in range(8): k(f"ds_write_b128 v34, v[{D+4*b}:{D+4*b+3}] offset:{L_WG + b*512}")
    k(f"""
    s_mov_b64 exec, 1
    v_mov_b32 v35, 1
    ds_add_rtn_u32 v35, v7, v35 offset:16
    s_mov_b64 exec, -1
    s_waitcnt lgkmcnt(0)
    v_readfirstlane_b32 s76, v35
    s_cmp_lg_u32 s76, 3
    s_cbranch_scc1 L_gudone
    """)
    for w in range(4):
        for i in range(4): k(f"ds_read_b128 v[{D+16*w+4*i}:{D+16*w+4*i+3}], v18 offset:{L_WG + w*8192 + i*1024}")
    k(f"""
    v_lshrrev_b32 v35, 5, v1
    v_lshlrev_b32 v35, 13, v35
    v_and_b32 v36, 31, v1
    v_lshl_add_u32 v35, v36, 4, v35
    s_lshl_b32 s76, s71, 15
    s_lshl_b32 s77, s70, 11
    s_add_u32 s76, s76, s77
    s_add_u32 s76, s76, {WS_GU}
    s_add_u32 s77, s76, 16384
    v_mov_b32 v42, s{TAG}
    v_mov_b32 v43, s{TAG}
    v_mov_b32 v46, s{TAG}
    v_mov_b32 v47, s{TAG}
    s_waitcnt lgkmcnt(0)
    """)
    for i in range(4):
        for ab in range(2):
            a = D + 4*i + 2*ab; o = 40 + 4*ab
            k(pk("add", a, a, a+16)); k(pk("add", a+32, a+32, a+48)); k(pk("add", o, a, a+32))
            k(f"buffer_store_dwordx4 v[{o}:{o+3}], v35, s[{WS}:{WS+3}], s{76 + (i&1)} offen offset:{ab*1024 + (i>>1)*512} sc1")
    k("L_gudone:")
    vm.q = q0
    stamp(k, cfg, 2)
    GR, DR, E1, T = 100, 116, 120, 152
    vm.wait("ep")
    k(f"""
    s_mov_b32 s68, {SPIN}
    L_gpoll:
    v_cmp_ne_u32 vcc, s{TAG}, v{GG+1}
    s_and_b32 vcc_hi, vcc_hi, 0
    s_cbranch_vccz L_gok
    s_sub_u32 s68, s68, 1
    s_cbranch_scc1 L_gok
    buffer_load_dwordx2 v[{GG}:{GG+1}], v11, s[{WS}:{WS+3}], s34 offen sc1
    s_waitcnt vmcnt(0)
    s_branch L_gpoll
    L_gok:
    v_lshlrev_b32 v8, 2, v6
    """)
    for g_ in range(8): k(f"ds_bpermute_b32 v{GR+2*g_}, v8, v{GG} offset:{16*g_}")
    k(f"""
    v_and_b32 v{DR+3}, 0xffff0000, v{DRAW+1}
    v_lshlrev_b32 v{DR+2}, 16, v{DRAW+1}
    v_and_b32 v{DR+1}, 0xffff0000, v{DRAW}
    v_lshlrev_b32 v{DR}, 16, v{DRAW}
    s_cmp_ge_u32 s2, 224
    s_cselect_b32 s67, 0, 4
    """)
    lds_spin(k, "wd", "ds_read_b32 v20, v7 offset:16", (33, 20), "s_cmp_lg_u32 s33, s67")
    k(f"v_add_u32 v20, s23, v18")
    for j in range(7): k(f"ds_write_b128 v20, v[{WDV+4*j}:{WDV+4*j+3}] offset:{L_WD + j*1024}")
    for g_ in range(8): k(f"v_and_b32 v{GR+2*g_+1}, 0xffff0000, v{GR+2*g_}\nv_lshlrev_b32 v{GR+2*g_}, 16, v{GR+2*g_}")
    def e1_group(x, gp, e, b=None):
        for h in range(2):
            k(f"v_lshlrev_b32 v{T}, 16, v{x+h}\nv_and_b32 v{T+1}, 0xffff0000, v{x+h}")
            k(pk("mul", T+2, T, DR+2*h))
            k(pk("mul", T, gp, T if b is None else b+2*h, sa=1))
            k(f"""
            v_cvt_pk_bf16_f32 v{T+2}, v{T+2}, v{T+3}
            v_cvt_pk_bf16_f32 v{T}, v{T}, v{T+1}
            v_and_b32 v{T+3}, 0xffff0000, v{T+2}
            v_lshlrev_b32 v{T+2}, 16, v{T+2}
            v_and_b32 v{T+1}, 0xffff0000, v{T}
            v_lshlrev_b32 v{T}, 16, v{T}
            """)
            k(pk("fma", e+2*h, gp, T+2, T, sa=0))
    NPRE = cfg.get("e1pre", 0)
    for g_ in range(NPRE): e1_group(XR + 2*g_, GR + 2*g_, E1 + 4*g_)
    YP, TX, TG, TE, TR_ = 20, 160, 162, 164, 168
    k(f"""
    v_bfrev_b32 v2, 1
    v_subrev_u32 v8, s21, v{IDX}
    v_lshlrev_b32 v{T}, v8, 1
    v_cmp_gt_u32 vcc, 32, v8
    v_cndmask_b32 v{T}, 0, v{T}, vcc
    v_or_b32_dpp v{T}, v{T}, v{T} row_shr:1 row_mask:0xf bank_mask:0xf
    v_or_b32_dpp v{T}, v{T}, v{T} row_shr:2 row_mask:0xf bank_mask:0xf
    v_or_b32_dpp v{T}, v{T}, v{T} row_shr:4 row_mask:0xf bank_mask:0xf
    v_lshlrev_b32 v8, v6, 1
    v_readlane_b32 s33, v{T}, 7
    """)
    for g_ in range(8): k(f"s_lshr_b32 s66, s33, {4*g_}\nv_and_b32 v{170+g_}, s66, v8")
    k(f"""
    s_add_u32 s33, s30, 4
    v_readlane_b32 s66, v{IDX}, s30
    v_readlane_b32 s67, v{RSG}, s30
    v_readlane_b32 s68, v{IDX}, s33
    v_readlane_b32 s69, v{RSG}, s33
    v_mov_b32 v10, s66
    v_mov_b32 v{TR_}, s67
    s_mov_b32 exec_lo, 0
    v_mov_b32 v10, s68
    v_mov_b32 v{TR_}, s69
    s_mov_b32 exec_lo, -1
    v_subrev_u32 v3, s20, v10
    v_cmp_gt_u32 vcc, 0x80, v3
    v_lshrrev_b32 v11, 5, v1
    v_lshlrev_b32 v11, 19, v11
    v_and_b32 v19, 1, v6
    v_lshl_add_u32 v11, v19, 12, v11
    v_lshl_add_u32 v11, v13, 5, v11
    s_mov_b64 s[52:53], vcc
    v_cndmask_b32 v11, v2, v11, vcc
    v_lshl_add_u32 v19, v10, 11, v12
    v_cndmask_b32 v19, v2, v19, vcc          ; x address
    v_lshlrev_b32 v12, 3, v10
    v_cndmask_b32 v12, v2, v12, vcc
    v_mov_b32 v9, s{TAG}
    v_cndmask_b32 v9, 0, v9, vcc
    s_lshl_b32 s54, s30, 17
    s_lshl_b32 s66, s27, 13
    s_add_u32 s54, s54, s66
    s_add_u32 s54, s54, {WS_YP}
    s_lshl_b32 s70, s2, 13
    s_add_u32 s70, s70, {WS_GU}
    s_add_u32 s71, s70, 4096
    s_cmp_lt_u32 s2, 224
    s_cselect_b32 s73, s30, 1
    s_mul_i32 s72, s26, 7168
    s_mul_i32 s33, s30, 1792
    s_add_u32 s72, s72, s33
    s_add_u32 s72, s72, {WS_ACT}
    v_cmp_gt_u32 vcc, 48, v1
    v_cndmask_b32 v169, v2, v18, vcc
    s_mul_i32 s33, s30, 112
    v_add_u32 v8, s33, v1
    v_bfe_u32 v{T}, v8, 4, 1
    v_mul_u32_u24 v{T}, {4*ACT_ROW}, v{T}
    v_and_b32 v{T+1}, 15, v8
    v_lshl_add_u32 v{T}, v{T+1}, 1, v{T}
    v_and_b32 v8, 0x1e0, v8
    v_add_u32 v8, v8, v{T}
    v_add_u32 v254, {L_ACT}, v8              ; act write address
    v_mul_u32_u24 v8, {ACT_ROW}, v4
    v_lshl_add_u32 v8, v6, 4, v8
    v_add_u32 v255, {L_ACT}, v8              ; act fragment address
    s_lshl_b32 s33, s30, 5
    v_add_u32 v5, s33, v5                    ; down fragment address
    v_and_b32 v8, 1, v6
    v_lshlrev_b32 v8, 1, v8
    v_lshrrev_b32 v{T}, 1, v6
    v_add_u32 v8, v8, v{T}
    v_lshlrev_b32 v8, 18, v8
    v_lshl_add_u32 v231, v13, 3, v8          ; down partial address
    s_lshl_b32 s76, s27, 13
    s_lshl_b32 s77, s26, 9
    s_add_u32 s76, s76, s77
    s_lshl_b32 s77, s30, 7
    s_add_u32 s76, s76, s77
    s_add_u32 s76, s76, {WS_YP}
    s_add_u32 s77, s76, 131072
    """)
    vm.wait("c0", "lgkmcnt(0)")
    stamp(k, cfg, 3)
    k("s_barrier")
    AUX = cfg.get('aux2', 'gu,act,down,y').split(',')
    AF, BF, DD = 20, 48, 76
    GQ = 20
    def gu_loads():
        for kq in range(4):
            for ab in range(2):
                r = GQ + (kq*2+ab)*4
                k(f"buffer_load_dwordx4 v[{r}:{r+3}], v18, s[{WS}:{WS+3}], s{70 + (kq>>1)} offen offset:{(kq&1)*2048 + ab*1024} sc1")
    AG = 52
    def act_loads(tag):
        for r in range(2):
            t = f"buffer_load_dwordx4 v[{AG+4*r}:{AG+4*r+3}], v{(18, 169)[r]}, s[{WS}:{WS+3}], s72 offen offset:{r*1024} sc1"
            vm.issue(tag, t) if tag else k(t)
    mark = 0
    S_GU, S_ACT = cfg.get("s_gu", 0), cfg.get("s_act", 5)
    for i in range(13):
        if i == 0: stage2(2)
        stage2(i + 3)
        lg = ""
        if NPRE <= i + NPRE < 8: e1_group(XR + 2*(i+NPRE), GR + 2*(i+NPRE), E1 + 4*(i+NPRE))
        if i == S_GU and 'gu' in AUX:
            k("s_cmp_lg_u32 s73, 0\ns_cbranch_scc1 L_nogu1")
            gu_loads()
            k("L_nogu1:")
            mark = vm.total
        if i == S_GU + 2 and 'gu' in AUX:
            A0 = 60
            k(f"""
            s_cmp_lg_u32 s73, 0
            s_cbranch_scc1 L_nogu2
            v_mov_b32 v{A0+2}, s{TAG}
            v_mov_b32 v{A0+3}, s{TAG}
            s_mov_b32 s68, {SPIN}
            s_waitcnt vmcnt({vm.total - mark})
            L_gupoll:
            """)
            for q in range(8):
                k(f"v_cmp_ne_u64 {'vcc' if q == 0 else 's[66:67]'}, v[{GQ+4*q+2}:{GQ+4*q+3}], v[{A0+2}:{A0+3}]")
                if q: k("s_or_b64 vcc, vcc, s[66:67]")
            k("s_cbranch_vccz L_guok\ns_sub_u32 s68, s68, 1\ns_cbranch_scc1 L_guok")
            gu_loads()
            k("s_waitcnt vmcnt(0)\ns_branch L_gupoll\nL_guok:")
            for ab in range(2):
                a = GQ + 4*ab
                k(pk("add", a, a, a+8)); k(pk("add", a+16, a+16, a+24)); k(pk("add", a, a, a+16))
            for ab in range(2):
                g, u = GQ + 4*ab, GQ + 4*ab + 2
                k(f"v_cvt_pk_bf16_f32 v{g}, v{g}, v{g+1}\nv_mov_b32 v{u}, v{g}\nv_permlane32_swap_b32 v{g}, v{u}")
                k(f"""
                v_and_b32 v{g+1}, 0xffff0000, v{g}
                v_lshlrev_b32 v{g}, 16, v{g}
                v_and_b32 v{u+1}, 0xffff0000, v{u}
                v_lshlrev_b32 v{u}, 16, v{u}
                v_mul_f32 v{T+2}, {LOG2E ^ 0x80000000:#x}, v{g}
                v_mul_f32 v{T+3}, {LOG2E ^ 0x80000000:#x}, v{g+1}
                v_exp_f32 v{T+2}, v{T+2}
                v_exp_f32 v{T+3}, v{T+3}
                v_add_f32 v{T+2}, 1.0, v{T+2}
                v_add_f32 v{T+3}, 1.0, v{T+3}
                v_rcp_f32 v{T+2}, v{T+2}
                v_rcp_f32 v{T+3}, v{T+3}
                """)
                k(pk("mul", g, g, T+2))
                k(f"v_cvt_pk_bf16_f32 v{g}, v{g}, v{g+1}\nv_and_b32 v{g+1}, 0xffff0000, v{g}\nv_lshlrev_b32 v{g}, 16, v{g}")
                k(pk("mul", g, g, u))
                k(f"v_cvt_pk_bf16_f32 v{A0+ab}, v{g}, v{g+1}")
            k(f"""
            s_lshl_b32 s33, s2, 9
            s_add_u32 s33, s33, {WS_ACT}
            s_mov_b64 exec, 0xffffffff
            buffer_store_dwordx4 v[{A0}:{A0+3}], v18, s[{WS}:{WS+3}], s33 offen sc1
            s_mov_b64 exec, -1
            L_nogu2:
            """)
        if i == S_ACT and 'act' in AUX: act_loads("act")
        if i == S_ACT + 2 and 'act' in AUX:
            vm.wait("act")
            k(f"""
            v_mov_b32 v{T}, s{TAG}
            v_mov_b32 v{T+1}, s{TAG}
            s_mov_b32 s68, {SPIN}
            L_actpoll:
            v_cmp_ne_u64 vcc, v[{AG+2}:{AG+3}], v[{T}:{T+1}]
            v_cmp_ne_u64 s[66:67], v[{AG+6}:{AG+7}], v[{T}:{T+1}]
            s_and_b32 s67, s67, 0xffff
            s_or_b64 vcc, vcc, s[66:67]
            s_cbranch_vccz L_actok
            s_sub_u32 s68, s68, 1
            s_cbranch_scc1 L_actok
            """)
            act_loads(None)
            k("s_waitcnt vmcnt(0)\ns_branch L_actpoll\nL_actok:")
            for r in range(2):
                if r: k("s_mov_b32 exec_hi, 0xffff")
                for h in range(2): k(f"ds_write_b16 v254, v{AG+4*r+h} offset:{r*64 + 2*h*ACT_ROW}\nds_write_b16_d16_hi v254, v{AG+4*r+h} offset:{r*64 + (2*h+1)*ACT_ROW}")
            k("s_mov_b32 exec_hi, -1")
            lg = "lgkmcnt(0)"
        if i == S_ACT + 3 and 'down' in AUX:
            for s in range(7):
                k(f"ds_read_b128 v[{BF+4*s}:{BF+4*s+3}], v255 offset:{64*s}")
                for hh in range(2): k(f"ds_read_b64_tr_b16 v[{AF+4*s+2*hh}:{AF+4*s+2*hh+1}], v5 offset:{L_WD + (32*s+4*hh)*128}")
            for s in range(7):
                k(f"s_waitcnt lgkmcnt({min(15, 3*(6-s))})")
                k(f"v_mfma_f32_16x16x32_bf16 v[{DD}:{DD+3}], v[{BF+4*s}:{BF+4*s+3}], v[{AF+4*s}:{AF+4*s+3}], {'0' if s == 0 else f'v[{DD}:{DD+3}]'}")
            k(f"""
            v_mov_b32 v81, s{TAG}
            v_mov_b32 v83, s{TAG}
            v_mov_b32 v80, v{DD}
            v_mov_b32 v82, v{DD+1}
            s_mov_b32 exec_lo, 0
            v_mov_b32 v80, v{DD+2}
            v_mov_b32 v82, v{DD+3}
            s_mov_b32 exec_lo, -1
            """)
            vm.issue("yp", f"buffer_store_dwordx2 v[80:81], v231, s[{WS}:{WS+3}], s76 offen sc1")
            vm.issue("yp", f"buffer_store_dwordx2 v[82:83], v231, s[{WS}:{WS+3}], s77 offen sc1")
        if cfg.get("lstamps2"): stamp(k, cfg, 12 + i)
        vm.wait(f"c{i+1}", lg)
        k("s_barrier")
    def yloads():
        for q in range(8):
            for h in range(2):
                r = YP + 8*q + 4*h
                k(f"buffer_load_dwordx4 v[{r}:{r+3}], v11, s[{WS}:{WS+3}], s54 offen offset:{q*512+h*16} sc1")
    if 'y' not in AUX: k("s_mov_b64 s[52:53], 0")
    k(f"s_mov_b32 s66, {WS_GATE}\ns_cmp_eq_u64 s[52:53], 0\ns_cbranch_scc1 L_noy")
    yloads()
    k(f"buffer_load_dwordx2 v[{TX}:{TX+1}], v19, s[{XF}:{XF+3}], s22 offen")
    k(f"buffer_load_dword v{TG}, v12, s[{WS}:{WS+3}], s66 offen sc1")
    k(f"""
    s_waitcnt vmcnt({vm.count_after('c14') + 18})
    s_barrier
    s_waitcnt vmcnt(18)
    s_barrier
    s_branch L_yjoin
    L_noy:
    """)
    vm.wait("c14"); k("s_barrier")
    vm.wait("c15"); k("s_barrier")
    k("L_yjoin:")
    k(f"""
    v_lshlrev_b32 v14, 4, v13
    v_lshl_add_u32 v15, v10, 12, v14
    v_lshl_add_u32 v14, v6, 12, v14
    v_xor_b32 v16, v13, v6
    v_lshlrev_b32 v16, 4, v16
    v_lshl_add_u32 v16, v6, 8, v16
    s_lshl_b32 s33, s30, 13
    s_add_u32 s33, s33, {L_STG}
    v_add_u32 v16, s33, v16
    v_xor_b32 v17, 64, v16
    v_and_b32 v8, 7, v3
    v_xor_b32 v8, v8, v13
    v_lshlrev_b32 v8, 4, v8
    v_and_b32 v5, 0x7f, v3
    v_lshl_add_u32 v8, v5, 8, v8
    s_lshl_b32 s67, s27, 8
    s_lshl_b32 s69, s21, 12
    s_add_u32 s69, s69, s67
    """)
    for g_ in range(8): k(f"v_cmp_eq_u32 s[{70+2*g_}:{71+2*g_}], 0, v{170+g_}")
    stamp(k, cfg, 4)
    k(f"s_cmp_eq_u64 s[52:53], 0\ns_cbranch_scc1 L_notok\ns_mov_b32 s68, {SPIN}\nL_ypoll:\ns_waitcnt vmcnt(0)")
    k(f"v_xor_b32 v{T}, v9, v{YP+1}")
    for q in range(1, 32): k(f"v_xor_b32 v{T+1}, v9, v{YP+2*q+1}\nv_or_b32 v{T}, v{T}, v{T+1}")
    k(f"v_cmp_ne_u32 vcc, 0, v{T}\ns_cbranch_vccz L_yok\ns_sub_u32 s68, s68, 1\ns_cbranch_scc1 L_yok")
    yloads()
    k("s_branch L_ypoll\nL_yok:")
    for q in range(1, 8):
        for x in range(4): k(f"v_add_f32 v{YP+2*x}, v{YP+2*x}, v{YP+8*q+2*x}")
    for x in range(4): k(f"v_mov_b32 v{YP+2*x+1}, v{YP+2*x}")
    for x in range(4): k(f"v_permlane16_swap_b32 v{YP+2*x}, v{YP+2*x+1}")
    for x in range(4): k(f"v_add_f32 v{YP+8+x}, v{YP+2*x}, v{YP+2*x+1}")
    Y = YP + 8
    k(f"v_and_b32 v{TG+1}, 0xffff0000, v{TG}\nv_lshlrev_b32 v{TG}, 16, v{TG}")
    for h in range(2):
        y = Y + 2*h
        k(f"""
        v_cvt_pk_bf16_f32 v{y}, v{y}, v{y+1}
        v_and_b32 v{y+1}, 0xffff0000, v{y}
        v_lshlrev_b32 v{y}, 16, v{y}
        v_mul_f32 v{y}, v{y}, v{TR_}
        v_mul_f32 v{y+1}, v{y+1}, v{TR_}
        v_cvt_pk_bf16_f32 v{y}, v{y}, v{y+1}
        v_and_b32 v{y+1}, 0xffff0000, v{y}
        v_lshlrev_b32 v{y}, 16, v{y}
        v_lshlrev_b32 v{T}, 16, v{TX+h}
        v_and_b32 v{T+1}, 0xffff0000, v{TX+h}
        """)
        k(pk("add", y, y, T))
        k(f"v_cvt_pk_bf16_f32 v{y}, v{y}, v{y+1}\nv_and_b32 v{y+1}, 0xffff0000, v{y}\nv_lshlrev_b32 v{y}, 16, v{y}")
    e1_group(TX, TG, TE, b=Y)
    k("L_notok:")
    stamp(k, cfg, 5)
    k("s_barrier")
    A = 20
    for g_ in range(8): k(f"ds_read_b128 v[{A+4*g_}:{A+4*g_+3}], v{16 + (g_ & 1)} offset:{g_*1024}")
    k(f"ds_read_b128 v[{A+32}:{A+35}], v8 offset:{L_STG}")
    ONT = " " + cfg.get("ofl", "nt")
    for g_ in range(8):
        k(f"s_mov_b64 exec, s[{70+2*g_}:{71+2*g_}]\ns_waitcnt lgkmcnt({8-g_})")
        for h in range(2): k(pk("fma", A+4*g_+2*h, GR+2*g_, A+4*g_+2*h, E1+4*g_+2*h, sa=0))
        k(f"buffer_store_dwordx4 v[{A+4*g_}:{A+4*g_+3}], v14, s[{OS}:{OS+3}], s69 offen{ONT}\ns_add_u32 s69, s69, 16384")
    k(f"""
    s_and_b32 exec_lo, s52, 0xffff
    s_and_b32 exec_hi, s53, 0xffff
    s_cbranch_execz L_aend
    s_waitcnt lgkmcnt(0)
    """)
    for h in range(2): k(pk("fma", A+32+2*h, TG, A+32+2*h, TE+2*h, sa=0))
    k(f"buffer_store_dwordx4 v[{A+32}:{A+35}], v15, s[{OS}:{OS+3}], s67 offen{ONT}\nL_aend:")
    stamp(k, cfg, 6)
    if cfg.get("stamps") or cfg.get("dbgt"): k("s_waitcnt vmcnt(0)"); stamp(k, cfg, 7)
    stamp_flush(k, cfg, 0)
    k("s_endpgm\nL_xsub:")
    for g_ in range(8):
        k(f"ds_read_b64 v[{XR+2*g_}:{XR+2*g_+1}], v{230 + (g_ >> 2)} offset:{(32*(g_&1) + 4*(g_>>2) + ((g_>>1)&1))*128}")
    k("s_waitcnt lgkmcnt(0)\ns_setpc_b64 s[66:67]")

def compute(k, cfg):
    LRS, LIS, DTS, WS, ES, HS = 4, 8, 48, 16, 36, 40
    LR, LI, L8R, L8I, L16R, L16I, SR_, SI_, T1, T2 = 10, 12, 14, 16, 18, 20, 22, 24, 26, 28
    FR, ACC, GR = 32, 96, 160
    TB = lambda tp, cb: 200 + (tp*2+cb)*2
    WRs = lambda cb: 232 + 2*cb
    WIs = lambda cb: 236 + 2*cb
    VR_, VI_, L5R, L5I = 240, 242, 244, 246
    EXP = [248, 250, 252, 254]
    RAWR, RAWI = 32, 34
    k(f"""
    s_lshr_b32 s30, s29, 1       ; wm
    s_and_b32 s31, s29, 1        ; wn
    v_and_b32 v6, 15, v1         ; j
    v_lshrrev_b32 v7, 4, v1      ; q
    s_lshl_b32 s32, s27, 6
    s_lshl_b32 s33, s31, 5
    s_add_u32 s32, s32, s33
    s_lshl_b32 s32, s32, 1
    v_lshlrev_b32 v8, 1, v6
    v_lshlrev_b32 v196, 4, v1
    """)
    k(f"""
    s_waitcnt lgkmcnt(0)
    s_mov_b64 s[{LRS}:{LRS+1}], s[6:7]
    s_mov_b64 s[{DTS}:{DTS+1}], s[44:45]
    s_load_dword s44, s[{WS}:{WS+1}], {WS_G}
    """)
    for s in (LRS, LIS, DTS): k(f"s_mov_b32 s{s+2}, 2048\ns_mov_b32 s{s+3}, 0x20000")
    for cb in range(2):
        k(f"buffer_load_ushort v{T1+cb}, v8, s[{DTS}:{DTS+3}], s32 offen offset:{cb*32}")
        k(f"buffer_load_ushort v{RAWR+cb}, v8, s[{LRS}:{LRS+3}], s32 offen offset:{cb*32}")
        k(f"buffer_load_ushort v{RAWI+cb}, v8, s[{LIS}:{LIS+3}], s32 offen offset:{cb*32}")
    if cfg.get("codepf", 1):
        k(f"""
        s_getpc_b64 s[{LRS}:{LRS+1}]
        Lc_pc:
        s_sub_u32 s{LRS}, s{LRS}, Lc_pc - {NAME}_kernel
        s_subb_u32 s{LRS+1}, s{LRS+1}, 0
        s_mov_b32 s{LRS+2}, L_end - {NAME}_kernel
        s_lshl_b32 s33, s25, 10
        s_cmp_lg_u32 s29, 0
        s_cbranch_scc1 Lc_nopf
        buffer_load_dwordx4 v[92:95], v196, s[{LRS}:{LRS+3}], s33 offen
        Lc_nopf:
        """)
    k(f"""
    v_lshrrev_b32 v8, 1, v6
    v_xor_b32 v8, v8, v7
    v_lshlrev_b32 v8, 4, v8
    v_lshl_add_u32 v8, v6, 7, v8
    s_lshl_b32 s33, s30, 13
    s_lshl_b32 s34, s31, 13
    s_add_u32 s34, s34, 16384
    v_add_u32 v2, s33, v8
    v_add_u32 v4, s34, v8
    v_xor_b32 v3, 64, v2
    v_xor_b32 v5, 64, v4
    s_lshl_b32 s33, s27, 14
    s_add_u32 s33, s33, {WS_E}
    s_add_u32 s{ES}, s{WS}, s33
    s_addc_u32 s{ES+1}, s{WS+1}, 0
    s_mov_b32 s{ES+2}, 16384
    s_mov_b32 s{ES+3}, 0x20000
    s_add_u32 s33, s27, s26
    s_and_b32 s33, s33, 15
    s_lshl_b32 s33, s33, 2
    s_add_u32 s33, s33, s31
    s_lshl_b32 s33, s33, 3
    s_lshl_b32 s34, s26, 9
    s_add_u32 s33, s33, s34
    s_lshl_b32 s34, s30, 2
    s_add_u32 s33, s33, s34
    s_lshl_b32 s33, s33, 10
    s_add_u32 s33, s33, {WS_H}
    s_add_u32 s{HS}, s{WS}, s33
    s_addc_u32 s{HS+1}, s{WS+1}, 0
    s_mov_b32 s{HS+2}, {2*8192 + 4096}
    s_mov_b32 s{HS+3}, 0x20000
    """)
    for r in range(64): k(f"v_mov_b32 v{ACC+r}, 0")
    k("s_waitcnt vmcnt(0)")
    for cb in range(2):
        k(f"""
        v_lshlrev_b32 v{T1+cb}, 16, v{T1+cb}
        v_lshlrev_b32 v{RAWR+cb}, 16, v{RAWR+cb}
        v_lshlrev_b32 v{RAWI+cb}, 16, v{RAWI+cb}
        v_mul_f32 v{T1+cb}, {LOG2E:#x}, v{T1+cb}
        v_exp_f32 v{T1+cb}, v{T1+cb}
        """)
    k(f"v_cvt_pk_bf16_f32 v{T1}, v{T1}, v{T1+1}\nv_and_b32 v{T1+1}, 0xffff0000, v{T1}\nv_lshlrev_b32 v{T1}, 16, v{T1}")
    k(pk("mul", T2, T1, RAWI)); k(pk("mul", T1, T1, RAWR))
    for cb in range(2):
        k(f"""
        v_mul_f32 v{T1+cb}, {LOG2E:#x}, v{T1+cb}
        v_mul_f32 v{T2+cb}, {INV2PI:#x}, v{T2+cb}
        v_exp_f32 v{T1+cb}, v{T1+cb}
        v_rndne_f32 v{LR+cb}, v{T2+cb}
        v_sub_f32 v{T2+cb}, v{T2+cb}, v{LR+cb}
        v_cos_f32 v{LR+cb}, v{T2+cb}
        v_sin_f32 v{LI+cb}, v{T2+cb}
        """)
    k(pk("mul", LR, LR, T1)); k(pk("mul", LI, LI, T1))
    csq(k, L8R, L8I, LR, LI, T1); csq(k, L16R, L16I, L8R, L8I, T1); csq(k, L8R, L8I, L16R, L16I, T1); csq(k, L16R, L16I, L8R, L8I, T1)
    A_R, A_I, B_R, B_I, WR_, WI_, S2R, S2I, TT = 36, 38, 40, 42, 44, 46, 48, 50, 52
    k("s_lshl_b32 s33, s30, 2\nv_add_u32 v8, s33, v7")
    def sel_one(dr, di, sr, si, bit, v):
        k(f"v_and_b32 v9, {bit}, v{v}\nv_cmp_ne_u32 vcc, 0, v9")
        for cb in range(2): k(f"v_cndmask_b32 v{dr+cb}, 1.0, v{sr+cb}, vcc\nv_cndmask_b32 v{di+cb}, 0, v{si+cb}, vcc")
    sel_one(WR_, WI_, L16R, L16I, 1, 8)
    csq(k, A_R, A_I, L16R, L16I, TT)
    sel_one(SR_, SI_, A_R, A_I, 2, 8)
    cmul_cb(k, VR_, VI_, WR_, WI_, SR_, SI_)
    csq(k, B_R, B_I, A_R, A_I, TT)
    sel_one(SR_, SI_, B_R, B_I, 4, 8)
    cmul_cb(k, WR_, WI_, VR_, VI_, SR_, SI_)
    csq(k, A_R, A_I, B_R, B_I, TT)
    sel_one(S2R, S2I, A_R, A_I, 1, 7)
    csq(k, B_R, B_I, A_R, A_I, TT)
    sel_one(SR_, SI_, B_R, B_I, 2, 7)
    cmul_cb(k, VR_, VI_, S2R, S2I, SR_, SI_)
    csq(k, L5R, L5I, B_R, B_I, TT)
    cmul_cb(k, A_R, A_I, WR_, WI_, L8R, L8I)
    for cb in range(2):
        k(f"v_mov_b32 v{WRs(cb)}, v{WR_+cb}\nv_mov_b32 v{WRs(cb)+1}, v{A_R+cb}\nv_mov_b32 v{WIs(cb)}, v{WI_+cb}\nv_mov_b32 v{WIs(cb)+1}, v{A_I+cb}")
    for cb in range(2):
        k(f"v_max_f32 v{T1+cb}, |v{RAWR+cb}|, |v{RAWI+cb}|\nv_rcp_f32 v{T2+cb}, v{T1+cb}")
    k(pk("mul", RAWR, RAWR, T2)); k(pk("mul", RAWI, RAWI, T2))
    k(pk("mul", T2, RAWR, RAWR)); k(pk("fma", T2, RAWI, RAWI, T2)); k(pk("mul", T2, T2, T1))
    for cb in range(2): k(f"v_rcp_f32 v{T2+cb}, v{T2+cb}\nv_add_f32 v{T1+cb}, -1.0, v{LR+cb}")
    k(pk("add", T2, T2, T2))
    k(pk("mul", SR_, T1, RAWR)); k(pk("mul", SI_, LI, RAWR)); k(pk("fma", SR_, LI, RAWI, SR_)); k(pk("fma", SI_, T1, RAWI, SI_, na=3))
    k(pk("mul", SR_, SR_, T2)); k(pk("mul", SI_, SI_, T2))
    for cb in range(2):
        k(f"v_mov_b32 v{T1+2*cb}, v{SR_+cb}\nv_mov_b32 v{T1+2*cb+1}, v{SI_+cb}")
    for tp in range(8):
        for cb in range(2):
            src = T1 + 2*cb if tp == 0 else TB(tp-1, cb)
            k(pk("mul", TB(tp,cb), LR, src, sa=cb))
        for cb in range(2):
            src = T1 + 2*cb if tp == 0 else TB(tp-1, cb)
            k(pk("fma", TB(tp,cb), LI, src, TB(tp,cb), sa=cb, sb='x', nb=1))
    k(f"""
    s_waitcnt lgkmcnt(0)
    s_mul_i32 s44, s44, 1664525
    s_add_u32 s44, s44, 1013904223
    s_sub_u32 s33, s26, 1
    v_sub_u32 v8, s33, v7
    v_lshlrev_b32 v8, 10, v8
    v_lshl_add_u32 v8, v6, 4, v8
    s_lshl_b32 s33, s31, 9
    v_add_u32 v192, s33, v8
    v_add_u32 v193, -4096, v192
    v_add_u32 v194, -8192, v192
    v_add_u32 v195, -12288, v192
    v_mov_b32 v9, s44
    """)
    for i in range(4):
        k(f"v_cmp_le_i32 vcc, 0, v{192+i}\nv_cndmask_b32 v{EXP[i]}, 0, v9, vcc\nv_cndmask_b32 v{EXP[i]+1}, 0, v9, vcc")
    k(f"""
    s_lshl_b32 s33, s31, 8
    s_add_u32 s33, s33, {L_EX}
    v_lshl_add_u32 v30, v6, 3, s33          ; e[0][ch]
    s_lshl_b32 s33, s30, 11
    v_lshl_add_u32 v31, v7, 9, s33
    v_add_u32 v31, v31, v30                 ; e[seg][ch]
    s_lshl_b32 s33, s29, 2
    s_add_u32 s34, s33, {L_FLAG}
    v_mov_b32 v8, s34
    s_xor_b32 s34, s34, 8
    v_mov_b32 v9, s34
    """)
    stamp(k, cfg, 11)
    if cfg.get("prio", 1): k(f"s_setprio {cfg.get('prio', 1)}")
    k("s_barrier")
    stamp(k, cfg, 0)
    def rd(sub, fs, slot):
        b = FR + 32*fs; o = slot*32768
        A = [f"ds_read_b128 v[{b+4*m}:{b+4*m+3}], v{2+sub} offset:{o+m*2048}" for m in range(4)]
        B = [f"ds_read_b128 v[{b+16+4*m}:{b+16+4*m+3}], v{4+sub} offset:{o+m*2048}" for m in range(4)]
        return [A[0], B[0], B[1], B[2], B[3], A[1], A[2], A[3]]
    def mm(fs):
        b = FR + 32*fs; out = []
        for mb in range(4):
            for x in (range(4) if mb % 2 == 0 else range(3, -1, -1)):
                ri, cb = x >> 1, x & 1
                a = ACC + (cb*2+ri)*16 + mb*4
                out.append(f"v_mfma_f32_16x16x32_bf16 v[{a}:{a+3}], v[{b+4*mb}:{b+4*mb+3}], v[{b+16+4*x}:{b+16+4*x+3}], v[{a}:{a+3}]")
        return out
    for l in rd(0, 0, 0): k(l)
    k("s_mov_b32 s35, 0\nLc_loop:")
    BAR = cfg.get("bar1", 3)
    for half in range(2):
        m = mm(0); r = rd(1, 1, half)
        k("s_waitcnt lgkmcnt(0)")
        for i in range(16):
            k(m[i])
            if i < 8: k(r[i])
        m = mm(1)
        if half == 0: r = rd(0, 0, 1)
        else: r = rd(0, 0, 0)
        k("s_waitcnt lgkmcnt(0)")
        for i in range(16):
            k(m[i])
            if half == 1 and i == 0:
                for a in range(2, 6): k(f"v_xor_b32 v{a}, 0x10000, v{a}")
            if i == BAR - 1:
                if half == 0: k("s_barrier")
                else: k("s_cmp_eq_u32 s35, 7\ns_cbranch_scc1 Lc_nobar\ns_barrier\nLc_nobar:")
            if BAR <= i < BAR + 8: k(r[i - BAR])
    stamp_loop(k, cfg, 12, 35)
    k("s_add_u32 s35, s35, 1\ns_cmp_lt_u32 s35, 8\ns_cbranch_scc1 Lc_loop")
    stamp(k, cfg, 1)
    U = lambda cb, ri, tp: ACC + (cb*2+ri)*16 + 2*tp
    def lb_loads():
        for i in range(4):
            for cb in range(2):
                g = GR + (i*2+cb)*4
                k(f"buffer_load_dwordx4 v[{g}:{g+3}], v{192+i}, s[{ES}:{ES+3}], 0 offen offset:{cb*256} sc1")
    k("s_waitcnt lgkmcnt(0)")
    for tp in range(1, 8):
        for ri_first in (0,):
            for cb in range(2): k(pk("fma", U(cb,0,tp), LR, U(cb,0,tp-1), U(cb,0,tp), sa=cb))
            for cb in range(2): k(pk("fma", U(cb,1,tp), LR, U(cb,1,tp-1), U(cb,1,tp), sa=cb))
            for cb in range(2): k(pk("fma", U(cb,0,tp), LI, U(cb,1,tp-1), U(cb,0,tp), sa=cb, na=3))
            for cb in range(2): k(pk("fma", U(cb,1,tp), LI, U(cb,0,tp-1), U(cb,1,tp), sa=cb))
    for cb in range(2):
        e = T1 + 2*cb; r0, i0 = U(cb,0,7), U(cb,1,7)
        k(f"""
        v_fma_f32 v{e}, v{L8R+cb}, v{r0}, v{r0+1}
        v_fma_f32 v{e+1}, v{L8R+cb}, v{i0}, v{i0+1}
        v_fma_f32 v{e}, -v{L8I+cb}, v{i0}, v{e}
        v_fma_f32 v{e+1}, v{L8I+cb}, v{r0}, v{e+1}
        """)
    k(f"""
    ds_write_b64 v31, v[{T1}:{T1+1}]
    ds_write_b64 v31, v[{T1+2}:{T1+3}] offset:128
    ds_write_b32 v8, v8
    s_mov_b32 s45, {SPIN}
    Lc_expoll:
    ds_read_b32 v8, v9
    """)
    EV = lambda s, cb: FR + (s*2+cb)*2
    for s in range(8):
        for cb in range(2): k(f"ds_read_b64 v[{EV(s,cb)}:{EV(s,cb)+1}], v30 offset:{s*512+cb*128}")
    k(f"""
    s_waitcnt lgkmcnt(0)
    v_readfirstlane_b32 s33, v8
    s_sub_u32 s45, s45, 1
    s_cbranch_scc1 Lc_exok
    s_cmp_eq_u32 s33, 0
    s_cbranch_scc1 Lc_expoll
    Lc_exok:
    """)
    for s in range(1, 8):
        for cb in range(2): cfma_ri(k, EV(s,cb), L16R, L16I, cb, EV(s-1,cb), EV(s,cb), EV(s,cb))
    k(f"""
    s_cmp_eq_u32 s30, 0
    s_cbranch_scc1 Lc_nopub
    s_cmp_eq_u32 s26, 15
    s_cbranch_scc1 Lc_nopub
    v_mov_b32 v{T1}, v{EV(7,0)}
    v_mov_b32 v{T1+1}, v{EV(7,0)+1}
    v_mov_b32 v{T1+2}, s44
    v_mov_b32 v{T1+3}, s44
    s_lshl_b32 s33, s26, 10
    s_lshl_b32 s34, s31, 9
    s_add_u32 s33, s33, s34
    s_mov_b64 exec, 0xffff0000
    v_mov_b32 v{T1}, v{EV(7,1)}
    v_mov_b32 v{T1+1}, v{EV(7,1)+1}
    s_mov_b64 exec, 0xffffffff
    buffer_store_dwordx4 v[{T1}:{T1+3}], v196, s[{ES}:{ES+3}], s33 offen sc1
    s_mov_b64 exec, -1
    Lc_nopub:
    """)
    stamp(k, cfg, 2)
    PL = FR + 28
    k(f"v_mov_b32 v{PL}, 0\nv_mov_b32 v{PL+1}, 0\nv_mov_b32 v{PL+2}, 0\nv_mov_b32 v{PL+3}, 0")
    k("s_lshl_b32 s33, s30, 2\nv_add_u32 v8, s33, v7")
    for s in range(1, 8):
        k(f"v_cmp_eq_u32 vcc, {s}, v8")
        for x in range(4): k(f"v_cndmask_b32 v{PL+x}, v{PL+x}, v{EV(s-1,0)+x}, vcc")
    PRs = lambda cb: FR + 4*cb
    PIs = lambda cb: FR + 4*cb + 2
    for cb in range(2):
        p = PL + 2*cb; r0, i0 = U(cb,0,7), U(cb,1,7)
        k(f"""
        v_fma_f32 v{PRs(cb)+1}, v{L8R+cb}, v{p}, v{r0}
        v_fma_f32 v{PIs(cb)+1}, v{L8R+cb}, v{p+1}, v{i0}
        v_mov_b32 v{PRs(cb)}, v{p}
        v_mov_b32 v{PIs(cb)}, v{p+1}
        v_fma_f32 v{PRs(cb)+1}, -v{L8I+cb}, v{p+1}, v{PRs(cb)+1}
        v_fma_f32 v{PIs(cb)+1}, v{L8I+cb}, v{p}, v{PIs(cb)+1}
        """)
    for tp in range(8):
        for cb in range(2):
            t = T1 + 2*cb; R, I = U(cb,0,tp), U(cb,1,tp)
            k(pk("mul", t, SI_, R, sa=cb, na=3)); k(pk("mul", R, SR_, R, sa=cb))
            k(pk("fma", R, SI_, I, R, sa=cb, na=3)); k(pk("fma", I, SR_, I, t, sa=cb, na=3))
    k(f"""
    s_lshl_b32 s33, s29, 12
    s_add_u32 s33, s33, {L_TR}
    v_lshrrev_b32 v8, 1, v6
    v_and_b32 v8, 4, v8
    v_and_b32 v9, 7, v6
    v_xor_b32 v8, v8, v9                    ; g(j)
    v_lshlrev_b32 v9, 1, v7
    v_xor_b32 v8, v8, v9
    v_lshlrev_b32 v8, 4, v8
    v_lshl_add_u32 v8, v6, 7, v8
    v_add_u32 v2, s33, v8
    v_xor_b32 v3, 16, v2
    v_bfe_u32 v8, v1, 2, 2                  ; r
    v_bfe_u32 v9, v1, 1, 1
    v_xor_b32 v9, v9, v8
    v_and_b32 v4, 1, v7
    v_lshlrev_b32 v4, 2, v4
    v_xor_b32 v9, v9, v4
    v_lshlrev_b32 v9, 4, v9
    v_lshl_add_u32 v8, v7, 3, v8
    v_lshl_add_u32 v9, v8, 7, v9
    v_and_b32 v8, 1, v1
    v_lshl_add_u32 v9, v8, 3, v9
    v_add_u32 v4, s33, v9
    v_xor_b32 v5, 32, v4
    v_xor_b32 v30, 64, v4
    v_xor_b32 v31, 96, v4
    s_mov_b32 s45, {SPIN}
    """)
    stamp(k, cfg, 3)
    if cfg.get("lbpre", 10): k(f"s_sleep {cfg.get('lbpre', 10)}")
    lb_loads()
    k("Lc_lbpoll:\ns_waitcnt vmcnt(0)")
    for i in range(4):
        for cb in range(2):
            g = GR + (i*2+cb)*4
            k(f"v_cmp_ne_u64 s[{46+2*(i*2+cb)}:{47+2*(i*2+cb)}], v[{g+2}:{g+3}], v[{EXP[i]}:{EXP[i]+1}]")
    k("""
    s_or_b64 s[46:47], s[46:47], s[48:49]
    s_or_b64 s[50:51], s[50:51], s[52:53]
    s_or_b64 s[54:55], s[54:55], s[56:57]
    s_or_b64 s[58:59], s[58:59], s[60:61]
    s_or_b64 s[46:47], s[46:47], s[50:51]
    s_or_b64 s[54:55], s[54:55], s[58:59]
    s_or_b64 s[46:47], s[46:47], s[54:55]
    s_cbranch_scc0 Lc_lbok
    s_sub_u32 s45, s45, 1
    s_cbranch_scc1 Lc_lbok
    """)
    if cfg.get("lbsleep"): k(f"s_sleep {cfg['lbsleep']}")
    lb_loads()
    k("s_branch Lc_lbpoll\nLc_lbok:")
    stamp(k, cfg, 4)
    G = lambda i, cb: GR + (i*2+cb)*4
    for i in (2, 1, 0):
        for cb in range(2): cfma_ri(k, G(i,cb), L5R, L5I, cb, G(i+1,cb), G(i,cb), G(i,cb))
    H = lambda cb: G(1, cb)
    for cb in range(2): k(pk("mul", H(cb), VR_, G(0,cb), sa=cb))
    for cb in range(2): k(pk("fma", H(cb), VI_, G(0,cb), H(cb), sa=cb, sb='x', nb=1))
    for op in ("v_permlane16_swap_b32", "v_permlane32_swap_b32"):
        for cb in range(2): k(f"v_mov_b32 v{H(cb)+2}, v{H(cb)}\nv_mov_b32 v{H(cb)+3}, v{H(cb)+1}")
        for cb in range(2): k(f"{op} v{H(cb)}, v{H(cb)+2}\n{op} v{H(cb)+1}, v{H(cb)+3}")
        for cb in range(2): k(pk("add", H(cb), H(cb), H(cb)+2))
    for cb in range(2):
        k(pk("fma", PRs(cb), WRs(cb), H(cb), PRs(cb), sb=0)); k(pk("fma", PIs(cb), WRs(cb), H(cb), PIs(cb), sb=1))
    for cb in range(2):
        k(pk("fma", PRs(cb), WIs(cb), H(cb), PRs(cb), sb=1, nb=3)); k(pk("fma", PIs(cb), WIs(cb), H(cb), PIs(cb), sb=0))
    PK = GR
    RA = {0: 4, 2: 5, 4: 30, 6: 31}
    k(f"s_mov_b32 s33, {2*8192}")
    def hstores(ri):
        for qq in range(4):
            b = ACC + 32*ri + 4*qq
            k(f"s_waitcnt lgkmcnt({2*(1-ri) + 2*(3-qq)})")
            k(f"buffer_store_dwordx4 v[{b}:{b+3}], v196, s[{HS}:{HS+3}], {'s33' if ri else '0'} offen offset:{qq*1024} {cfg.get('hstfl', 'sc1')}")
    for ri in range(2):
        for cb in range(2):
            for tp in range(8):
                R, I, T = U(cb,0,tp), U(cb,1,tp), TB(tp,cb)
                if ri == 0: k(pk("fma", R, T, PRs(cb), R, sa=0)); k(pk("fma", R, T, PIs(cb), R, sa=1, na=3))
                else: k(pk("fma", I, T, PIs(cb), I, sa=0, na=3)); k(pk("fma", I, T, PRs(cb), I, sa=1, na=3))
            for sub in range(2):
                b = PK + ((ri*2+cb)*2+sub)*4
                for x in range(4): k(f"v_cvt_pk_bf16_f32 v{b+x}, v{U(cb,ri,2*x)+sub}, v{U(cb,ri,2*x+1)+sub}")
                k(f"ds_write_b128 v{2+sub}, v[{b}:{b+3}] offset:{cb*16*128}")
            if ri == 1 and cb == 0: hstores(0)
        for qq in range(4):
            b = ACC + 32*ri + 4*qq
            for hh in range(2): k(f"ds_read_b64_tr_b16 v[{b+2*hh}:{b+2*hh+1}], v{RA[(2*qq) ^ (4*hh)]} offset:{4*hh*128}")
    hstores(1)
    stamp(k, cfg, 5)
    CF, HR, AC2 = 8, 40, 200
    k(f"""
    s_lshl_b32 s33, s26, 11
    s_add_u32 s33, s33, {WS_HF}
    s_add_u32 s{ES}, s{WS}, s33
    s_addc_u32 s{ES+1}, s{WS+1}, 0
    s_mov_b32 s{ES+2}, 2048
    s_lshl_b32 s47, s27, 7
    v_mov_b32 v190, s44
    v_lshlrev_b32 v191, 2, v1
    v_lshlrev_b32 v192, 7, v6
    v_mov_b32 v193, 1
    v_mov_b32 v194, {L_FLAG}
    v_lshrrev_b32 v2, 1, v6
    v_xor_b32 v2, v2, v7
    v_lshlrev_b32 v2, 4, v2
    v_lshl_add_u32 v2, v6, 7, v2
    v_add_u32 v2, {L_C}, v2
    v_xor_b32 v3, 64, v2
    v_and_b32 v5, 7, v6
    v_xor_b32 v5, v5, v7
    v_lshlrev_b32 v5, 4, v5
    v_lshl_add_u32 v5, v6, 8, v5
    s_lshl_b32 s33, s29, 13
    s_add_u32 s33, s33, {L_STG}
    v_add_u32 v186, s33, v5
    v_xor_b32 v187, 64, v186
    v_xor_b32 v188, 128, v186
    v_xor_b32 v189, 192, v186
    """)
    for r in range(32): k(f"v_mov_b32 v{AC2+r}, 0")
    k(ROT[cfg.get("rot2", "xc1")])
    k(f"""
    s_and_b32 s61, s61, 15
    s_add_u32 s62, s61, s26
    s_and_b32 s62, s62, 15
    s_lshl_b32 s62, s62, 15
    s_lshl_b32 s32, s29, 11
    s_lshl_b32 s33, s26, 19
    s_add_u32 s33, s33, s32
    s_add_u32 s33, s33, {WS_H}
    s_waitcnt vmcnt(0)
    s_mov_b64 exec, 1
    ds_add_rtn_u32 v193, v194, v193 offset:24
    s_mov_b64 exec, -1
    """)
    stamp(k, cfg, 20)
    k(f"""
    s_add_u32 s{HS}, s{WS}, s33
    s_addc_u32 s{HS+1}, s{WS+1}, 0
    s_sub_u32 s{HS+2}, {64*8192}, s32
    s_waitcnt lgkmcnt(0)
    v_readfirstlane_b32 s46, v193
    """)
    k(f"""
    s_cmp_lg_u32 s46, 3
    s_cbranch_scc1 Lc_hok
    s_mov_b64 exec, 0xffffffff
    buffer_store_dword v190, v191, s[{ES}:{ES+3}], s47 offen sc1
    s_mov_b64 exec, 0xffff
    """)
    if cfg.get("skipown", 1): k("s_lshl_b32 s46, 1, s27\ns_andn2_b32 exec_lo, exec_lo, s46")
    if cfg.get("presleep", 0): k(f"s_sleep {cfg.get('presleep', 0)}")
    if cfg.get("nowait") == 2: k("s_branch Lc_hdone")
    k(f"s_mov_b32 s45, {SPIN}\nLc_hpoll:")
    if cfg.get("pollat", "sc0 sc1"): k(f"v_mov_b32 v193, 0\nbuffer_atomic_or v193, v192, s[{ES}:{ES+3}], 0 offen {cfg.get('pollat', 'sc0 sc1')}")
    else: k(f"buffer_load_dword v193, v192, s[{ES}:{ES+3}], 0 offen sc1")
    k(f"""
    s_waitcnt vmcnt(0)
    v_cmp_ne_u32 vcc, s44, v193
    {'s_branch Lc_hdone' if cfg.get('nowait') else ''}
    s_cbranch_vccz Lc_hdone
    s_sub_u32 s45, s45, 1
    s_cbranch_scc1 Lc_hdone
    s_sleep {cfg.get('hsleep', 4)}
    s_branch Lc_hpoll
    Lc_hdone:
    s_mov_b64 exec, -1
    Lc_hok:
    s_barrier
    """)
    stamp(k, cfg, 7)
    def hload(u, tb):
        r = HR + 8*(u % 8) + 4*tb
        k(f"buffer_load_dwordx4 v[{r}:{r+3}], v196, s[{HS}:{HS+3}], s62 offen offset:{tb*1024} {cfg.get('hld', 'sc1')}")
    def hadv(): k(f"s_add_u32 s62, s62, 8192\ns_and_b32 s62, s62, {64*8192-1}")
    HD = cfg.get("hd", 6)
    for u in range(HD):
        hload(u, 0); hload(u, 1); hadv()
    stamp(k, cfg, 8)
    def rd2(sub, fs, slot):
        b = CF + 16*fs; ri, s = sub >> 1, sub & 1
        return [f"ds_read_b128 v[{b+4*d}:{b+4*d+3}], v{2+s} offset:{slot*16384 + ri*8192 + d*2048}" for d in range(4)]
    def mm2(u, fs):
        b = CF + 16*fs; out = []
        for tb in range(2):
            h = HR + 8*(u % 8) + 4*tb
            for d in (range(4) if tb == 0 else range(3, -1, -1)):
                a = AC2 + (tb*4+d)*4
                out.append(f"v_mfma_f32_16x16x32_bf16 v[{a}:{a+3}], v[{b+4*d}:{b+4*d+3}], v[{h}:{h+3}], v[{a}:{a+3}]")
        return out
    for l in rd2(0, 0, 0): k(l)
    k("s_mov_b32 s35, 0\nLc2_loop:")
    for u in range(8):
        if u == 8 - HD: k(f"s_cmp_eq_u32 s35, 7\ns_cselect_b32 s{HS+2}, 0, s{HS+2}")
        half, sub = u >> 2, u & 3
        m = mm2(u, u & 1)
        r = rd2(sub+1, (u+1) & 1, half) if sub < 3 else rd2(0, 0, 1 - half)
        k(f"s_waitcnt vmcnt({2*HD-1}) lgkmcnt(0)")
        for i in range(8):
            if i == 4: k(f"s_waitcnt vmcnt({2*HD-1})")
            k(m[i])
            if sub == 3 and i == 0:
                if half == 1: k("v_xor_b32 v2, 0x8000, v2\nv_xor_b32 v3, 0x8000, v3\ns_cbranch_scc1 Lc2_nobar\ns_barrier\nLc2_nobar:")
                else: k("s_barrier")
            o = 1 if sub == 3 else 0
            if o <= i < o + 4: k(r[i - o])
            if i == 3: hload(u + HD, 0)
            if i == 7:
                hload(u + HD, 1)
                hadv()
                if u == 6: k("s_cmp_eq_u32 s35, 7")
    stamp_loop(k, dict(lstamps=cfg.get('lstamps2')), 12, 35)
    k("s_add_u32 s35, s35, 1\ns_cmp_lt_u32 s35, 8\ns_cbranch_scc1 Lc2_loop")
    stamp(k, cfg, 9)
    for tb in range(2):
        for d in range(4):
            a = AC2 + (tb*4+d)*4
            k(f"ds_write_b128 v{186+d}, v[{a}:{a+3}] offset:{tb*4096}")
    k("s_waitcnt lgkmcnt(0)\ns_barrier")
    stamp(k, cfg, 10)
    stamp_flush(k, cfg, 0)
```

```python
import sys, os, json
ROOT = os.path.dirname(os.path.dirname(os.path.abspath(__file__)))
sys.path.insert(0, ROOT + "/tools"); sys.path.insert(0, ROOT + "/src")
from asmgen import *
from fused import gen_fused
DEFAULTS = dict(e1pre=8, lbpre=6, prio=3, rot1='k8p')
def build(cfg):
    cfg = dict(DEFAULTS, **cfg)
    if cfg.get("old"):
        sys.path.insert(0, ROOT + "/old")
        import importlib
        ks = [importlib.import_module(cfg["old"]).gen_fused(dict(dict(wd_at='loop', ntw=1), **{a: b for a, b in cfg.items() if a not in DEFAULTS}))]
    else: ks = [gen_fused(cfg)]
    order = list(ks)
    if cfg.get("empty"):
        e = Kern("e0_kernel", cfg.get("empty_grid", 1), 64, 0, 8, 16); e("s_endpgm")
        ks.append(e)
        for pos in cfg["empty"]: order.insert(pos, e)
    return make_file(ks, order)
if __name__ == "__main__":
    out = sys.argv[1]
    cfg = json.loads(sys.argv[2]) if len(sys.argv) > 2 else {}
    open(out, "w").write(build(cfg))
```
